```python
import torch

def _softmax(x, axis=-1):
    return torch.softmax(x, dim=axis)
def _gelu(x):
    return torch.nn.functional.gelu(x, approximate="tanh")
def _silu(x):
    return torch.nn.functional.silu(x)
def _sigmoid(x):
    return torch.sigmoid(x)
def _layernorm(x, axis=-1, eps=1e-5):
    m = x.mean(dim=axis, keepdim=True)
    v = x.var(dim=axis, keepdim=True, unbiased=False)
    return (x - m) / torch.sqrt(v + eps)
def _scatter_add(tgt, idx, src, axis=0):
    return tgt.clone().index_add_(axis, idx, src)
def _segment_sum(src, seg, n):
    out = torch.zeros((n,) + src.shape[1:], dtype=src.dtype)
    return out.index_add_(0, seg, src)
def _pad(x, pw):
    flat = tuple(v for pair in reversed(pw) for v in pair)
    return torch.nn.functional.pad(x, flat)

kernel_name = 'sequential_preLN__sliding_block_cached__swiglu_ffn__decode'

def setup_inputs():

    _w = (lambda a: (lambda t: t.to(torch.bfloat16) if t.is_floating_point() else t)(torch.as_tensor(a)))
    def _A_setup():
        B, Sq, D = 4, 1, 512
        Hq, Hkv, Sk, Dh = 32, 8, 16384, 128
        assert Hq % Hkv == 0, (Hq, Hkv)
        return {
            "x": _w((lambda *s: torch.randn(*s, dtype=torch.bfloat16) * 0.05)(B, Sq, D)),
            "k_cache": _w((lambda *s: torch.randn(*s, dtype=torch.bfloat16) * 3.2)(B, Hkv, Sk, Dh)),
            "v_cache": _w((lambda *s: torch.randn(*s, dtype=torch.bfloat16) * 0.4)(B, Hkv, Sk, Dh)),
            "wq": _w((lambda *s: torch.randn(*s, dtype=torch.bfloat16) * 3.2)(D, Hq * Dh) * (D ** -0.5)),
            "wo": _w((lambda *s: torch.randn(*s, dtype=torch.bfloat16) * 0.4)(Hq * Dh, D) * ((Hq * Dh) ** -0.5)),
        }
    _A_in = _A_setup()

    def _B_setup():
        B, S, D, F = 4, 1, 512, 1792
        return {
            "x": _w((lambda *s: torch.randn(*s, dtype=torch.bfloat16) * 0.05)(B, S, D)),
            "w_gate": _w((lambda *s: torch.randn(*s, dtype=torch.bfloat16) * 0.05)(D, F)),
            "w_up": _w((lambda *s: torch.randn(*s, dtype=torch.bfloat16) * 0.05)(D, F)),
            "w_down": _w((lambda *s: torch.randn(*s, dtype=torch.bfloat16) * 0.05)(F, D)),
        }
    _B_in = _B_setup()

    return {
        "A_x": _A_in["x"],
        "A_k_cache": _A_in["k_cache"],
        "A_v_cache": _A_in["v_cache"],
        "A_wq": _A_in["wq"],
        "A_wo": _A_in["wo"],
        "B_x": _B_in["x"],
        "B_w_gate": _B_in["w_gate"],
        "B_w_up": _B_in["w_up"],
        "B_w_down": _B_in["w_down"],
    }

def reference(A_x, A_k_cache, A_v_cache, A_wq, A_wo, B_x, B_w_gate, B_w_up, B_w_down):
    def _A_ref(x, k_cache, v_cache, wq, wo):
        B, Sq, D = x.shape
        Hq, Dh = 32, 128
        Hkv, Sk = k_cache.shape[1], k_cache.shape[2]
        W = min(4096, max(256, Sk // 4))
        rep = Hq // Hkv
        q = (lambda x, *d: x.permute(*d))((x @ wq).reshape(B, Sq, Hq, Dh), 0, 2, 1, 3)
        k = (lambda x, n, axis: torch.repeat_interleave(x, n, dim=axis))(k_cache[:, :, Sk - W:, :], rep, axis=1)
        v = (lambda x, n, axis: torch.repeat_interleave(x, n, dim=axis))(v_cache[:, :, Sk - W:, :], rep, axis=1)
        scores = torch.einsum("bhqd,bhkd->bhqk", q, k) * (Dh ** -0.5)
        p = _softmax(scores, axis=-1)
        o = torch.einsum("bhqk,bhkd->bhqd", p, v)
        return (lambda x, *d: x.permute(*d))(o, 0, 2, 1, 3).reshape(B, Sq, Hq * Dh) @ wo

    def _B_ref(x, w_gate, w_up, w_down):
        g = _silu(x @ w_gate)
        u = x @ w_up
        return (g * u) @ w_down

    x = A_x
    h = x + _A_ref(_layernorm(x, axis=-1), A_k_cache, A_v_cache, A_wq, A_wo)
    h2 = h + _B_ref(_layernorm(h, axis=-1), B_w_gate, B_w_up, B_w_down)
    return h2
```

```python
import re

TRANS = ("v_exp_f32", "v_log_f32", "v_rcp_f32", "v_rsq_f32", "v_sqrt_f32", "v_sin_f32", "v_cos_f32")
RMW = ("v_fmac_f32", "v_dot2c_", "v_writelane")

def regs_of(tok):
    tok = tok.strip().lstrip("-").strip("|")
    m = re.fullmatch(r"abs\((.*)\)", tok)
    if m: tok = m.group(1)
    m = re.fullmatch(r"([vsa])(\d+)", tok)
    if m: return {tok}
    m = re.fullmatch(r"([vsa])\[(\d+):(\d+)\]", tok)
    if m: return {f"{m.group(1)}{i}" for i in range(int(m.group(2)), int(m.group(3)) + 1)}
    if tok in ("vcc", "vcc_lo", "vcc_hi"): return {"vcc"}
    if tok in ("exec", "exec_lo", "exec_hi"): return {"exec"}
    if tok == "m0": return {"m0"}
    return set()

class Ins:
    def __init__(self, text):
        self.text = text
        t = text.split(";")[0].strip()
        self.label = t[:-1] if t.endswith(":") else None
        self.directive = t.startswith(".") and not self.label
        self.op = None; self.w = set(); self.r = set(); self.kind = None; self.target = None
        self.srcc = set(); self.ab = set(); self.sdata = set()
        if self.label or self.directive or not t: return
        parts = t.split(None, 1)
        self.op = op = parts[0]
        rest = parts[1] if len(parts) > 1 else ""
        toks = [x.strip() for x in re.split(r",(?![^\[]*\])", rest)] if rest else []
        if toks:
            last = toks[-1].split()
            toks[-1] = last[0] if last else ""
            self.mods = " ".join(last[1:])
        else: self.mods = ""
        R = [regs_of(x) for x in toks]
        U = lambda xs: set().union(*xs) if xs else set()
        if op.startswith("v_mfma"):
            self.kind = "mfma"; self.w = R[0]; self.ab = R[1] | R[2]; self.srcc = R[3]; self.r = self.ab | self.srcc
        elif op.startswith("v_"):
            self.kind = "valu"
            self.dpp = "_dpp" in op
            self.trans = op.startswith(TRANS)
            self.perml = op.startswith("v_permlane")
            self.rdlane = op.startswith(("v_readfirstlane", "v_readlane"))
            if op.startswith("v_cmpx"): self.w = R[0] | {"exec"}; self.r = U(R[1:])
            elif self.perml: self.w = R[0] | R[1]; self.r = R[0] | R[1]
            elif op.startswith(("v_add_co", "v_addc_co", "v_sub_co")): self.w = R[0] | R[1]; self.r = U(R[2:])
            elif op == "v_nop": pass
            else:
                self.w = R[0]; self.r = U(R[1:])
                if op.startswith(RMW) or (self.dpp and "bank_mask:0xf" not in self.mods): self.r |= R[0]
        elif op.startswith("ds_"):
            self.kind = "ds"
            if op.startswith("ds_read") or "_rtn" in op or "permute" in op or "swizzle" in op: self.w = R[0]; self.r = U(R[1:])
            else: self.r = U(R)
        elif op.startswith(("buffer_", "global_")):
            self.kind = "vmem"
            self.ldsdma = " lds" in " " + self.mods or "_lds_" in op
            if "load" in op and not self.ldsdma: self.w = R[0]; self.r = U(R[1:])
            else:
                self.r = U(R)
                if "store" in op and ("x4" in op or "x3" in op):
                    self.sdata = R[0] if op.startswith("buffer_") else R[1]
                if "atomic" in op and "sc0" in self.mods: self.w = R[0]
        elif op.startswith("s_"):
            self.kind = "salu"
            if op.startswith(("s_cbranch", "s_branch")): self.target = toks[0]
            elif op.startswith(("s_cmp", "s_bitcmp")): self.r = U(R)
            elif op.startswith(("s_waitcnt", "s_nop", "s_barrier", "s_sleep", "s_endpgm", "s_setprio")): pass
            else:
                self.w = R[0] if R else set(); self.r = U(R[1:])
                if "saveexec" in op: self.w = self.w | {"exec"}
        else:
            raise ValueError("unknown op " + text)
    def states(self):
        if self.op is None: return 0
        if self.op == "s_nop": return int(self.text.split()[1], 0) + 1
        return 1

def need(p, c):
    n = 0
    isv = lambda s: {x for x in s if x[0] in "va" and x != "vcc"}
    iss = lambda s: {x for x in s if x[0] == "s" or x == "vcc"}
    if p.kind == "valu":
        wv = isv(p.w); ws = iss(p.w)
        if c.kind == "mfma" and wv & c.r: n = max(n, 2)
        if c.kind == "valu":
            if c.dpp and wv & c.r: n = max(n, 2)
            if c.perml and wv & c.r: n = max(n, 2)
            if c.rdlane and wv & c.r: n = max(n, 1)
            if p.trans and not c.trans and wv & c.r: n = max(n, 1)
            if ws & c.r: n = max(n, 4 if (c.rdlane or c.op.startswith("v_writelane")) else 2)
            if "exec" in p.w: n = max(n, 5 if c.dpp else 4 if (c.rdlane or c.perml) else 0)
        if c.kind == "mfma" and "exec" in p.w: n = max(n, 4)
        if c.kind == "mfma" and p.op.startswith("v_pk_"): n = max(n, 2)
        if c.kind == "vmem" and ws & c.r: n = max(n, 5)
        if c.kind == "salu" and ws & c.r: n = max(n, 1)
    if p.kind == "mfma":
        if c.kind == "mfma":
            if p.w & c.ab: n = max(n, 8)
            if p.w & c.srcc and p.w != c.srcc: n = max(n, 6)
            if p.w & c.w and p.w != c.srcc: n = max(n, 6)
        elif c.kind == "valu":
            if p.w & (c.r | c.w): n = max(n, 8)
            if p.srcc & c.w: n = max(n, 3)
        elif c.kind in ("ds", "vmem"):
            if p.w & (c.r | c.w): n = max(n, 8)
    if p.kind == "vmem" and p.sdata and c.kind in ("valu", "mfma") and p.sdata & c.w: n = max(n, 2)
    if p.kind == "vmem" and p.sdata and c.kind in ("ds", "vmem") and p.sdata & c.w: n = max(n, 1)
    if p.kind == "salu" and "m0" in p.w:
        if (c.kind == "vmem" and c.ldsdma) or (c.kind == "valu" and "m0" in c.r): n = max(n, 1)
    return n

class Asm:
    def __init__(self): self.lines = []
    def __call__(self, text):
        for l in text.split("\n"):
            l = l.strip()
            if l: self.lines.append(l)
    def padded(self):
        ins = [Ins(l) for l in self.lines]
        for _ in range(2000):
            labels = {x.label: i for i, x in enumerate(ins) if x.label}
            srcs = {}
            for i, x in enumerate(ins):
                if x.target: srcs.setdefault(labels[x.target], []).append(i)
            def preds(i):
                out = list(srcs.get(i, [])) if ins[i].label else []
                if i > 0 and ins[i - 1].op not in ("s_branch", "s_endpgm"): out.append(i - 1)
                return out
            fix = {}
            for i, c in enumerate(ins):
                if c.op is None: continue
                worst = 0; seen = {}
                stack = [(p, 0) for p in preds(i)]
                while stack:
                    j, d = stack.pop()
                    if d >= 8 or seen.get(j, 99) <= d: continue
                    seen[j] = d
                    p = ins[j]
                    if p.op is not None: worst = max(worst, need(p, c) - d)
                    stack += [(q, d + p.states()) for q in preds(j)]
                if worst > 0: fix[i] = worst
            if not fix: break
            i = min(fix)
            done = []
            last = -100
            for i in sorted(fix):
                if i - last > 10: done.append(i); last = i
            for i in reversed(done): ins.insert(i, Ins(f"s_nop {fix[i]-1}"))
        else:
            raise RuntimeError("padding did not converge")
        return "\n".join(("" if x.label or x.directive else "    ") + x.text for x in ins) + "\n"
```

```python
import sys
from asmlib import Asm
KNAME = "sequential_preLN__sliding_block_cached__swiglu_ffn__decode_kernel"

QP, ST, OP, DP = 0x00000, 0x40000, 0x80000, 0xC0000
WS_BYTES = 0x100000
STAMP = 0x10000000
L_Q, L_P, L_DEP, L_RED, L_RED2, L_CS, L_STAT, L_FLAG = 131072, 132096, 136192, 142336, 147456, 152576, 153856, 154112
LDS_BYTES = 154624
F_TURN, F_K, F_Q, F_CLR, F_DEP, F_WO, F_O, F_W2, F_P = 0, 4, 8, 12, 16, 20, 24, 28, 32

DEF = dict(dbg=0, thrK=20, thrV=20, burst=6, SS=131072, SJ=32768, rot=1, ntw=" nt", ntq=" nt", wo_early=0, st1=" sc1",
           sl_lds=1, sl_flag=8, sl_q=4, sl_st=4, sl_h1=0, sl_h2=0, sl_h3=0, pre3=0, pref=1)

def gen(**kw):
    P = dict(DEF); P.update(kw)
    dbg = P["dbg"]
    a = Asm()
    uid = [0]
    def L(s):
        uid[0] += 1
        return f"L_{s}_{uid[0]}"
    def stamp(k):
        if dbg: a(f"s_memrealtime s[{64+2*k}:{65+2*k}]")
    def lgkm(n=0): a(f"s_waitcnt lgkmcnt({0 if dbg else n})")
    def vm(n): a(f"s_waitcnt vmcnt({n})")
    def srd(d, p, nbytes):
        a(f"s_mov_b32 s{d}, s{p}\ns_mov_b32 s{d+1}, s{p+1}\ns_mov_b32 s{d+2}, {hex(nbytes)}\ns_mov_b32 s{d+3}, 0x20000")
    def budget(): a("s_sub_u32 s32, s32, 1\ns_cbranch_scc1 L_exit")
    def wait_flag(off, val, addr="v14"):
        l, d = L("wf"), L("wfd")
        a(f"{l}:\nds_read_b32 v15, {addr} offset:{off}")
        a("s_waitcnt lgkmcnt(0)\nv_readfirstlane_b32 s33, v15")
        a(f"s_cmp_ge_u32 s33, {val}\ns_cbranch_scc1 {d}")
        if P["sl_lds"]: a(f"s_sleep {P['sl_lds']}")
        budget()
        a(f"s_branch {l}\n{d}:")
    def set_flag(off, val, addr="v14"):
        a(f"v_mov_b32 v15, {val}\nds_write_b32 {addr}, v15 offset:{off}")
    def add_flag(off):
        a(f"s_mov_b64 exec, 1\nv_mov_b32 v15, 1\nds_add_u32 v14, v15 offset:{off}\ns_mov_b64 exec, -1")
    def poll(loads, regs, sleep):
        l, d = L("pl"), L("pld")
        a(f"{l}:")
        for x in loads: a(x)
        vm(0)
        rs = list(regs)
        a(f"v_max_u32 v15, v{rs[0]}, v{rs[1]}")
        for i in range(2, len(rs), 2): a(f"v_max3_u32 v15, v15, v{rs[i]}, v{rs[i+1]}")
        a(f"v_cmp_eq_u32 vcc, -1, v15\ns_cbranch_vccz {d}")
        if sleep: a(f"s_sleep {sleep}")
        budget()
        a(f"s_branch {l}\n{d}:")
    def transpose(dst, src, ps=range(4)):
        for p in ps:
            for d in range(4):
                for e in range(2):
                    a(f"v_perm_b32 v{dst+4*(2*d+e)+p}, v{src+4*(2*p+1)+d}, v{src+8*p+d}, s{34+e}")
    def mfma(d, A, B, c):
        cc = "0" if c is None else f"v[{c}:{c+3}]"
        a(f"v_mfma_f32_16x16x32_bf16 v[{d}:{d+3}], v[{A}:{A+3}], v[{B}:{B+3}], {cc}")
    def dpp(op, d, s0, s1, ctl, bank="0xf"):
        a(f"{op}_dpp v{d}, v{s0}" + (f", v{s1}" if s1 is not None else "") + f" {ctl} row_mask:0xf bank_mask:{bank}")
    def xrow(op, v, t):
        a(f"v_mov_b32 v{t}, v{v}\nv_permlane16_swap_b32 v{v}, v{t}\n{op} v{v}, v{v}, v{t}")
        a(f"v_mov_b32 v{t}, v{v}\nv_permlane32_swap_b32 v{v}, v{t}\n{op} v{v}, v{v}, v{t}")
    def rbf(d, s):
        a(f"v_cvt_pk_bf16_f32 v{d}, v{s}, v{s}\nv_and_b32 v{d}, 0xffff0000, v{d}")
    def fold_halves(res, ab):
        for v in range(4):
            x, y = ab(v); dpp("v_add_f32", res + v, y, x, "row_ror:8", "0x3")
        for v in range(4):
            x, y = ab(v + 4); dpp("v_add_f32", res + v, x, y, "row_ror:8", "0xc")

    a(f"{KNAME}:")
    if dbg:
        for k in range(66, 96, 2): a(f"s_mov_b64 s[{k}:{k+1}], 0")
    stamp(0)
    a("s_load_dwordx16 s[4:19], s[0:1], 0\ns_load_dwordx8 s[20:27], s[0:1], 64")
    a("s_cmp_ge_u32 s2, 256\ns_cbranch_scc1 L_end")
    a("v_lshrrev_b32 v1, 6, v0\nv_and_b32 v0, 63, v0\nv_readfirstlane_b32 s3, v1")
    a("s_and_b32 s28, s2, 7\ns_bfe_u32 s29, s2, 0x20003\ns_lshr_b32 s30, s2, 5")
    a("s_mov_b32 s32, 0x200000\ns_mov_b32 s34, 0x05040100\ns_mov_b32 s35, 0x07060302")
    a(f"v_mov_b32 v14, {L_FLAG}")
    a("v_lshrrev_b32 v12, 4, v0\nv_and_b32 v13, 15, v0")
    a("s_and_b32 s31, s3, 3")
    a("s_lshl_b32 s60, s29, 3\ns_add_u32 s60, s60, s28\ns_lshl_b32 s60, s60, 22")
    a(f"s_mul_i32 s61, s30, {P['SS']}\ns_add_u32 s60, s60, s61\ns_add_u32 s60, s60, 0x300000")
    a(f"s_mul_i32 s62, s2, {P['rot']}")
    a("s_lshl_b32 s63, s28, 2\ns_add_u32 s63, s63, s29")
    a("s_cmp_eq_u32 s3, 0\ns_cbranch_scc1 L_T0")
    a("s_cmp_eq_u32 s3, 1\ns_cbranch_scc1 L_T1")
    a("s_cmp_eq_u32 s3, 2\ns_cbranch_scc1 L_T2")
    a("s_cmp_ge_u32 s3, 4\ns_cbranch_scc1 L_S")

    for ii in range(4):
        a(f"v_lshl_add_u32 v1, v12, 2, {ii}\nv_xor_b32 v1, v1, v13\nv_lshlrev_b32 v1, 4, v1\nv_lshl_add_u32 v{4+ii}, v12, 8, v1")
    a("s_mov_b32 s48, 0")
    a("s_waitcnt lgkmcnt(0)")
    srd(40, 6, 0x8000000)
    srd(36, 26, WS_BYTES)
    def ktile():
        a(f"s_add_u32 s49, s48, s62\ns_and_b32 s49, s49, 7\ns_lshl_b32 s49, s49, 12")
        a(f"s_lshr_b32 s50, s48, 3\ns_mul_i32 s50, s50, {P['SJ']}\ns_add_u32 s49, s49, s50\ns_add_u32 s49, s49, s60")
        a("s_lshl_b32 m0, s48, 12\ns_add_u32 s48, s48, 1")
        for ii in range(4):
            a(f"buffer_load_dwordx4 v{4+ii}, s[40:43], s49 offen offset:{ii*1024} nt lds")
    a("L_kA:"); ktile()
    a(f"s_cmp_lt_u32 s48, {P['burst']}\ns_cbranch_scc1 L_kA")
    a("s_barrier")
    a("L_kB:")
    vm(P["thrK"])
    a(f"s_sub_u32 s51, s48, {(P['thrK']+3)//4}\ns_max_i32 s51, s51, 0")
    set_flag(F_K, "s51")
    ktile()
    a("s_cmp_lt_u32 s48, 32\ns_cbranch_scc1 L_kB")
    set_flag(F_TURN, 1)
    stamp(1)
    vm(0)
    set_flag(F_K, 32)
    stamp(2)
    a("s_branch L_TQK")

    a("L_T0:")
    a("v_bfe_u32 v1, v0, 2, 2\nv_lshlrev_b32 v1, 10, v1")
    a("v_and_b32 v2, 3, v0\nv_lshl_add_u32 v2, v12, 2, v2\nv_lshl_add_u32 v2, v2, 6, v1")
    a("v_and_b32 v3, 1, v0\nv_lshlrev_b32 v3, 6, v3\nv_lshl_add_u32 v3, v12, 4, v3\nv_add_u32 v3, v3, v1")
    a("v_bfe_u32 v4, v0, 3, 1\nv_lshl_add_u32 v4, v4, 2, v12\nv_lshlrev_b32 v4, 16, v4\nv_and_b32 v5, 7, v0\nv_lshl_add_u32 v4, v5, 4, v4")
    a("s_lshl_b32 s48, s29, 20\ns_lshl_b32 s49, s28, 10\ns_add_u32 s48, s48, s49\ns_lshl_b32 s49, s30, 7\ns_add_u32 s48, s48, s49")
    a("s_lshl_b32 s50, s29, 8")
    a("s_waitcnt lgkmcnt(0)")
    srd(40, 4, 4096); srd(44, 10, 0x400000); srd(36, 26, WS_BYTES)
    for k in range(4): a(f"buffer_load_dwordx4 v[{16+4*k}:{19+4*k}], v2, s[40:43], 0 offen offset:{16*k}")
    for u in range(2): a(f"buffer_load_dwordx4 v[{32+4*u}:{35+4*u}], v3, s[40:43], s50 offen offset:{128*u}")
    for u in range(2):
        for jj in range(8):
            r = 96 + 32 * u + 4 * jj
            a(f"buffer_load_dwordx4 v[{r}:{r+3}], v4, s[44:47], s48 offen{P['ntq']}")
            if not (u == 1 and jj == 7): a(f"s_add_u32 s48, s48, {8192 if jj < 7 else 57*8192}")
    a("s_barrier")
    vm(18)
    for k in range(16):
        a(f"v_lshlrev_b32 v{160+2*k}, 16, v{16+k}\nv_and_b32 v{161+2*k}, 0xffff0000, v{16+k}")
    a("v_pk_add_f32 v[6:7], v[160:161], v[162:163]")
    for k in range(2, 16): a(f"v_pk_add_f32 v[6:7], v[6:7], v[{160+2*k}:{161+2*k}]")
    a("v_add_f32 v6, v6, v7")
    def red_batch(v):
        dpp("v_add_f32", v, v, v, "quad_perm:[1,0,3,2]"); dpp("v_add_f32", v, v, v, "quad_perm:[2,3,0,1]")
        xrow("v_add_f32", v, 9)
    red_batch(6)
    a("v_mul_f32 v6, 0x3b000000, v6")
    a("v_mov_b32 v7, 0")
    for k in range(32): a(f"v_sub_f32 v{160+k}, v{160+k}, v6")
    for k in range(32): a(f"v_fmac_f32 v7, v{160+k}, v{160+k}")
    red_batch(7)
    a("v_mul_f32 v7, 0x3b000000, v7")
    rbf(6, 6); rbf(7, 7)
    a("v_add_f32 v7, 0x3727c5ac, v7"); rbf(7, 7)
    a("v_sqrt_f32 v7, v7"); rbf(7, 7)
    a("v_rcp_f32 v7, v7")
    vm(16)
    for k in range(8):
        a(f"v_lshlrev_b32 v8, 16, v{32+k}\nv_and_b32 v9, 0xffff0000, v{32+k}\nv_sub_f32 v8, v8, v6\nv_sub_f32 v9, v9, v6")
        a(f"v_cvt_pk_bf16_f32 v9, v8, v9\nv_lshlrev_b32 v8, 16, v9\nv_and_b32 v9, 0xffff0000, v9")
        a(f"v_mul_f32 v8, v8, v7\nv_mul_f32 v9, v9, v7\nv_cvt_pk_bf16_f32 v{32+k}, v8, v9")
    stamp(1)
    vm(8); transpose(64, 96)
    for t in range(8): mfma(192 + 4 * t, 32, 64 + 4 * t, None)
    vm(0); transpose(96, 128)
    for t in range(8): mfma(192 + 4 * t, 36, 96 + 4 * t, 192 + 4 * t)
    a("v_lshlrev_b32 v1, 13, v12\nv_lshl_add_u32 v1, v5, 5, v1\nv_bfe_u32 v2, v0, 3, 1\nv_lshl_add_u32 v1, v2, 4, v1")
    a(f"s_lshl_b32 s48, s28, 15\ns_lshl_b32 s49, s29, 11\ns_add_u32 s48, s48, s49\ns_lshl_b32 s49, s30, 8\ns_add_u32 s48, s48, s49")
    wait_flag(F_CLR, 1)
    fold_halves(16, lambda t: (192 + 4 * t, 193 + 4 * t))
    for v in range(4): a(f"v_min_u32 v{16+v}, -2, v{16+v}")
    a("buffer_store_dwordx4 v[16:19], v1, s[36:39], s48 offen sc1")
    stamp(2)
    a("s_branch L_TQK")

    a("L_T1:")
    a("v_lshlrev_b32 v1, 13, v12\nv_lshl_add_u32 v1, v13, 4, v1")
    a("v_lshlrev_b32 v2, 4, v0")
    a("s_lshl_b32 s48, s28, 15\ns_lshl_b32 s49, s29, 11\ns_add_u32 s48, s48, s49\ns_lshl_b32 s49, s30, 8\ns_add_u32 s48, s48, s49")
    a(f"s_lshl_b32 s49, s63, 13\ns_lshl_b32 s50, s30, 10\ns_add_u32 s49, s49, s50\ns_add_u32 s49, s49, {OP}")
    a(f"s_mul_i32 s50, s28, 7\ns_add_u32 s50, s50, s30\ns_lshl_b32 s50, s50, 10\ns_lshl_b32 s51, s29, 16\ns_add_u32 s51, s51, {DP}\ns_add_u32 s50, s50, s51")
    a(f"s_lshl_b32 s52, s28, 10\ns_add_u32 s51, s51, s52\ns_add_u32 s51, s51, {56*1024}\ns_lshl_b32 s52, s30, 7\ns_add_u32 s51, s51, s52")
    a(f"s_lshl_b32 s53, s63, 10\ns_add_u32 s52, s52, s53\ns_add_u32 s52, s52, {ST}")
    a("v_mov_b32 v16, -1\nv_mov_b32 v17, -1\nv_mov_b32 v18, -1\nv_mov_b32 v19, -1")
    a("s_waitcnt lgkmcnt(0)")
    srd(36, 26, WS_BYTES)
    a("buffer_store_dwordx4 v[16:19], v1, s[36:39], s48 offen sc1")
    a("buffer_store_dwordx4 v[16:19], v2, s[36:39], s49 offen sc1")
    a("s_mov_b64 exec, 0xff")
    a("buffer_store_dwordx4 v[16:19], v2, s[36:39], s51 offen sc1")
    a("buffer_store_dwordx4 v[16:19], v2, s[36:39], s52 offen sc1")
    a("s_mov_b64 exec, -1")
    a("s_cmp_eq_u32 s30, 7\ns_cbranch_scc1 L_T1a")
    a("buffer_store_dwordx4 v[16:19], v2, s[36:39], s50 offen sc1")
    a("L_T1a:")
    a("s_barrier")
    a("v_mov_b32 v3, s2\nv_mov_b32 v4, 1\nv_lshlrev_b32 v5, 2, v0")
    vm(0)
    a("s_mov_b64 exec, 1\nglobal_store_byte v3, v4, s[24:25] sc1\ns_mov_b64 exec, -1")
    set_flag(F_CLR, 1)
    stamp(1)
    a("s_mov_b32 s53, 0x01010101")
    a("L_T1f:")
    a(f"s_sleep {P['sl_flag']}")
    a("global_load_dword v6, v5, s[24:25] sc1")
    vm(0)
    a("v_cmp_ne_u32 vcc, s53, v6\ns_cbranch_vccz L_T1g")
    budget()
    a("s_branch L_T1f\nL_T1g:")
    stamp(2)
    a("s_lshl_b32 s48, s63, 13\ns_add_u32 s49, s48, 4096")
    poll([f"buffer_load_dwordx4 v[{16+4*k}:{19+4*k}], v2, s[36:39], s{48+(k>>2)} offen offset:{(k&3)*1024} sc1" for k in range(8)], range(16, 48), P["sl_q"])
    for h in range(2):
        for ks in range(1, 4):
            for z in range(2):
                r = 16 + 4 * h + 2 * z
                a(f"v_pk_add_f32 v[{r}:{r+1}], v[{r}:{r+1}], v[{r+8*ks}:{r+8*ks+1}]")
        a(f"v_cvt_pk_bf16_f32 v{6+2*h}, v{16+4*h}, v{17+4*h}\nv_cvt_pk_bf16_f32 v{7+2*h}, v{18+4*h}, v{19+4*h}")
    a(f"v_lshlrev_b32 v1, 3, v0\nv_add_u32 v1, {L_Q}, v1")
    a("ds_write_b64 v1, v[6:7]\nds_write_b64 v1, v[8:9] offset:512")
    set_flag(F_Q, 1)
    a("s_branch L_TQK")

    a("L_T2:")
    if P["pref"]:
        a("s_getpc_b64 s[48:49]\nL_pc:")
        a(f"s_sub_u32 s48, s48, L_pc-{KNAME}\ns_subb_u32 s49, s49, 0")
        a(f"s_mov_b32 s50, L_fin-{KNAME}-4")
        a("v_lshlrev_b32 v1, 7, v0")
        for k in range(2):
            a(f"v_add_u32 v2, {k*8192}, v1\nv_min_u32 v2, s50, v2\nglobal_load_dword v{16+k}, v2, s[48:49]")
    a("s_barrier")
    a("s_waitcnt vmcnt(0) lgkmcnt(0)")
    srd(36, 26, WS_BYTES)

    a("L_TQK:")
    a(f"v_and_b32 v1, 3, v0\nv_lshlrev_b32 v1, 8, v1\nv_lshl_add_u32 v1, v12, 4, v1\nv_add_u32 v1, {L_Q}, v1")
    a("v_and_b32 v2, 3, v0\nv_lshlrev_b32 v2, 2, v2\nv_lshrrev_b32 v3, 2, v13\nv_add_u32 v2, v2, v3\nv_lshlrev_b32 v2, 8, v2")
    a("s_lshl_b32 s48, s31, 15\nv_add_u32 v2, s48, v2")
    for m in range(4):
        a(f"v_add_u32 v3, {4*m}, v12\nv_xor_b32 v3, v3, v13\nv_lshl_add_u32 v{4+m}, v3, 4, v2")
    wait_flag(F_Q, 1)
    stamp(3)
    for m in range(4): a(f"ds_read_b128 v[{16+4*m}:{19+4*m}], v1 offset:{64*m}")
    a("s_add_u32 s48, s31, 1\ns_lshl_b32 s48, s48, 3")
    wait_flag(F_K, "s48")
    stamp(4)
    def kread(tau):
        for m in range(4):
            r = 96 + 16 * tau + 4 * m
            a(f"ds_read_b128 v[{r}:{r+3}], v{4+m} offset:{4096*tau}")
    kread(0); kread(1)
    for tau in range(8):
        if tau + 2 < 8: kread(tau + 2)
        lgkm(8 if tau < 6 else 4 if tau == 6 else 0)
        for m in range(4): mfma(32 + 4 * tau, 96 + 16 * tau + 4 * m, 16 + 4 * m, None if m == 0 else 32 + 4 * tau)
    for q in range(1, 4):
        for k in range(8): dpp("v_mov_b32", 32 + k, 32 + 8 * q + k, None, "quad_perm:[0,1,2,3]", hex(1 << q))
    a("s_mov_b32 s50, 0x3db504f3\ns_mov_b32 s51, 0x3fb8aa3b")
    for k in range(0, 8, 2):
        x, y = 32 + k, 33 + k
        a(f"v_cvt_pk_bf16_f32 v{y}, v{x}, v{y}\nv_lshlrev_b32 v{x}, 16, v{y}\nv_and_b32 v{y}, 0xffff0000, v{y}")
        a(f"v_mul_f32 v{x}, s50, v{x}\nv_mul_f32 v{y}, s50, v{y}")
        a(f"v_cvt_pk_bf16_f32 v{y}, v{x}, v{y}\nv_lshlrev_b32 v{x}, 16, v{y}\nv_and_b32 v{y}, 0xffff0000, v{y}")
    a("v_max3_f32 v8, v32, v33, v34\nv_max3_f32 v8, v8, v35, v36\nv_max3_f32 v8, v8, v37, v38\nv_max_f32 v8, v8, v39")
    def red_head(op, v):
        dpp(op, v, v, v, "row_ror:4"); dpp(op, v, v, v, "row_ror:8"); xrow(op, v, 10)
    red_head("v_max_f32", 8)
    for k in range(8): a(f"v_sub_f32 v{40+k}, v{32+k}, v8")
    for k in range(8): a(f"v_mul_f32 v{40+k}, s51, v{40+k}")
    for k in range(8): a(f"v_exp_f32 v{40+k}, v{40+k}")
    a("v_add_f32 v9, v40, v41")
    for k in range(2, 8): a(f"v_add_f32 v9, v9, v{40+k}")
    red_head("v_add_f32", 9)
    a(f"s_lshl_b32 s48, s63, 10\ns_add_u32 s48, s48, {ST}")
    a("s_lshl_b32 s49, s30, 7\ns_lshr_b32 s52, s31, 1\ns_lshl_b32 s52, s52, 6\ns_add_u32 s49, s49, s52\ns_and_b32 s52, s31, 1\ns_lshl_b32 s52, s52, 3\ns_add_u32 s49, s49, s52\ns_add_u32 s49, s49, s48")
    a("v_lshlrev_b32 v2, 4, v0\nv_min_u32 v8, -2, v8\nv_min_u32 v9, -2, v9")
    a("s_mov_b64 exec, 15\nbuffer_store_dwordx2 v[8:9], v2, s[36:39], s49 offen sc1\ns_mov_b64 exec, -1")
    stamp(5)
    if P["sl_st"]: a(f"s_sleep {P['sl_st']}")
    poll(["buffer_load_dwordx4 v[16:19], v2, s[36:39], s48 offen sc1"], range(16, 20), P["sl_st"])
    stamp(6)
    a("v_max_f32 v8, v16, v18")
    red_head("v_max_f32", 8)
    a("v_sub_f32 v16, v16, v8\nv_sub_f32 v18, v18, v8\nv_mul_f32 v16, s51, v16\nv_mul_f32 v18, s51, v18\nv_exp_f32 v16, v16\nv_exp_f32 v18, v18")
    for k in range(8): a(f"v_sub_f32 v{40+k}, v{32+k}, v8")
    a("v_mul_f32 v9, v16, v17\nv_fmac_f32 v9, v18, v19")
    red_head("v_add_f32", 9)
    a("v_rcp_f32 v9, v9")
    for k in range(8): a(f"v_mul_f32 v{40+k}, s51, v{40+k}")
    for k in range(8): a(f"v_exp_f32 v{40+k}, v{40+k}")
    for k in range(8): a(f"v_mul_f32 v{40+k}, v9, v{40+k}")
    for k in range(4): a(f"v_cvt_pk_bf16_f32 v{16+k}, v{40+2*k}, v{41+2*k}")
    a(f"s_lshl_b32 s48, s31, 10\ns_add_u32 s48, s48, {L_P}\nv_add_u32 v3, s48, v2\nds_write_b128 v3, v[16:19]")
    a("s_lshl_b32 s48, s31, 2\nv_add_u32 v3, s48, v14")
    set_flag(F_P, 1, addr="v3")
    stamp(7)

    srd(40, 12, 0x400000)
    a("s_mov_b32 s44, s4\ns_mov_b32 s45, s5\ns_cmp_eq_u32 s28, 0\ns_cselect_b32 s46, 4096, 0\ns_mov_b32 s47, 0x20000")
    a("v_bfe_u32 v4, v0, 3, 1\nv_lshl_add_u32 v4, v4, 2, v12\nv_lshlrev_b32 v4, 13, v4\nv_and_b32 v5, 7, v0\nv_lshl_add_u32 v4, v5, 4, v4")
    a("s_lshl_b32 s48, s28, 19\ns_lshl_b32 s49, s31, 11\ns_add_u32 s48, s48, s49\ns_lshl_b32 s49, s30, 7\ns_add_u32 s48, s48, s49")
    a("s_lshl_b32 s50, s29, 10\ns_add_u32 s50, s50, s49")
    a("v_lshrrev_b32 v6, 2, v0\nv_lshlrev_b32 v6, 3, v6")
    if not P["wo_early"]: wait_flag(F_TURN, 5)
    a("buffer_load_dwordx2 v[24:25], v6, s[44:47], s50 offen")
    for u in range(2):
        for q in range(4):
            a(f"s_add_u32 s49, s48, {u*65536 + q*131072}")
            for z in range(2):
                r = 96 + 32 * u + 4 * (4 * z + q)
                a(f"buffer_load_dwordx4 v[{r}:{r+3}], v4, s[40:43], s49 offen offset:{z*1024}{P['ntw']}")
    add_flag(F_W2)
    stamp(8)
    a("v_lshrrev_b32 v1, 1, v13\nv_lshlrev_b32 v1, 10, v1\nv_and_b32 v2, 1, v0\nv_lshl_add_u32 v2, v2, 2, v12\nv_lshl_add_u32 v1, v2, 4, v1")
    a(f"s_lshl_b32 s48, s63, 13\ns_lshl_b32 s49, s31, 8\ns_add_u32 s48, s48, s49\ns_add_u32 s48, s48, {OP}")
    a(f"v_mul_u32_u24 v2, 320, v12\nv_lshl_add_u32 v2, v13, 4, v2\ns_mul_i32 s49, s31, 1280\ns_add_u32 s49, s49, {L_RED}\nv_add_u32 v2, s49, v2")
    a(f"v_and_b32 v3, 3, v0\nv_mul_u32_u24 v3, 320, v3\nv_bfe_u32 v7, v0, 2, 1\nv_lshl_add_u32 v3, v7, 7, v3\nv_lshrrev_b32 v7, 3, v0\nv_lshl_add_u32 v3, v7, 4, v3\nv_add_u32 v3, {L_RED}, v3")
    a(f"s_lshl_b32 s52, s29, 16\ns_add_u32 s52, s52, {DP}")
    a(f"s_lshl_b32 s51, s28, 10\ns_add_u32 s51, s51, s52\ns_add_u32 s51, s51, {56*1024}\ns_lshl_b32 s49, s30, 7\ns_add_u32 s51, s51, s49")
    vm(8)
    a("v_lshlrev_b32 v28, 16, v24\nv_and_b32 v29, 0xffff0000, v24\nv_lshlrev_b32 v30, 16, v25\nv_and_b32 v31, 0xffff0000, v25")
    transpose(64, 96)
    vm(0); transpose(96, 128)
    stamp(9)
    wait_flag(F_O, 1)
    poll([f"buffer_load_dwordx4 v[{16+4*u}:{19+4*u}], v1, s[36:39], s48 offen offset:{128*u} sc1" for u in range(2)], range(16, 24), P["sl_h1"])
    stamp(10)
    def gemv64(D, A, B0, B1, tmp, res):
        for t in range(8):
            mfma(D + 4 * t, A, B0 + 4 * t, None); mfma(D + 4 * t, A + 4, B1 + 4 * t, D + 4 * t)
            if t >= 4: a(f"v_pk_add_f32 v[{tmp+2*(t-4)}:{tmp+2*(t-4)+1}], v[{D+4*(t-4)}:{D+4*(t-4)+1}], v[{D+4*(t-4)+2}:{D+4*(t-4)+3}]")
        for v in range(4): dpp("v_add_f32", res + v, tmp + 2 * v + 1, tmp + 2 * v, "row_ror:8", "0x3")
        for t in range(4, 8): a(f"v_pk_add_f32 v[{tmp+2*t}:{tmp+2*t+1}], v[{D+4*t}:{D+4*t+1}], v[{D+4*t+2}:{D+4*t+3}]")
        for v in range(4): dpp("v_add_f32", res + v, tmp + 2 * (v + 4), tmp + 2 * (v + 4) + 1, "row_ror:8", "0xc")
    gemv64(32, 16, 64, 96, 160, 8)
    a("ds_write_b128 v2, v[8:11]")
    a(f"s_mov_b64 exec, 1\nv_mov_b32 v15, 1\nds_add_rtn_u32 v15, v14, v15 offset:{F_WO}\ns_mov_b64 exec, -1")
    a("s_waitcnt lgkmcnt(0)\nv_readfirstlane_b32 s33, v15\ns_cmp_lg_u32 s33, 3\ns_cbranch_scc1 L_Tpub")
    for k in range(4): a(f"ds_read_b128 v[{32+4*k}:{35+4*k}], v3 offset:{1280*k}")
    lgkm(2)
    a("v_pk_add_f32 v[32:33], v[32:33], v[36:37]\nv_pk_add_f32 v[34:35], v[34:35], v[38:39]")
    lgkm(0)
    a("v_pk_add_f32 v[40:41], v[40:41], v[44:45]\nv_pk_add_f32 v[42:43], v[42:43], v[46:47]")
    a("v_pk_add_f32 v[32:33], v[32:33], v[40:41]\nv_pk_add_f32 v[34:35], v[34:35], v[42:43]")
    for ctl in ("quad_perm:[1,0,3,2]", "quad_perm:[2,3,0,1]"):
        for v in range(4): dpp("v_add_f32", 32 + v, 32 + v, 32 + v, ctl)
    a("v_pk_add_f32 v[32:33], v[32:33], v[28:29]\nv_pk_add_f32 v[34:35], v[34:35], v[30:31]")
    a("v_cvt_pk_bf16_f32 v36, v32, v33\nv_cvt_pk_bf16_f32 v37, v34, v35\nv_min_u32 v36, -2, v36\nv_min_u32 v37, -2, v37")
    dpp("v_mov_b32", 38, 36, None, "row_shl:4"); dpp("v_mov_b32", 39, 37, None, "row_shl:4")
    a("s_mov_b32 exec_lo, 0x01010101\ns_mov_b32 exec_hi, 0x01010101")
    a("buffer_store_dwordx4 v[36:39], v6, s[36:39], s51 offen sc1")
    a("s_mov_b64 exec, -1")
    a("L_Tpub:")
    stamp(11)
    a("s_cmp_eq_u32 s30, 7\ns_cbranch_scc1 L_exit")

    srd(40, 22, 4096)
    a("v_lshlrev_b32 v1, 10, v0\nv_lshlrev_b32 v2, 1, v0")
    a("s_lshl_b32 s48, s30, 1\ns_add_u32 s48, s48, s31\ns_lshl_b32 s48, s48, 4\ns_lshl_b32 s49, s28, 7\ns_add_u32 s48, s48, s49")
    a("s_add_u32 s49, s48, s52\ns_lshl_b32 s50, s29, 10\ns_add_u32 s50, s50, s48")
    a("v_lshrrev_b32 v3, 1, v13\nv_and_b32 v4, 1, v0\nv_lshlrev_b32 v4, 4, v4\ns_mov_b32 s53, 0x3f80\nv_lshlrev_b32 v4, v4, s53")
    for k in range(4): a(f"v_cmp_eq_u32 vcc, {k}, v3\nv_cndmask_b32 v{20+k}, 0, v4, vcc")
    a("s_barrier")
    a("s_cmp_ge_u32 s30, 4\ns_cbranch_scc1 L_exit\ns_cmp_ge_u32 s31, 2\ns_cbranch_scc1 L_exit")
    if P["pre3"]: a(f"s_sleep {P['pre3']}")
    poll(["buffer_load_dwordx4 v[16:19], v1, s[36:39], s49 offen sc1"], range(16, 20), P["sl_h3"])
    stamp(12)
    mfma(24, 16, 20, None)
    a("v_pk_add_f32 v[24:25], v[24:25], v[26:27]\nv_add_f32 v24, v24, v25")
    xrow("v_add_f32", 24, 25)
    a("v_cvt_pk_bf16_f32 v24, v24, v24")
    a("s_mov_b64 exec, 0xff\nbuffer_store_short v24, v2, s[40:43], s50 offen\ns_mov_b64 exec, -1")
    stamp(13)
    a("s_branch L_exit")

    a("L_S:")
    a("s_cmp_lg_u32 s3, 7\ns_cbranch_scc1 L_S0")
    a("v_lshl_add_u32 v1, v0, 2, v14\nv_mov_b32 v2, 0\nds_write_b32 v1, v2")
    a("L_S0:")
    a("s_waitcnt lgkmcnt(0)\ns_barrier")
    srd(40, 8, 0x8000000); srd(36, 26, WS_BYTES)
    a("v_lshlrev_b32 v1, 4, v0")
    a(f"s_mul_i32 s48, s31, {P['SJ']}\ns_add_u32 s48, s48, s60")
    for tau in range(8):
        a(f"s_add_u32 s49, s62, {tau}\ns_and_b32 s49, s49, 7\ns_lshl_b32 s49, s49, 12\ns_add_u32 s{52+tau}, s49, s48")
    a(f"v_and_b32 v2, 3, v0\nv_lshl_add_u32 v2, v12, 4, v2\nv_lshlrev_b32 v2, 4, v2\ns_lshl_b32 s49, s31, 10\ns_add_u32 s49, s49, {L_P}\nv_add_u32 v2, s49, v2")
    a(f"v_lshlrev_b32 v3, 4, v13\nv_add_u32 v3, {L_DEP}, v3\ns_lshl_b32 s49, s31, 11\nv_add_u32 v4, s49, v3")
    a("s_lshl_b32 s49, s31, 2\nv_add_u32 v5, s49, v14")
    a("s_add_u32 s50, s31, 1")
    wait_flag(F_TURN, "s50")
    stamp(1)
    for tau in range(8):
        if 4 * tau > P["thrV"]: vm(P["thrV"])
        for q in range(4):
            r = 96 + 16 * tau + 4 * q
            a(f"buffer_load_dwordx4 v[{r}:{r+3}], v1, s[40:43], s{52+tau} offen offset:{q*1024} nt")
    a("s_add_u32 s50, s31, 2")
    set_flag(F_TURN, "s50")
    stamp(2)
    a("s_cmp_eq_u32 s31, 3\ns_cbranch_scc1 L_S3")
    for q in range(4):
        vm(24 - 8 * q); transpose(64 + 32 * q, 96 + 32 * q)
    stamp(3)
    wait_flag(F_P, 1, addr="v5")
    for q in range(4): a(f"ds_read_b128 v[{16+4*q}:{19+4*q}], v2 offset:{64*q}")
    lgkm(0)
    for q in range(4):
        for t in range(8): mfma(32 + 4 * t, 16 + 4 * q, 64 + 32 * q + 4 * t, None if q == 0 else 32 + 4 * t)
    a("s_mov_b64 exec, 0xffff")
    for t in range(8): a(f"ds_write_b128 v4, v[{32+4*t}:{35+4*t}] offset:{256*t}")
    add_flag(F_DEP)
    stamp(4)
    a("s_cmp_eq_u32 s30, 7\ns_cbranch_scc1 L_exit")
    wait_flag(F_W2, 4)
    a("s_branch L_F")

    a("L_S3:")
    a(f"s_lshl_b32 s48, s63, 13\ns_lshl_b32 s49, s30, 10\ns_add_u32 s48, s48, s49\ns_add_u32 s48, s48, {OP}")
    vm(24); transpose(64, 96)
    wait_flag(F_P, 1, addr="v5")
    for q in range(4): a(f"ds_read_b128 v[{16+4*q}:{19+4*q}], v2 offset:{64*q}")
    wait_flag(F_DEP, 3)
    stamp(3)
    for t in range(8): a(f"ds_read_b128 v[{32+4*t}:{35+4*t}], v3 offset:{256*t}")
    for k in (1, 2):
        lgkm(0)
        for t in range(8): a(f"ds_read_b128 v[{224+4*t}:{227+4*t}], v3 offset:{2048*k+256*t}")
        for t in range(8):
            lgkm(7 - t)
            for z in (0, 2): a(f"v_pk_add_f32 v[{32+4*t+z}:{33+4*t+z}], v[{32+4*t+z}:{33+4*t+z}], v[{224+4*t+z}:{225+4*t+z}]")
    for q in range(4):
        if q in (1, 2): vm(24 - 8 * q); transpose(64 + 32 * q, 96 + 32 * q)
        if q == 3:
            for p in range(4):
                vm(6 - 2 * p); transpose(160, 192, [p])
            stamp(4)
        for t in range(8): mfma(32 + 4 * t, 16 + 4 * q, 64 + 32 * q + 4 * t, 32 + 4 * t)
    for q in range(4):
        lo, hi = (0xffff << (16 * q)) & 0xffffffff, (0xffff << (16 * q)) >> 32
        a(f"s_mov_b32 exec_lo, {hex(lo)}\ns_mov_b32 exec_hi, {hex(hi)}")
        for k in range(4): a(f"v_cvt_pk_bf16_f32 v{8+k}, v{32+8*q+2*k}, v{33+8*q+2*k}")
    a("s_mov_b64 exec, -1")
    for k in range(4): a(f"v_min_u32 v{8+k}, -2, v{8+k}")
    a(f"buffer_store_dwordx4 v[8:11], v1, s[36:39], s48 offen{P['st1']}")
    set_flag(F_O, 1)
    stamp(5)
    a("s_cmp_eq_u32 s30, 7\ns_cbranch_scc1 L_exit")

    a("L_F:")
    a("s_mul_i32 s48, s28, 7\ns_add_u32 s48, s48, s30")
    a("v_bfe_u32 v4, v0, 3, 1\nv_lshl_add_u32 v4, v4, 2, v12\nv_mul_u32_u24 v4, 28672, v4\nv_and_b32 v5, 3, v0\nv_lshl_add_u32 v4, v5, 4, v4")
    a(f"s_mul_i32 s49, s31, {128*3584}\ns_lshl_b32 s50, s48, 6\ns_add_u32 s49, s49, s50\nv_add_u32 v4, s49, v4\nv_mov_b32 v5, 0")
    a("v_lshl_add_u64 v[6:7], v[4:5], 0, s[16:17]")
    a("s_mov_b32 exec_lo, 0xf0f0f0f0\ns_mov_b32 exec_hi, 0xf0f0f0f0\nv_lshl_add_u64 v[6:7], v[4:5], 0, s[18:19]\ns_mov_b64 exec, -1")
    a(f"s_mov_b32 s50, 7168\ns_mov_b32 s51, 0\ns_mov_b32 s56, {58*3584}\ns_mov_b32 s57, 0")
    srd(40, 20, 1792 * 1024)
    a("v_lshlrev_b32 v4, 13, v12\nv_lshl_add_u32 v4, v13, 4, v4")
    a("s_lshl_b32 s49, s48, 15\ns_lshl_b32 s53, s31, 8\ns_add_u32 s49, s49, s53\ns_add_u32 s54, s49, 4096")
    for u in range(2):
        for jp in range(4):
            for z in range(2):
                r = 96 + 32 * u + 4 * (2 * jp + z)
                a(f"global_load_dwordx4 v[{r}:{r+3}], v[6:7], off offset:{3584*z}{P['ntw']}")
            if not (u == 1 and jp == 3): a(f"v_lshl_add_u64 v[6:7], v[6:7], 0, s[{50 if jp < 3 else 56}:{51 if jp < 3 else 57}]")
    for jj in range(8):
        r = 160 + 4 * jj
        a(f"buffer_load_dwordx4 v[{r}:{r+3}], v4, s[40:43], s{49 if jj < 4 else 54} offen offset:{(jj&3)*1024}{P['ntw']}")
    stamp(6)
    a("v_lshrrev_b32 v1, 1, v13\nv_lshlrev_b32 v1, 10, v1\nv_and_b32 v2, 1, v0\nv_lshl_add_u32 v2, v2, 2, v12\nv_lshl_add_u32 v1, v2, 4, v1")
    a(f"s_lshl_b32 s52, s29, 16\ns_add_u32 s52, s52, {DP}\ns_add_u32 s52, s52, s53\ns_add_u32 s55, s52, {56*1024}")
    a("s_lshl_b32 s48, s48, 10\ns_add_u32 s52, s52, s48")
    a(f"v_mul_u32_u24 v2, 320, v12\nv_lshl_add_u32 v2, v13, 4, v2\ns_mul_i32 s49, s31, 1280\ns_add_u32 s49, s49, {L_RED2}\nv_add_u32 v2, s49, v2")
    a("v_and_b32 v3, 3, v0\nv_mul_u32_u24 v3, 320, v3\nv_bfe_u32 v7, v0, 2, 1\nv_lshl_add_u32 v3, v7, 7, v3\nv_bfe_u32 v7, v0, 3, 1\nv_lshl_add_u32 v7, v7, 2, v12\nv_lshl_add_u32 v3, v7, 4, v3")
    a(f"v_add_u32 v3, {L_RED2}, v3")
    a(f"s_mul_i32 s49, s31, 320\ns_add_u32 s49, s49, {L_CS}\nv_lshl_add_u32 v5, v13, 4, s49")
    a(f"v_lshrrev_b32 v6, 5, v0\nv_lshlrev_b32 v6, 4, v6\ns_lshl_b32 s49, s31, 2\ns_add_u32 s49, s49, {L_STAT}\nv_add_u32 v6, s49, v6\nv_mov_b32 v7, {L_STAT}")
    a("v_lshlrev_b32 v4, 4, v0")
    for k in range(4): a(f"v_mov_b32 v{24+k}, 0x3f803f80")
    vm(16); transpose(64, 96)
    for t in range(8): mfma(32 + 4 * t, 24, 64 + 4 * t, None)
    vm(8); transpose(96, 128)
    for t in range(8): mfma(32 + 4 * t, 24, 96 + 4 * t, 32 + 4 * t)
    vm(0); transpose(128, 160)
    fold_halves(8, lambda t: (32 + 4 * t, 32 + 4 * t))
    a("s_mov_b64 exec, 0xffff\nds_write_b128 v5, v[8:11]\ns_mov_b64 exec, -1")
    stamp(7)
    wait_flag(F_WO, 4)
    poll([f"buffer_load_dwordx4 v[{16+4*u}:{19+4*u}], v1, s[36:39], s55 offen offset:{128*u} sc1" for u in range(2)], range(16, 24), P["sl_h2"])
    stamp(8)
    mfma(192, 16, 16, None); mfma(192, 20, 20, 192)
    mfma(196, 16, 24, None); mfma(196, 20, 24, 196)
    gemv64(32, 16, 64, 96, 160, 8)
    a("ds_write_b128 v2, v[8:11]")
    a("v_pk_add_f32 v[192:193], v[192:193], v[194:195]\nv_pk_add_f32 v[196:197], v[196:197], v[198:199]")
    dpp("v_add_f32", 192, 193, 192, "quad_perm:[1,0,3,2]")
    a("v_add_f32 v196, v196, v197")
    for ctl in ("quad_perm:[2,3,0,1]", "row_ror:4", "row_ror:8"): dpp("v_add_f32", 192, 192, 192, ctl)
    a("v_permlane32_swap_b32 v192, v196\nv_add_f32 v192, v192, v196\nv_mov_b32 v193, v192\nv_permlane16_swap_b32 v192, v193\nv_add_f32 v192, v192, v193")
    a("s_mov_b32 exec_lo, 1\ns_mov_b32 exec_hi, 1\nds_write_b32 v6, v192\ns_mov_b64 exec, -1")
    a("s_waitcnt lgkmcnt(0)\ns_barrier")
    stamp(9)
    a("ds_read_b128 v[48:51], v7\nds_read_b128 v[52:55], v7 offset:16")
    for k in range(4): a(f"ds_read_b128 v[{32+4*k}:{35+4*k}], v3 offset:{1280*k}")
    a(f"ds_read_b128 v[56:59], v3 offset:{L_CS-L_RED2}")
    lgkm(5)
    a("v_pk_add_f32 v[48:49], v[48:49], v[50:51]\nv_pk_add_f32 v[52:53], v[52:53], v[54:55]")
    a("v_add_f32 v48, v48, v49\nv_add_f32 v52, v52, v53")
    a("v_mul_f32 v52, 0x3b000000, v52\nv_mul_f32 v48, 0x3b000000, v48")
    a("v_fma_f32 v48, -v52, v52, v48\nv_max_f32 v48, 0, v48\nv_add_f32 v48, 0x3727c5ac, v48\nv_rsq_f32 v48, v48")
    lgkm(3)
    a("v_pk_add_f32 v[32:33], v[32:33], v[36:37]\nv_pk_add_f32 v[34:35], v[34:35], v[38:39]")
    lgkm(1)
    a("v_pk_add_f32 v[40:41], v[40:41], v[44:45]\nv_pk_add_f32 v[42:43], v[42:43], v[46:47]")
    a("v_pk_add_f32 v[32:33], v[32:33], v[40:41]\nv_pk_add_f32 v[34:35], v[34:35], v[42:43]")
    lgkm(0)
    for v in range(4): a(f"v_fma_f32 v{32+v}, -v52, v{56+v}, v{32+v}")
    for ctl in ("quad_perm:[1,0,3,2]", "quad_perm:[2,3,0,1]"):
        for v in range(4): dpp("v_add_f32", 32 + v, 32 + v, 32 + v, ctl)
    for v in range(4): a(f"v_mul_f32 v{32+v}, v48, v{32+v}")
    for v in range(4): a(f"v_mul_f32 v{36+v}, 0xbfb8aa3b, v{32+v}")
    for v in range(4): a(f"v_exp_f32 v{36+v}, v{36+v}")
    for v in range(4): a(f"v_add_f32 v{36+v}, 1.0, v{36+v}")
    for v in range(4): a(f"v_rcp_f32 v{36+v}, v{36+v}")
    for v in range(4): a(f"v_mul_f32 v{36+v}, v{32+v}, v{36+v}")
    for v in range(4): dpp("v_mul_f32", 36 + v, 32 + v, 36 + v, "row_ror:8")
    a("v_cvt_pk_bf16_f32 v16, v36, v37\nv_cvt_pk_bf16_f32 v17, v38, v39")
    dpp("v_mov_b32", 18, 16, None, "row_shl:4"); dpp("v_mov_b32", 19, 17, None, "row_shl:4")
    for t in range(8): mfma(192 + 4 * t, 16, 128 + 4 * t, None)
    for k in range(4): a(f"v_cvt_pk_bf16_f32 v{8+k}, v{192+8*k}, v{196+8*k}\nv_min_u32 v{8+k}, -2, v{8+k}")
    a("s_mov_b64 exec, 0xffff\nbuffer_store_dwordx4 v[8:11], v4, s[36:39], s52 offen sc1\ns_mov_b64 exec, -1")
    stamp(10)

    a("L_exit:")
    if dbg:
        stamp(15)
        a("s_mov_b64 exec, -1\ns_waitcnt lgkmcnt(0)")
        a(f"s_lshl_b32 s48, s2, 3\ns_add_u32 s48, s48, s3\ns_lshl_b32 s48, s48, 6\ns_add_u32 s48, s48, {STAMP}\ns_add_u32 s26, s26, s48\ns_addc_u32 s27, s27, 0")
        for k in range(16): a(f"v_mov_b32 v{16+k}, s{64+2*k}")
        a("v_mov_b32 v1, 0\ns_mov_b64 exec, 1")
        for k in range(4): a(f"global_store_dwordx4 v1, v[{16+4*k}:{19+4*k}], s[26:27] offset:{16*k}")
    a("L_end:\ns_endpgm\nL_fin:")

    head = open("sequential_preLN__sliding_block_cached__swiglu_ffn__decode.s.ref").read().split("; Override launch")[0] if P.get("hdr", 1) else ""
    return head + f"""; @launch grid=(256,1,1) block=(512,1,1) lds={LDS_BYTES}
.amdgcn_target "amdgcn-amd-amdhsa--gfx950"
.text
.globl {KNAME}
.p2align 8
.type {KNAME},@function
""" + a.padded() + f""".section .rodata,"a"
.p2align 6
.amdhsa_kernel {KNAME}
  .amdhsa_next_free_vgpr 256
  .amdhsa_next_free_sgpr 102
  .amdhsa_accum_offset 256
  .amdhsa_group_segment_fixed_size 0
  .amdhsa_kernarg_size 96
  .amdhsa_user_sgpr_count 2
  .amdhsa_user_sgpr_kernarg_segment_ptr 1
  .amdhsa_system_sgpr_workgroup_id_x 1
  .amdhsa_float_denorm_mode_32 3
.end_amdhsa_kernel
"""

if __name__ == "__main__":
    out = sys.argv[1]
    kw = {}
    for x in sys.argv[2:]:
        k, v = x.split("=", 1)
        try: kw[k] = int(v, 0)
        except ValueError: kw[k] = (" " + v.replace("+", " ")) if v else ""
    open(out, "w").write(gen(**kw))
```

```python
import sys
from asmlib import Asm
KNAME = "sequential_preLN__sliding_block_cached__swiglu_ffn__decode_kernel"

QP, OP, DP, ST = 0x00000, 0x40000, 0x80000, 0xC0000
WS_BYTES = 0xC8000
STAMP = 0x10000000
L_Q, L_P, L_DEP, L_RED, L_RED2, L_CS, L_STAT, L_FLAG = 131072, 132096, 136192, 142336, 147456, 152576, 153856, 154112
L_M = L_STAT + 64
LDS_BYTES = 154624
F_TURN, F_K, F_Q, F_GO, F_DEP, F_QP, F_O, F_P, F_M = 0, 4, 8, 12, 16, 20, 24, 32, 48

DEF = dict(dbg=0, thrK=20, thrV=20, thrW=4, burst=6, SS=131072, SJ=32768, rot=1, ntw=" nt", ntq=" nt", st1=" sc1",
           sl_lds=1, sl_flag=8, sl_q=4, pre_q=8, sl_st=4, sl_h1=0, sl_h2=0, sl_h3=0, pre1=0, pre2=0, pre3=0, pref=1,
           wo_gate=4, dn_late=0, st_turn=5)

def gen(**kw):
    P = dict(DEF); P.update(kw)
    dbg = P["dbg"]
    a = Asm()
    uid = [0]
    def L(s):
        uid[0] += 1
        return f"L_{s}_{uid[0]}"
    def stamp(k):
        if dbg: a(f"s_memrealtime s[{64+2*k}:{65+2*k}]")
    def lgkm(n=0): a(f"s_waitcnt lgkmcnt({0 if dbg else n})")
    def vm(n): a(f"s_waitcnt vmcnt({n})")
    def srd(d, p, nbytes):
        a(f"s_mov_b32 s{d}, s{p}\ns_mov_b32 s{d+1}, s{p+1}\ns_mov_b32 s{d+2}, {hex(nbytes)}\ns_mov_b32 s{d+3}, 0x20000")
    def budget(): a("s_sub_u32 s32, s32, 1\ns_cbranch_scc1 L_exit")
    def nap(n):
        if n: a(f"s_sleep {n}")
    def wait_flag(off, val, addr="v14", sl=None):
        l, d = L("wf"), L("wfd")
        a(f"{l}:\nds_read_b32 v15, {addr} offset:{off}")
        a("s_waitcnt lgkmcnt(0)\nv_readfirstlane_b32 s33, v15")
        a(f"s_cmp_ge_u32 s33, {val}\ns_cbranch_scc1 {d}")
        nap(P["sl_lds"] if sl is None else sl)
        budget()
        a(f"s_branch {l}\n{d}:")
    def set_flag(off, val, addr="v14"):
        a(f"v_mov_b32 v15, {val}\nds_write_b32 {addr}, v15 offset:{off}")
    def add_flag(off):
        a(f"s_mov_b64 exec, 1\nv_mov_b32 v15, 1\nds_add_u32 v14, v15 offset:{off}\ns_mov_b64 exec, -1")
    def poll(loads, regs, sleep):
        l, d = L("pl"), L("pld")
        a(f"{l}:")
        for x in loads: a(x)
        vm(0)
        rs = list(regs)
        a(f"v_max_u32 v15, v{rs[0]}, v{rs[1]}")
        for i in range(2, len(rs), 2): a(f"v_max3_u32 v15, v15, v{rs[i]}, v{rs[i+1]}")
        a(f"v_cmp_eq_u32 vcc, -1, v15\ns_cbranch_vccz {d}")
        nap(sleep)
        budget()
        a(f"s_branch {l}\n{d}:")
    def transpose(dst, src, ps=range(4)):
        for p in ps:
            for d in range(4):
                for e in range(2):
                    a(f"v_perm_b32 v{dst+4*(2*d+e)+p}, v{src+4*(2*p+1)+d}, v{src+8*p+d}, s{34+e}")
    def mfma(d, A, B, c):
        cc = "0" if c is None else f"v[{c}:{c+3}]"
        a(f"v_mfma_f32_16x16x32_bf16 v[{d}:{d+3}], v[{A}:{A+3}], v[{B}:{B+3}], {cc}")
    def dpp(op, d, s0, s1, ctl, bank="0xf"):
        a(f"{op}_dpp v{d}, v{s0}" + (f", v{s1}" if s1 is not None else "") + f" {ctl} row_mask:0xf bank_mask:{bank}")
    def xrow(op, v, t):
        a(f"v_mov_b32 v{t}, v{v}\nv_permlane16_swap_b32 v{v}, v{t}\n{op} v{v}, v{v}, v{t}")
        a(f"v_mov_b32 v{t}, v{v}\nv_permlane32_swap_b32 v{v}, v{t}\n{op} v{v}, v{v}, v{t}")
    def rbf(d, s):
        a(f"v_cvt_pk_bf16_f32 v{d}, v{s}, v{s}\nv_and_b32 v{d}, 0xffff0000, v{d}")
    def fold(res, t, x, y):
        if t < 4: dpp("v_add_f32", res + t, y, x, "row_ror:8", "0x3")
        else: dpp("v_add_f32", res + t - 4, x, y, "row_ror:8", "0xc")
    def red_head(op, v):
        dpp(op, v, v, v, "row_ror:4"); dpp(op, v, v, v, "row_ror:8"); xrow(op, v, 10)

    a(f"{KNAME}:")
    if dbg:
        for k in range(66, 96, 2): a(f"s_mov_b64 s[{k}:{k+1}], 0")
    stamp(0)
    a("s_load_dwordx16 s[4:19], s[0:1], 0\ns_load_dwordx8 s[20:27], s[0:1], 64")
    a("s_cmp_ge_u32 s2, 256\ns_cbranch_scc1 L_end")
    a("v_lshrrev_b32 v1, 6, v0\nv_and_b32 v0, 63, v0\nv_readfirstlane_b32 s3, v1")
    a("s_and_b32 s28, s2, 7\ns_bfe_u32 s29, s2, 0x20003\ns_lshr_b32 s30, s2, 5")
    a("s_mov_b32 s32, 0x8000\ns_mov_b32 s34, 0x05040100\ns_mov_b32 s35, 0x07060302")
    a(f"v_mov_b32 v14, {L_FLAG}")
    a("v_lshrrev_b32 v12, 4, v0\nv_and_b32 v13, 15, v0")
    a("s_and_b32 s31, s3, 3")
    a("s_lshl_b32 s60, s29, 3\ns_add_u32 s60, s60, s28\ns_lshl_b32 s60, s60, 22")
    a(f"s_mul_i32 s61, s30, {P['SS']}\ns_add_u32 s60, s60, s61\ns_add_u32 s60, s60, 0x300000")
    a(f"s_mul_i32 s62, s2, {P['rot']}")
    a("s_lshl_b32 s63, s28, 2\ns_add_u32 s63, s63, s29")
    a("s_cmp_eq_u32 s3, 1\ns_cbranch_scc1 L_W1")
    a("s_cmp_eq_u32 s3, 2\ns_cbranch_scc1 L_W2")
    a("s_cmp_eq_u32 s3, 3\ns_cbranch_scc1 L_W3")
    a("s_cmp_ge_u32 s3, 4\ns_cbranch_scc1 L_T")

    a("s_mov_b32 s31, 3")
    for ii in range(4):
        a(f"v_lshl_add_u32 v1, v12, 2, {ii}\nv_xor_b32 v1, v1, v13\nv_lshlrev_b32 v1, 4, v1\nv_lshl_add_u32 v{4+ii}, v12, 8, v1")
    a("s_mov_b32 s48, 0")
    a("s_waitcnt lgkmcnt(0)")
    srd(40, 6, 0x8000000)
    def ktile():
        a(f"s_add_u32 s49, s48, s62\ns_and_b32 s49, s49, 7\ns_lshl_b32 s49, s49, 12")
        a(f"s_lshr_b32 s50, s48, 3\ns_mul_i32 s50, s50, {P['SJ']}\ns_add_u32 s49, s49, s50\ns_add_u32 s49, s49, s60")
        a("s_lshl_b32 m0, s48, 12\ns_add_u32 s48, s48, 1")
        for ii in range(4):
            a(f"buffer_load_dwordx4 v{4+ii}, s[40:43], s49 offen offset:{ii*1024} nt lds")
    a("L_kA:"); ktile()
    a(f"s_cmp_lt_u32 s48, {P['burst']}\ns_cbranch_scc1 L_kA")
    a("s_barrier")
    a("L_kB:")
    vm(P["thrK"])
    a(f"s_sub_u32 s51, s48, {(P['thrK']+3)//4}\ns_max_i32 s51, s51, 0")
    set_flag(F_K, "s51")
    ktile()
    a("s_cmp_lt_u32 s48, 32\ns_cbranch_scc1 L_kB")
    set_flag(F_TURN, 1)
    stamp(6)
    vm(0)
    set_flag(F_K, 32)
    stamp(7)
    a("s_branch L_S")

    a("L_W1:")
    a("v_bfe_u32 v1, v0, 2, 2\nv_lshlrev_b32 v1, 10, v1")
    a("v_and_b32 v2, 3, v0\nv_lshl_add_u32 v2, v12, 2, v2\nv_lshl_add_u32 v2, v2, 6, v1")
    a("v_and_b32 v3, 1, v0\nv_lshlrev_b32 v3, 6, v3\nv_lshl_add_u32 v3, v12, 4, v3\nv_add_u32 v3, v3, v1")
    a("v_bfe_u32 v4, v0, 3, 1\nv_lshl_add_u32 v4, v4, 2, v12\nv_lshlrev_b32 v4, 16, v4\nv_and_b32 v5, 7, v0\nv_lshl_add_u32 v4, v5, 4, v4")
    a("s_lshl_b32 s48, s29, 20\ns_lshl_b32 s49, s28, 10\ns_add_u32 s48, s48, s49\ns_lshl_b32 s49, s30, 7\ns_add_u32 s48, s48, s49")
    a("s_lshl_b32 s50, s29, 8")
    a("s_waitcnt lgkmcnt(0)")
    srd(40, 4, 4096); srd(44, 10, 0x400000); srd(36, 26, WS_BYTES)
    for k in range(4): a(f"buffer_load_dwordx4 v[{16+4*k}:{19+4*k}], v2, s[40:43], 0 offen offset:{16*k}")
    for u in range(2): a(f"buffer_load_dwordx4 v[{32+4*u}:{35+4*u}], v3, s[40:43], s50 offen offset:{128*u}")
    for u in range(2):
        for jj in range(8):
            r = 96 + 32 * u + 4 * jj
            a(f"buffer_load_dwordx4 v[{r}:{r+3}], v4, s[44:47], s48 offen{P['ntq']}")
            if not (u == 1 and jj == 7): a(f"s_add_u32 s48, s48, {8192 if jj < 7 else 57*8192}")
    a("s_barrier")
    vm(18)
    for k in range(16):
        a(f"v_lshlrev_b32 v{160+2*k}, 16, v{16+k}\nv_and_b32 v{161+2*k}, 0xffff0000, v{16+k}")
    a("v_pk_add_f32 v[6:7], v[160:161], v[162:163]")
    for k in range(2, 16): a(f"v_pk_add_f32 v[6:7], v[6:7], v[{160+2*k}:{161+2*k}]")
    a("v_add_f32 v6, v6, v7")
    def red_batch(v):
        dpp("v_add_f32", v, v, v, "quad_perm:[1,0,3,2]"); dpp("v_add_f32", v, v, v, "quad_perm:[2,3,0,1]")
        xrow("v_add_f32", v, 9)
    red_batch(6)
    a("v_mul_f32 v6, 0x3b000000, v6")
    a("v_mov_b32 v7, 0")
    for k in range(32): a(f"v_sub_f32 v{160+k}, v{160+k}, v6")
    for k in range(32): a(f"v_fmac_f32 v7, v{160+k}, v{160+k}")
    red_batch(7)
    a("v_mul_f32 v7, 0x3b000000, v7")
    rbf(6, 6); rbf(7, 7)
    a("v_add_f32 v7, 0x3727c5ac, v7"); rbf(7, 7)
    a("v_sqrt_f32 v7, v7"); rbf(7, 7)
    a("v_rcp_f32 v7, v7")
    vm(16)
    for k in range(8):
        a(f"v_lshlrev_b32 v8, 16, v{32+k}\nv_and_b32 v9, 0xffff0000, v{32+k}\nv_sub_f32 v8, v8, v6\nv_sub_f32 v9, v9, v6")
        a(f"v_cvt_pk_bf16_f32 v9, v8, v9\nv_lshlrev_b32 v8, 16, v9\nv_and_b32 v9, 0xffff0000, v9")
        a(f"v_mul_f32 v8, v8, v7\nv_mul_f32 v9, v9, v7\nv_cvt_pk_bf16_f32 v{32+k}, v8, v9")
    stamp(6)
    vm(8); transpose(64, 96)
    for t in range(8): mfma(192 + 4 * t, 32, 64 + 4 * t, None)
    vm(0); transpose(96, 128)
    for t in range(8): mfma(192 + 4 * t, 36, 96 + 4 * t, 192 + 4 * t)
    a("v_lshlrev_b32 v1, 13, v12\nv_lshl_add_u32 v1, v5, 5, v1\nv_bfe_u32 v2, v0, 3, 1\nv_lshl_add_u32 v1, v2, 4, v1")
    a(f"s_lshl_b32 s48, s28, 15\ns_lshl_b32 s49, s29, 11\ns_add_u32 s48, s48, s49\ns_lshl_b32 s49, s30, 8\ns_add_u32 s48, s48, s49")
    for t in range(8): fold(16, t, 192 + 4 * t, 193 + 4 * t)
    for v in range(4): a(f"v_min_u32 v{16+v}, -2, v{16+v}")
    stamp(7)
    wait_flag(F_GO, 1)
    a("buffer_store_dwordx4 v[16:19], v1, s[36:39], s48 offen sc1")
    set_flag(F_QP, 1)
    stamp(8)
    a("s_branch L_S")

    a("L_W2:")
    a("v_lshlrev_b32 v2, 4, v0\nv_mov_b32 v5, 0")
    a("v_mov_b32 v16, -1\nv_mov_b32 v17, -1\nv_mov_b32 v18, -1\nv_mov_b32 v19, -1")
    a("s_mul_i32 s48, s2, 25600\ns_add_u32 s49, s48, 25600")
    a("s_waitcnt lgkmcnt(0)")
    srd(36, 26, WS_BYTES)
    a("s_cmp_ge_u32 s2, 32\ns_cbranch_scc1 L_W2a")
    a("L_W2c:\nbuffer_store_dwordx4 v[16:19], v2, s[36:39], s48 offen sc1")
    a("s_add_u32 s48, s48, 1024\ns_cmp_lt_u32 s48, s49\ns_cbranch_scc1 L_W2c")
    a("L_W2a:")
    a("s_barrier")
    a("s_cmp_ge_u32 s2, 32\ns_cbranch_scc1 L_W2f")
    a("s_mov_b32 s53, 1")
    vm(0)
    a("s_atomic_add s53, s[24:25], 0 glc\ns_waitcnt lgkmcnt(0)")
    stamp(6)
    a("s_cmp_lg_u32 s53, 31\ns_cbranch_scc1 L_W2f")
    a("s_mov_b32 s53, 1\ns_atomic_add s53, s[24:25], 128 glc\ns_waitcnt lgkmcnt(0)")
    a("L_W2f:")
    a("s_mov_b64 exec, 1\nglobal_load_dword v6, v5, s[24:25] offset:128 sc1\ns_mov_b64 exec, -1")
    vm(0)
    a("v_readfirstlane_b32 s53, v6\ns_cmp_eq_u32 s53, 1\ns_cbranch_scc1 L_W2g")
    nap(P["sl_flag"])
    budget()
    a("s_branch L_W2f\nL_W2g:")
    set_flag(F_GO, 1)
    stamp(7)
    a("s_lshl_b32 s48, s63, 13\ns_add_u32 s49, s48, 4096")
    wait_flag(F_QP, 1)
    nap(P["pre_q"])
    poll([f"buffer_load_dwordx4 v[{16+4*k}:{19+4*k}], v2, s[36:39], s{48+(k>>2)} offen offset:{(k&3)*1024} sc1" for k in range(8)], range(16, 48), P["sl_q"])
    for h in range(2):
        for ks in range(1, 4):
            for z in range(2):
                r = 16 + 4 * h + 2 * z
                a(f"v_pk_add_f32 v[{r}:{r+1}], v[{r}:{r+1}], v[{r+8*ks}:{r+8*ks+1}]")
        a(f"v_cvt_pk_bf16_f32 v{6+2*h}, v{16+4*h}, v{17+4*h}\nv_cvt_pk_bf16_f32 v{7+2*h}, v{18+4*h}, v{19+4*h}")
    a(f"v_lshlrev_b32 v1, 3, v0\nv_add_u32 v1, {L_Q}, v1")
    a("ds_write_b64 v1, v[6:7]\nds_write_b64 v1, v[8:9] offset:512")
    set_flag(F_Q, 1)
    stamp(8)
    a("s_branch L_S")

    a("L_W3:")
    a("s_mov_b32 s31, 0")
    if P["pref"]:
        a("s_getpc_b64 s[48:49]\nL_pc:")
        a(f"s_sub_u32 s48, s48, L_pc-{KNAME}\ns_subb_u32 s49, s49, 0")
        a(f"s_mov_b32 s50, L_fin-{KNAME}-4")
        a("v_lshlrev_b32 v1, 7, v0")
        for k in range(2):
            a(f"v_add_u32 v2, {k*8192}, v1\nv_min_u32 v2, s50, v2\nglobal_load_dword v{16+k}, v2, s[48:49]")
    a("v_lshl_add_u32 v1, v0, 2, v14\nv_mov_b32 v2, 0\nds_write_b32 v1, v2")
    a("s_waitcnt lgkmcnt(0)\ns_barrier")

    a("L_S:")
    srd(40, 8, 0x8000000); srd(36, 26, WS_BYTES)
    a("v_lshlrev_b32 v1, 4, v0")
    a(f"s_mul_i32 s48, s31, {P['SJ']}\ns_add_u32 s48, s48, s60")
    for tau in range(8):
        a(f"s_add_u32 s49, s62, {tau}\ns_and_b32 s49, s49, 7\ns_lshl_b32 s49, s49, 12\ns_add_u32 s{52+tau}, s49, s48")
    a(f"v_and_b32 v2, 3, v0\nv_lshl_add_u32 v2, v12, 4, v2\nv_lshlrev_b32 v2, 4, v2\ns_lshl_b32 s49, s31, 10\ns_add_u32 s49, s49, {L_P}\nv_add_u32 v2, s49, v2")
    a(f"v_lshlrev_b32 v3, 4, v13\nv_add_u32 v3, {L_DEP}, v3\ns_lshl_b32 s49, s31, 11\nv_add_u32 v4, s49, v3")
    a("s_lshl_b32 s49, s31, 2\nv_add_u32 v5, s49, v14")
    a("s_add_u32 s50, s31, 1")
    wait_flag(F_TURN, "s50")
    stamp(1)
    for tau in range(8):
        if 4 * tau > P["thrV"]: vm(P["thrV"])
        for q in range(4):
            r = 96 + 16 * tau + 4 * q
            a(f"buffer_load_dwordx4 v[{r}:{r+3}], v1, s[40:43], s{52+tau} offen offset:{q*1024} nt")
    a("s_add_u32 s50, s31, 2")
    set_flag(F_TURN, "s50")
    stamp(2)
    a("s_cmp_eq_u32 s31, 3\ns_cbranch_scc1 L_S3")
    for q in range(4):
        vm(24 - 8 * q); transpose(64 + 32 * q, 96 + 32 * q)
    stamp(3)
    wait_flag(F_P, 1, addr="v5")
    for q in range(4): a(f"ds_read_b128 v[{16+4*q}:{19+4*q}], v2 offset:{64*q}")
    lgkm(0)
    for q in range(4):
        for t in range(8): mfma(32 + 4 * t, 16 + 4 * q, 64 + 32 * q + 4 * t, None if q == 0 else 32 + 4 * t)
    a("s_mov_b64 exec, 0xffff")
    for t in range(8): a(f"ds_write_b128 v4, v[{32+4*t}:{35+4*t}] offset:{256*t}")
    add_flag(F_DEP)
    stamp(4)
    a("s_branch L_exit")

    a("L_S3:")
    a(f"s_lshl_b32 s48, s63, 13\ns_lshl_b32 s49, s30, 10\ns_add_u32 s48, s48, s49\ns_add_u32 s48, s48, {OP}")
    wait_flag(F_P, 1, addr="v5")
    for q in range(4): a(f"ds_read_b128 v[{16+4*q}:{19+4*q}], v2 offset:{64*q}")
    vm(24); transpose(64, 96)
    lgkm(0)
    for t in range(8): mfma(32 + 4 * t, 16, 64 + 4 * t, None)
    vm(16); transpose(96, 128)
    for t in range(8): mfma(32 + 4 * t, 20, 96 + 4 * t, 32 + 4 * t)
    wait_flag(F_DEP, 3)
    stamp(3)
    for k in range(3):
        for t in range(8): a(f"ds_read_b128 v[{224+4*t}:{227+4*t}], v3 offset:{2048*k+256*t}")
        for t in range(8):
            lgkm(7 - t)
            for z in (0, 2): a(f"v_pk_add_f32 v[{32+4*t+z}:{33+4*t+z}], v[{32+4*t+z}:{33+4*t+z}], v[{224+4*t+z}:{225+4*t+z}]")
    vm(8); transpose(128, 160)
    for t in range(8): mfma(32 + 4 * t, 24, 128 + 4 * t, 32 + 4 * t)
    for p in range(4):
        vm(6 - 2 * p); transpose(160, 192, [p])
    stamp(4)
    for t in range(8): mfma(32 + 4 * t, 28, 160 + 4 * t, 32 + 4 * t)
    for k in range(4):
        for q in range(4):
            a(f"v_cvt_pk_bf16_f32 v{64+4*q+k}, v{32+8*k+q}, v{36+8*k+q}")
    for q in range(1, 4):
        for k in range(4): a(f"v_mov_b32_dpp v{64+k}, v{64+4*q+k} quad_perm:[0,1,2,3] row_mask:{hex(1<<q)} bank_mask:0xf")
    for k in range(4): a(f"v_min_u32 v{64+k}, -2, v{64+k}")
    a(f"buffer_store_dwordx4 v[64:67], v1, s[36:39], s48 offen{P['st1']}")
    set_flag(F_O, 1)
    stamp(5)
    a("s_branch L_exit")

    a("L_T:")
    a("v_bfe_u32 v11, v0, 3, 1\nv_lshl_add_u32 v11, v11, 2, v12")
    a("v_lshlrev_b32 v8, 13, v11\nv_and_b32 v5, 7, v0\nv_lshl_add_u32 v8, v5, 4, v8")
    a("s_lshl_b32 s48, s28, 19\ns_lshl_b32 s49, s31, 17\ns_add_u32 s48, s48, s49\ns_lshl_b32 s49, s30, 7\ns_add_u32 s48, s48, s49")
    a("s_barrier\ns_waitcnt lgkmcnt(0)")
    srd(36, 26, WS_BYTES); srd(40, 12, 0x400000)
    if P["wo_gate"]: wait_flag(F_K, P["wo_gate"], sl=4)
    for u in range(2):
        for z in range(2):
            a(f"s_add_u32 s49, s48, {u*65536 + z*4096}")
            if u or z: vm(P["thrW"])
            for q in range(4):
                r = 96 + 32 * u + 4 * (4 * z + q)
                a(f"buffer_load_dwordx4 v[{r}:{r+3}], v8, s[40:43], s49 offen offset:{q*1024}{P['ntw']}")
    stamp(1)
    a(f"v_and_b32 v1, 3, v0\nv_lshlrev_b32 v1, 8, v1\nv_lshl_add_u32 v1, v12, 4, v1\nv_add_u32 v1, {L_Q}, v1")
    a("v_and_b32 v2, 3, v0\nv_lshlrev_b32 v2, 2, v2\nv_lshrrev_b32 v3, 2, v13\nv_add_u32 v2, v2, v3\nv_lshlrev_b32 v2, 8, v2")
    a("s_lshl_b32 s48, s31, 15\nv_add_u32 v2, s48, v2")
    for m in range(4):
        a(f"v_add_u32 v3, {4*m}, v12\nv_xor_b32 v3, v3, v13\nv_lshl_add_u32 v{4+m}, v3, 4, v2")
    vm(8); transpose(64, 96)
    vm(0); transpose(96, 128)
    stamp(2)

    wait_flag(F_Q, 1, sl=2)
    stamp(3)
    for m in range(4): a(f"ds_read_b128 v[{16+4*m}:{19+4*m}], v1 offset:{64*m}")
    a("s_add_u32 s48, s31, 1\ns_lshl_b32 s48, s48, 3")
    wait_flag(F_K, "s48", sl=2)
    stamp(4)
    def kread(tau):
        for m in range(4):
            r = 128 + 16 * tau + 4 * m
            a(f"ds_read_b128 v[{r}:{r+3}], v{4+m} offset:{4096*tau}")
    kread(0); kread(1)
    for tau in range(8):
        if tau + 2 < 8: kread(tau + 2)
        lgkm(8 if tau < 6 else 4 if tau == 6 else 0)
        for m in range(4): mfma(32 + 4 * tau, 128 + 16 * tau + 4 * m, 16 + 4 * m, None if m == 0 else 32 + 4 * tau)
    for q in range(1, 4):
        for k in range(8): dpp("v_mov_b32", 32 + k, 32 + 8 * q + k, None, "quad_perm:[0,1,2,3]", hex(1 << q))
    a("s_mov_b32 s50, 0x3db504f3\ns_mov_b32 s59, 0x3fb8aa3b")
    for k in range(0, 8, 2):
        x, y = 32 + k, 33 + k
        a(f"v_cvt_pk_bf16_f32 v{y}, v{x}, v{y}\nv_lshlrev_b32 v{x}, 16, v{y}\nv_and_b32 v{y}, 0xffff0000, v{y}")
        a(f"v_mul_f32 v{x}, s50, v{x}\nv_mul_f32 v{y}, s50, v{y}")
        a(f"v_cvt_pk_bf16_f32 v{y}, v{x}, v{y}\nv_lshlrev_b32 v{x}, 16, v{y}\nv_and_b32 v{y}, 0xffff0000, v{y}")
    a("v_max3_f32 v8, v32, v33, v34\nv_max3_f32 v8, v8, v35, v36\nv_max3_f32 v8, v8, v37, v38\nv_max_f32 v8, v8, v39")
    red_head("v_max_f32", 8)
    a(f"v_and_b32 v3, 3, v0\nv_lshlrev_b32 v3, 4, v3\nv_add_u32 v3, {L_M}, v3\ns_lshl_b32 s48, s31, 2\nv_add_u32 v2, s48, v3")
    a("s_mov_b64 exec, 15\nds_write_b32 v2, v8")
    add_flag(F_M)
    wait_flag(F_M, 4)
    a("ds_read_b128 v[16:19], v3")
    lgkm(0)
    a("v_max3_f32 v8, v16, v17, v18\nv_max_f32 v8, v8, v19")
    for k in range(8): a(f"v_sub_f32 v{40+k}, v{32+k}, v8")
    for k in range(8): a(f"v_mul_f32 v{40+k}, s59, v{40+k}")
    for k in range(8): a(f"v_exp_f32 v{40+k}, v{40+k}")
    a("v_lshlrev_b32 v2, 4, v0")
    for k in range(4): a(f"v_cvt_pk_bf16_f32 v{16+k}, v{40+2*k}, v{41+2*k}")
    a(f"s_lshl_b32 s48, s31, 10\ns_add_u32 s48, s48, {L_P}\nv_add_u32 v3, s48, v2\nds_write_b128 v3, v[16:19]")
    a("s_lshl_b32 s48, s31, 2\nv_add_u32 v3, s48, v14")
    set_flag(F_P, 1, addr="v3")
    stamp(5)
    a("v_add_f32 v9, v40, v41")
    for k in range(2, 8): a(f"v_add_f32 v9, v9, v{40+k}")
    red_head("v_add_f32", 9)
    a(f"s_lshl_b32 s58, s63, 10\ns_add_u32 s58, s58, {ST}")
    a("s_lshl_b32 s49, s30, 7\ns_lshr_b32 s52, s31, 1\ns_lshl_b32 s52, s52, 6\ns_add_u32 s49, s49, s52\ns_and_b32 s52, s31, 1\ns_lshl_b32 s52, s52, 3\ns_add_u32 s49, s49, s52\ns_add_u32 s49, s49, s58")
    a("v_min_u32 v8, -2, v8\nv_min_u32 v9, -2, v9")
    a("s_mov_b64 exec, 15\nbuffer_store_dwordx2 v[8:9], v2, s[36:39], s49 offen sc1\ns_mov_b64 exec, -1")
    a("s_lshl_b32 s49, s31, 4\ns_add_u32 s58, s58, s49")

    a("s_mov_b32 s44, s4\ns_mov_b32 s45, s5\ns_cmp_eq_u32 s28, 0\ns_cselect_b32 s46, 4096, 0\ns_mov_b32 s47, 0x20000")
    a("s_lshl_b32 s50, s29, 10\ns_lshl_b32 s49, s30, 7\ns_add_u32 s50, s50, s49")
    a("v_lshrrev_b32 v6, 2, v0\nv_lshlrev_b32 v6, 3, v6")
    a("buffer_load_dwordx2 v[24:25], v6, s[44:47], s50 offen")
    a("s_mul_i32 s61, s28, 7\ns_add_u32 s61, s61, s30\ns_lshl_b32 s53, s31, 8")
    a("s_cmp_eq_u32 s30, 7\ns_cbranch_scc1 L_Tnf")

    a("v_mul_u32_u24 v4, 28672, v11\nv_and_b32 v5, 3, v0\nv_lshl_add_u32 v4, v5, 4, v4")
    a(f"s_mul_i32 s49, s31, {128*3584}\ns_lshl_b32 s50, s61, 6\ns_add_u32 s49, s49, s50\nv_add_u32 v4, s49, v4\nv_mov_b32 v5, 0")
    a("v_lshl_add_u64 v[2:3], v[4:5], 0, s[16:17]")
    a("s_mov_b32 exec_lo, 0xf0f0f0f0\ns_mov_b32 exec_hi, 0xf0f0f0f0\nv_lshl_add_u64 v[2:3], v[4:5], 0, s[18:19]\ns_mov_b64 exec, -1")
    a(f"s_mov_b32 s50, 7168\ns_mov_b32 s51, 0\ns_mov_b32 s56, {58*3584}\ns_mov_b32 s57, 0")
    srd(40, 20, 1792 * 1024)
    a("v_lshlrev_b32 v4, 13, v12\nv_lshl_add_u32 v4, v13, 4, v4")
    a("s_lshl_b32 s49, s61, 15\ns_add_u32 s49, s49, s53\ns_add_u32 s54, s49, 4096")
    for u in range(2):
        for jp in range(4):
            if (u or jp) and jp % 2 == 0: vm(P["thrW"])
            for z in range(2):
                r = 160 + 32 * u + 4 * (2 * jp + z)
                a(f"global_load_dwordx4 v[{r}:{r+3}], v[2:3], off offset:{3584*z}{P['ntw']}")
            if not (u == 1 and jp == 3): a(f"v_lshl_add_u64 v[2:3], v[2:3], 0, s[{50 if jp < 3 else 56}:{51 if jp < 3 else 57}]")
    def dnloads():
        for jj in range(8):
            r = 224 + 4 * jj
            if jj % 4 == 0 and not P["dn_late"]: vm(P["thrW"])
            a(f"buffer_load_dwordx4 v[{r}:{r+3}], v4, s[40:43], s{49 if jj < 4 else 54} offen offset:{(jj&3)*1024}{P['ntw']}")
    if not P["dn_late"]: dnloads()
    n = 0 if P["dn_late"] else 8
    a(f"s_mul_i32 s50, s31, 320\ns_add_u32 s50, s50, {L_CS}\nv_lshl_add_u32 v5, v13, 4, s50")
    for k in range(4): a(f"v_mov_b32 v{16+k}, 0x3f803f80")
    vm(8 + n); transpose(128, 160)
    for t in range(8): mfma(32 + 4 * t, 16, 128 + 4 * t, None)
    vm(n); transpose(160, 192)
    for t in range(8): mfma(32 + 4 * t, 16, 160 + 4 * t, 32 + 4 * t)
    for t in range(8): fold(20, t, 32 + 4 * t, 32 + 4 * t)
    a("s_mov_b64 exec, 0xffff\nds_write_b128 v5, v[20:23]\ns_mov_b64 exec, -1")
    if P["dn_late"]:
        wait_flag(F_TURN, 5, sl=2)
        dnloads()
    vm(0); transpose(192, 224)
    a("L_Tnf:")
    stamp(6)

    a("v_lshlrev_b32 v7, 3, v6")
    if P["st_turn"]: wait_flag(F_TURN, P["st_turn"], sl=2)
    poll(["buffer_load_dwordx4 v[16:19], v7, s[36:39], s58 offen sc1"], range(16, 20), P["sl_st"])
    a("v_max_f32 v8, v16, v18")
    red_head("v_max_f32", 8)
    a("v_sub_f32 v16, v16, v8\nv_mul_f32 v16, s59, v16\nv_exp_f32 v16, v16\nv_add_f32 v9, v17, v19\nv_mul_f32 v9, v16, v9")
    red_head("v_add_f32", 9)
    a("v_rcp_f32 v9, v9\nv_mul_f32 v16, v16, v9")
    dpp("v_mov_b32", 26, 16, None, "row_newbcast:0"); dpp("v_mov_b32", 27, 16, None, "row_newbcast:8")
    a("v_lshlrev_b32 v28, 16, v24\nv_and_b32 v29, 0xffff0000, v24\nv_lshlrev_b32 v30, 16, v25\nv_and_b32 v31, 0xffff0000, v25")

    a("v_lshrrev_b32 v1, 1, v13\nv_lshlrev_b32 v1, 10, v1\nv_and_b32 v2, 1, v0\nv_lshl_add_u32 v2, v2, 2, v12\nv_lshl_add_u32 v1, v2, 4, v1")
    a(f"s_lshl_b32 s48, s63, 13\ns_add_u32 s48, s48, s53\ns_add_u32 s48, s48, {OP}")
    a(f"v_mul_u32_u24 v2, 320, v12\nv_lshl_add_u32 v2, v13, 4, v2\ns_mul_i32 s49, s31, 1280\ns_add_u32 s49, s49, {L_RED}\nv_add_u32 v2, s49, v2")
    a(f"v_and_b32 v3, 3, v0\nv_mul_u32_u24 v3, 320, v3\nv_bfe_u32 v7, v0, 2, 1\nv_lshl_add_u32 v3, v7, 7, v3\nv_add_u32 v3, {L_RED}, v3")
    a(f"v_lshl_add_u32 v4, v11, 4, v3\nv_lshrrev_b32 v7, 3, v0\nv_lshl_add_u32 v3, v7, 4, v3")
    a(f"s_lshl_b32 s52, s29, 16\ns_add_u32 s52, s52, {DP}")
    a(f"s_lshl_b32 s51, s28, 10\ns_add_u32 s51, s51, s52\ns_add_u32 s51, s51, {56*1024}\ns_lshl_b32 s49, s30, 7\ns_add_u32 s51, s51, s49")
    a(f"s_add_u32 s55, s52, s53\ns_lshl_b32 s49, s61, 10\ns_add_u32 s54, s55, s49\ns_add_u32 s55, s55, {56*1024}")
    a(f"v_lshrrev_b32 v5, 5, v0\nv_lshlrev_b32 v5, 4, v5\ns_lshl_b32 s49, s31, 2\ns_add_u32 s49, s49, {L_STAT}\nv_add_u32 v5, s49, v5\nv_mov_b32 v7, {L_STAT}")
    for k in range(4): a(f"v_mov_b32 v{240+k}, 0x3f803f80")
    srd(40, 22, 4096)
    a("v_lshlrev_b32 v244, 10, v0\nv_lshlrev_b32 v245, 1, v0\nv_lshlrev_b32 v246, 4, v0")
    a("s_lshl_b32 s56, s30, 1\ns_add_u32 s56, s56, s31\ns_lshl_b32 s56, s56, 4\ns_lshl_b32 s49, s28, 7\ns_add_u32 s56, s56, s49")
    a("s_lshl_b32 s57, s29, 10\ns_add_u32 s57, s57, s56\ns_add_u32 s56, s56, s52")
    a("v_lshrrev_b32 v8, 1, v13\nv_and_b32 v9, 1, v0\nv_lshlrev_b32 v9, 4, v9\ns_mov_b32 s49, 0x3f80\nv_lshlrev_b32 v9, v9, s49")
    for k in range(4): a(f"v_cmp_eq_u32 vcc, {k}, v8\nv_cndmask_b32 v{248+k}, 0, v9, vcc")
    stamp(7)

    wait_flag(F_O, 1, sl=0)
    nap(P["pre1"])
    poll([f"buffer_load_dwordx4 v[{16+4*u}:{19+4*u}], v1, s[36:39], s48 offen offset:{128*u} sc1" for u in range(2)], range(16, 24), P["sl_h1"])
    stamp(8)
    def gemv64(B0, f=None):
        D, A, tmp = 32, 16, 224
        def rows(t):
            fold(8, t, D + 4 * t, D + 4 * t + 1); fold(tmp, t, D + 4 * t + 2, D + 4 * t + 3)
        for t in range(8):
            mfma(D + 4 * t, A, B0 + 4 * t, None); mfma(D + 4 * t, A + 4, B0 + 32 + 4 * t, D + 4 * t)
            if t >= 3: rows(t - 3)
        for t in range(5, 8): rows(t)
        for v in range(4):
            if f is None: a(f"v_add_f32 v{8+v}, v{8+v}, v{tmp+v}")
            else: a(f"v_mul_f32 v{8+v}, v{8+v}, v{f}\nv_fmac_f32 v{8+v}, v{tmp+v}, v{f+1}")
    gemv64(64, 26)
    a("ds_write_b128 v2, v[8:11]\ns_waitcnt lgkmcnt(0)\ns_barrier")
    a("s_cmp_lg_u32 s31, 3\ns_cbranch_scc1 L_Tpub")
    for k in range(4): a(f"ds_read_b128 v[{32+4*k}:{35+4*k}], v3 offset:{1280*k}")
    lgkm(2)
    a("v_pk_add_f32 v[32:33], v[32:33], v[36:37]\nv_pk_add_f32 v[34:35], v[34:35], v[38:39]")
    lgkm(0)
    a("v_pk_add_f32 v[40:41], v[40:41], v[44:45]\nv_pk_add_f32 v[42:43], v[42:43], v[46:47]")
    a("v_pk_add_f32 v[32:33], v[32:33], v[40:41]\nv_pk_add_f32 v[34:35], v[34:35], v[42:43]")
    for ctl in ("quad_perm:[1,0,3,2]", "quad_perm:[2,3,0,1]"):
        for v in range(4): dpp("v_add_f32", 32 + v, 32 + v, 32 + v, ctl)
    a("v_pk_add_f32 v[32:33], v[32:33], v[28:29]\nv_pk_add_f32 v[34:35], v[34:35], v[30:31]")
    a("v_cvt_pk_bf16_f32 v36, v32, v33\nv_cvt_pk_bf16_f32 v37, v34, v35\nv_min_u32 v36, -2, v36\nv_min_u32 v37, -2, v37")
    dpp("v_mov_b32", 38, 36, None, "row_shl:4"); dpp("v_mov_b32", 39, 37, None, "row_shl:4")
    a("s_mov_b32 exec_lo, 0x01010101\ns_mov_b32 exec_hi, 0x01010101")
    a("buffer_store_dwordx4 v[36:39], v6, s[36:39], s51 offen sc1")
    a("s_mov_b64 exec, -1")
    a("L_Tpub:")
    a("s_barrier")
    stamp(9)
    a("s_cmp_eq_u32 s30, 7\ns_cbranch_scc1 L_exit")

    nap(P["pre2"])
    poll([f"buffer_load_dwordx4 v[{16+4*u}:{19+4*u}], v1, s[36:39], s55 offen offset:{128*u} sc1" for u in range(2)], range(16, 24), P["sl_h2"])
    stamp(10)
    mfma(232, 16, 16, None); mfma(232, 20, 20, 232)
    mfma(236, 16, 240, None); mfma(236, 20, 240, 236)
    gemv64(128)
    a(f"ds_write_b128 v2, v[8:11] offset:{L_RED2-L_RED}")
    a("v_pk_add_f32 v[232:233], v[232:233], v[234:235]\nv_pk_add_f32 v[236:237], v[236:237], v[238:239]")
    dpp("v_add_f32", 232, 233, 232, "quad_perm:[1,0,3,2]")
    a("v_add_f32 v236, v236, v237")
    for ctl in ("quad_perm:[2,3,0,1]", "row_ror:4", "row_ror:8"): dpp("v_add_f32", 232, 232, 232, ctl)
    a("v_permlane32_swap_b32 v232, v236\nv_add_f32 v232, v232, v236\nv_mov_b32 v233, v232\nv_permlane16_swap_b32 v232, v233\nv_add_f32 v232, v232, v233")
    a("s_mov_b32 exec_lo, 1\ns_mov_b32 exec_hi, 1\nds_write_b32 v5, v232\ns_mov_b64 exec, -1")
    a("s_waitcnt lgkmcnt(0)\ns_barrier")
    stamp(11)
    a("ds_read_b128 v[48:51], v7\nds_read_b128 v[52:55], v7 offset:16")
    for k in range(4): a(f"ds_read_b128 v[{32+4*k}:{35+4*k}], v4 offset:{L_RED2-L_RED+1280*k}")
    a(f"ds_read_b128 v[56:59], v4 offset:{L_CS-L_RED}")
    lgkm(5)
    a("v_pk_add_f32 v[48:49], v[48:49], v[50:51]\nv_pk_add_f32 v[52:53], v[52:53], v[54:55]")
    a("v_add_f32 v48, v48, v49\nv_add_f32 v52, v52, v53")
    a("v_mul_f32 v52, 0x3b000000, v52\nv_mul_f32 v48, 0x3b000000, v48")
    a("v_fma_f32 v48, -v52, v52, v48\nv_max_f32 v48, 0, v48\nv_add_f32 v48, 0x3727c5ac, v48\nv_rsq_f32 v48, v48")
    lgkm(3)
    a("v_pk_add_f32 v[32:33], v[32:33], v[36:37]\nv_pk_add_f32 v[34:35], v[34:35], v[38:39]")
    lgkm(1)
    a("v_pk_add_f32 v[40:41], v[40:41], v[44:45]\nv_pk_add_f32 v[42:43], v[42:43], v[46:47]")
    a("v_pk_add_f32 v[32:33], v[32:33], v[40:41]\nv_pk_add_f32 v[34:35], v[34:35], v[42:43]")
    lgkm(0)
    for v in range(4): a(f"v_fma_f32 v{32+v}, -v52, v{56+v}, v{32+v}")
    for ctl in ("quad_perm:[1,0,3,2]", "quad_perm:[2,3,0,1]"):
        for v in range(4): dpp("v_add_f32", 32 + v, 32 + v, 32 + v, ctl)
    for v in range(4): a(f"v_mul_f32 v{32+v}, v48, v{32+v}")
    for v in range(4): a(f"v_mul_f32 v{36+v}, 0xbfb8aa3b, v{32+v}")
    for v in range(4): a(f"v_exp_f32 v{36+v}, v{36+v}")
    for v in range(4): a(f"v_add_f32 v{36+v}, 1.0, v{36+v}")
    for v in range(4): a(f"v_rcp_f32 v{36+v}, v{36+v}")
    for v in range(4): a(f"v_mul_f32 v{36+v}, v{32+v}, v{36+v}")
    for v in range(4): dpp("v_mul_f32", 36 + v, 32 + v, 36 + v, "row_ror:8")
    a("v_cvt_pk_bf16_f32 v16, v36, v37\nv_cvt_pk_bf16_f32 v17, v38, v39")
    dpp("v_mov_b32", 18, 16, None, "row_shl:4"); dpp("v_mov_b32", 19, 17, None, "row_shl:4")
    for t in range(8): mfma(64 + 4 * t, 16, 192 + 4 * t, None)
    for k in range(4): a(f"v_cvt_pk_bf16_f32 v{8+k}, v{64+8*k}, v{68+8*k}\nv_min_u32 v{8+k}, -2, v{8+k}")
    a("s_mov_b64 exec, 0xffff\nbuffer_store_dwordx4 v[8:11], v246, s[36:39], s54 offen sc1\ns_mov_b64 exec, -1")
    stamp(12)

    a("s_cmp_ge_u32 s30, 4\ns_cbranch_scc1 L_exit\ns_cmp_ge_u32 s31, 2\ns_cbranch_scc1 L_exit")
    nap(P["pre3"])
    poll(["buffer_load_dwordx4 v[16:19], v244, s[36:39], s56 offen sc1"], range(16, 20), P["sl_h3"])
    stamp(13)
    mfma(24, 16, 248, None)
    a("v_pk_add_f32 v[24:25], v[24:25], v[26:27]\nv_add_f32 v24, v24, v25")
    xrow("v_add_f32", 24, 25)
    a("v_cvt_pk_bf16_f32 v24, v24, v24")
    a("s_mov_b64 exec, 0xff\nbuffer_store_short v24, v245, s[40:43], s57 offen")
    stamp(14)

    a("L_exit:")
    if dbg:
        stamp(15)
        a("s_mov_b64 exec, -1\ns_waitcnt lgkmcnt(0)")
        a(f"s_lshl_b32 s48, s2, 3\ns_add_u32 s48, s48, s3\ns_lshl_b32 s48, s48, 6\ns_add_u32 s48, s48, {STAMP}\ns_add_u32 s26, s26, s48\ns_addc_u32 s27, s27, 0")
        for k in range(16): a(f"v_mov_b32 v{16+k}, s{64+2*k}")
        a("v_mov_b32 v1, 0\ns_mov_b64 exec, 1")
        for k in range(4): a(f"global_store_dwordx4 v1, v[{16+4*k}:{19+4*k}], s[26:27] offset:{16*k}")
    a("L_end:\ns_endpgm\nL_fin:")

    head = open("sequential_preLN__sliding_block_cached__swiglu_ffn__decode.s.ref").read().split("; Override launch")[0]
    return head + f"""; @launch grid=(256,1,1) block=(512,1,1) lds={LDS_BYTES}
.amdgcn_target "amdgcn-amd-amdhsa--gfx950"
.text
.globl {KNAME}
.p2align 8
.type {KNAME},@function
""" + a.padded() + f""".section .rodata,"a"
.p2align 6
.amdhsa_kernel {KNAME}
  .amdhsa_next_free_vgpr 256
  .amdhsa_next_free_sgpr 102
  .amdhsa_accum_offset 256
  .amdhsa_group_segment_fixed_size 0
  .amdhsa_kernarg_size 96
  .amdhsa_user_sgpr_count 2
  .amdhsa_user_sgpr_kernarg_segment_ptr 1
  .amdhsa_system_sgpr_workgroup_id_x 1
  .amdhsa_float_denorm_mode_32 3
.end_amdhsa_kernel
"""

if __name__ == "__main__":
    out = sys.argv[1]
    kw = {}
    for x in sys.argv[2:]:
        k, v = x.split("=", 1)
        try: kw[k] = int(v, 0)
        except ValueError: kw[k] = (" " + v.replace("+", " ")) if v else ""
    open(out, "w").write(gen(**kw))
```

```python
import sys
from asmlib import Asm
KNAME = "sequential_preLN__sliding_block_cached__swiglu_ffn__decode_kernel"

OP, QP, ST, DP = 0x0000, 0x4000, 0x8000, 0xC000
STAMP = 0x10000000
L_Q, L_P, L_DEP, L_RED, L_RED2, L_CS, L_STAT, L_FLAG = 131072, 132096, 136192, 142336, 147456, 152576, 153856, 154112
L_M = L_STAT + 128
LDS_BYTES = 154624
F_TURN, F_K, F_Q, F_GO, F_DEP, F_QP, F_O, F_P, F_M = 0, 4, 8, 12, 16, 20, 24, 32, 48

DEF = dict(dbg=0, thrK=20, thrV=20, thrW=4, burst=6, SS=32768, SJ=262144, rot=1, ntw=" nt", ntq=" nt", st1=" sc1",
           sl_lds=1, sl_flag=8, sl_q=4, pre_q=8, sl_st=4, sl_h1=0, sl_h2=0, sl_h3=0, pre1=0, pre2=0, pre3=0, pref=1,
           free=3, grpW=4, q_gate=16, now=0, noq=0, stc=" sc1",
           part=1, gW=5, gF=5, gS=4, pg=1, capW=8, capF=4, nF6=4, c3=1, alpha=0, beta=0, shQ=1, thr3=0, g2=6, prio=1, RS=0x44000)

def gen(**kw):
    P = dict(DEF); P.update(kw)
    dbg = P["dbg"]
    RS = P["RS"]; EP = 0x9000; WS_BYTES = 16 * RS
    a = Asm()
    uid = [0]
    def L(s):
        uid[0] += 1
        return f"L_{s}_{uid[0]}"
    def stamp(k):
        if dbg: a(f"s_memrealtime s[{64+2*k}:{65+2*k}]")
    def lgkm(n=0): a(f"s_waitcnt lgkmcnt({0 if dbg else n})")
    def vm(n): a(f"s_waitcnt vmcnt({n})")
    def srd(d, p, nbytes):
        a(f"s_mov_b32 s{d}, s{p}\ns_mov_b32 s{d+1}, s{p+1}\ns_mov_b32 s{d+2}, {hex(nbytes)}\ns_mov_b32 s{d+3}, 0x20000")
    def budget(): a("s_sub_u32 s32, s32, 1\ns_cbranch_scc1 L_exit")
    def nap(n):
        if n: a(f"s_sleep {n}")
    def wait_flag(off, val, addr="v14", sl=None):
        l, d = L("wf"), L("wfd")
        a(f"{l}:\nds_read_b32 v15, {addr} offset:{off}")
        a("s_waitcnt lgkmcnt(0)\nv_readfirstlane_b32 s33, v15")
        a(f"s_cmp_ge_u32 s33, {val}\ns_cbranch_scc1 {d}")
        nap(P["sl_lds"] if sl is None else sl)
        budget()
        a(f"s_branch {l}\n{d}:")
    def set_flag(off, val, addr="v14"):
        a(f"v_mov_b32 v15, {val}\nds_write_b32 {addr}, v15 offset:{off}")
    def add_flag(off):
        a(f"s_mov_b64 exec, 1\nv_mov_b32 v15, 1\nds_add_u32 v14, v15 offset:{off}\ns_mov_b64 exec, -1")
    def poll(loads, regs, sleep, issued=False):
        l, c, d = L("pl"), L("plc"), L("pld")
        if issued: a(f"s_branch {c}")
        a(f"{l}:")
        for x in loads: a(x)
        a(f"{c}:")
        vm(0)
        rs = list(regs)
        a(f"v_max_u32 v15, v{rs[0]}, v{rs[1]}")
        for i in range(2, len(rs), 2): a(f"v_max3_u32 v15, v15, v{rs[i]}, v{rs[i+1]}")
        a(f"v_cmp_eq_u32 vcc, -1, v15\ns_cbranch_vccz {d}")
        a("s_mov_b64 exec, vcc")
        nap(sleep)
        budget()
        a(f"s_branch {l}\n{d}:")
        a("s_mov_b64 exec, -1")
    def transpose(dst, src, ps=range(4)):
        for p in ps:
            for d in range(4):
                for e in range(2):
                    a(f"v_perm_b32 v{dst+4*(2*d+e)+p}, v{src+4*(2*p+1)+d}, v{src+8*p+d}, s{34+e}")
    def mfma(d, A, B, c):
        cc = "0" if c is None else f"v[{c}:{c+3}]"
        a(f"v_mfma_f32_16x16x32_bf16 v[{d}:{d+3}], v[{A}:{A+3}], v[{B}:{B+3}], {cc}")
    def dpp(op, d, s0, s1, ctl, bank="0xf"):
        a(f"{op}_dpp v{d}, v{s0}" + (f", v{s1}" if s1 is not None else "") + f" {ctl} row_mask:0xf bank_mask:{bank}")
    def xrow(op, v, t):
        a(f"v_mov_b32 v{t}, v{v}\nv_permlane16_swap_b32 v{v}, v{t}\n{op} v{v}, v{v}, v{t}")
        a(f"v_mov_b32 v{t}, v{v}\nv_permlane32_swap_b32 v{v}, v{t}\n{op} v{v}, v{v}, v{t}")
    def rbf(d, s):
        a(f"v_cvt_pk_bf16_f32 v{d}, v{s}, v{s}\nv_and_b32 v{d}, 0xffff0000, v{d}")
    def fold(res, t, x, y):
        if t < 4: dpp("v_add_f32", res + t, y, x, "row_ror:8", "0x3")
        else: dpp("v_add_f32", res + t - 4, x, y, "row_ror:8", "0xc")
    def red_head(op, v):
        dpp(op, v, v, v, "row_ror:4"); dpp(op, v, v, v, "row_ror:8"); xrow(op, v, 10)

    def epoch():
        a(f"s_load_dword s96, s[26:27], {hex(EP)}")
    def epoch_wait():
        a("s_waitcnt lgkmcnt(0)\ns_add_u32 s96, s96, 0x01010101")
    a(f"{KNAME}:")
    if dbg:
        for k in range(66, 96, 2): a(f"s_mov_b64 s[{k}:{k+1}], 0")
    stamp(0)
    pass
    a("s_load_dwordx16 s[4:19], s[0:1], 0\ns_load_dwordx8 s[20:27], s[0:1], 64")
    a("s_cmp_ge_u32 s2, 256\ns_cbranch_scc1 L_end")
    a("v_lshrrev_b32 v1, 6, v0\nv_and_b32 v0, 63, v0\nv_readfirstlane_b32 s3, v1")
    a("s_and_b32 s28, s2, 7\ns_bfe_u32 s29, s2, 0x20003\ns_lshr_b32 s30, s2, 5")
    a("s_mov_b32 s32, 0x8000\ns_mov_b32 s34, 0x05040100\ns_mov_b32 s35, 0x07060302")
    a(f"v_mov_b32 v14, {L_FLAG}")
    a("v_lshrrev_b32 v12, 4, v0\nv_and_b32 v13, 15, v0")
    a("s_and_b32 s31, s3, 3")
    a("s_lshl_b32 s60, s29, 3\ns_add_u32 s60, s60, s28\ns_lshl_b32 s60, s60, 22")
    a(f"s_mul_i32 s61, s30, {P['SS']}\ns_add_u32 s60, s60, s61\ns_add_u32 s60, s60, 0x300000")
    a(f"s_mul_i32 s62, s2, {P['rot']}")
    a(f"s_lshl_b32 s63, s28, 1\ns_lshr_b32 s61, s29, 1\ns_add_u32 s63, s63, s61\ns_mul_i32 s63, s63, {RS}\ns_and_b32 s101, s29, 1")
    a("s_add_u32 s100, s28, 1\ns_and_b32 s100, s100, 3\ns_or_b32 s61, s28, 4\ns_cmp_eq_u32 s101, 1\ns_cselect_b32 s100, s61, s100")
    a("s_cmp_eq_u32 s3, 1\ns_cbranch_scc1 L_W1")
    a("s_cmp_eq_u32 s3, 2\ns_cbranch_scc1 L_W2")
    a("s_cmp_eq_u32 s3, 3\ns_cbranch_scc1 L_W3")
    a("s_cmp_ge_u32 s3, 4\ns_cbranch_scc1 L_T")

    a("s_mov_b32 s31, 3")
    for ii in range(4):
        a(f"v_lshl_add_u32 v1, v12, 2, {ii}\nv_xor_b32 v1, v1, v13\nv_lshlrev_b32 v1, 4, v1\nv_lshl_add_u32 v{4+ii}, v12, 8, v1")
    a("s_mov_b32 s48, 0")
    a("s_waitcnt lgkmcnt(0)")
    srd(40, 6, 0x8000000)
    def ktile():
        a(f"s_add_u32 s49, s48, s62\ns_and_b32 s49, s49, 7\ns_lshl_b32 s49, s49, 12")
        a(f"s_lshr_b32 s50, s48, 3\ns_mul_i32 s50, s50, {P['SJ']}\ns_add_u32 s49, s49, s50\ns_add_u32 s49, s49, s60")
        a("s_lshl_b32 m0, s48, 12\ns_add_u32 s48, s48, 1")
        for ii in range(4):
            a(f"buffer_load_dwordx4 v{4+ii}, s[40:43], s49 offen offset:{ii*1024} nt lds")
    a("L_kA:"); ktile()
    a(f"s_cmp_lt_u32 s48, {P['burst']}\ns_cbranch_scc1 L_kA")
    stamp(9)
    a("s_barrier")
    stamp(8)
    a("L_kB:")
    hi = P["thrK"] + P["thr3"]
    vm(hi)
    if P["thr3"]:
        a("s_cmp_eq_u32 s30, 3\ns_cbranch_scc1 L_kC")
        vm(P["thrK"])
        a("L_kC:")
    a(f"s_sub_u32 s51, s48, {(hi+3)//4}\ns_max_i32 s51, s51, 0")
    set_flag(F_K, "s51")
    ktile()
    a("s_cmp_lt_u32 s48, 32\ns_cbranch_scc1 L_kB")
    set_flag(F_TURN, 1)
    stamp(6)
    vm(0)
    set_flag(F_K, 32)
    stamp(7)
    a("s_branch L_S")

    a("L_W1:")
    a("v_bfe_u32 v1, v0, 2, 2\nv_lshlrev_b32 v1, 10, v1")
    a("v_and_b32 v2, 3, v0\nv_lshl_add_u32 v2, v12, 2, v2\nv_lshl_add_u32 v2, v2, 6, v1")
    a("v_and_b32 v3, 1, v0\nv_lshlrev_b32 v3, 6, v3\nv_lshl_add_u32 v3, v12, 4, v3\nv_add_u32 v3, v3, v1")
    a("v_bfe_u32 v4, v0, 3, 1\nv_lshl_add_u32 v4, v4, 2, v12\nv_lshlrev_b32 v4, 16, v4\nv_and_b32 v5, 7, v0\nv_lshl_add_u32 v4, v5, 4, v4")
    a(f"s_add_u32 s59, s28, {P['shQ']}\ns_and_b32 s59, s59, 7")
    a("s_lshl_b32 s48, s29, 20\ns_lshl_b32 s49, s59, 10\ns_add_u32 s48, s48, s49\ns_lshl_b32 s49, s30, 7\ns_add_u32 s48, s48, s49")
    a("s_lshl_b32 s50, s29, 8")
    a("s_waitcnt lgkmcnt(0)")
    epoch()
    srd(40, 4, 4096); srd(44, 10, 0x400000); srd(36, 26, WS_BYTES)
    for k in range(4): a(f"buffer_load_dwordx4 v[{16+4*k}:{19+4*k}], v2, s[40:43], 0 offen offset:{16*k}")
    for u in range(2): a(f"buffer_load_dwordx4 v[{32+4*u}:{35+4*u}], v3, s[40:43], s50 offen offset:{128*u}")
    for u in range(2):
        for jj in range(8):
            r = 96 + 32 * u + 4 * jj
            a(f"buffer_load_dwordx4 v[{r}:{r+3}], v4, s[44:47], s48 offen{P['ntq']}")
            if not (u == 1 and jj == 7): a(f"s_add_u32 s48, s48, {8192 if jj < 7 else 57*8192}")
    epoch_wait()
    a("s_barrier")
    vm(18)
    for k in range(16):
        a(f"v_lshlrev_b32 v{160+2*k}, 16, v{16+k}\nv_and_b32 v{161+2*k}, 0xffff0000, v{16+k}")
    a("v_pk_add_f32 v[6:7], v[160:161], v[162:163]")
    for k in range(2, 16): a(f"v_pk_add_f32 v[6:7], v[6:7], v[{160+2*k}:{161+2*k}]")
    a("v_add_f32 v6, v6, v7")
    def red_batch(v):
        dpp("v_add_f32", v, v, v, "quad_perm:[1,0,3,2]"); dpp("v_add_f32", v, v, v, "quad_perm:[2,3,0,1]")
        xrow("v_add_f32", v, 9)
    red_batch(6)
    a("v_mul_f32 v6, 0x3b000000, v6")
    a("v_mov_b32 v7, 0")
    for k in range(32): a(f"v_sub_f32 v{160+k}, v{160+k}, v6")
    for k in range(32): a(f"v_fmac_f32 v7, v{160+k}, v{160+k}")
    red_batch(7)
    a("v_mul_f32 v7, 0x3b000000, v7")
    rbf(6, 6); rbf(7, 7)
    a("v_add_f32 v7, 0x3727c5ac, v7"); rbf(7, 7)
    a("v_sqrt_f32 v7, v7"); rbf(7, 7)
    a("v_rcp_f32 v7, v7")
    vm(16)
    for k in range(8):
        a(f"v_lshlrev_b32 v8, 16, v{32+k}\nv_and_b32 v9, 0xffff0000, v{32+k}\nv_sub_f32 v8, v8, v6\nv_sub_f32 v9, v9, v6")
        a(f"v_cvt_pk_bf16_f32 v9, v8, v9\nv_lshlrev_b32 v8, 16, v9\nv_and_b32 v9, 0xffff0000, v9")
        a(f"v_mul_f32 v8, v8, v7\nv_mul_f32 v9, v9, v7\nv_cvt_pk_bf16_f32 v{32+k}, v8, v9")
    stamp(6)
    vm(8); transpose(64, 96)
    for t in range(8): mfma(192 + 4 * t, 32, 64 + 4 * t, None)
    vm(0); transpose(96, 128)
    for t in range(8): mfma(192 + 4 * t, 36, 96 + 4 * t, 192 + 4 * t)
    a(f"v_lshrrev_b32 v1, 5, v0\nv_mul_u32_u24 v1, {RS}, v1\nv_and_b32 v2, 1, v12\nv_lshl_add_u32 v1, v2, 13, v1")
    a("v_lshl_add_u32 v1, v5, 5, v1\nv_bfe_u32 v2, v0, 3, 1\nv_lshl_add_u32 v1, v2, 4, v1")
    a(f"s_mul_i32 s48, s59, {2*RS}\ns_lshl_b32 s49, s29, 11\ns_add_u32 s48, s48, s49\ns_lshl_b32 s49, s30, 8\ns_add_u32 s48, s48, s49\ns_add_u32 s48, s48, {QP}")
    for t in range(8): fold(16, t, 192 + 4 * t, 193 + 4 * t)
    a("v_mov_b32 v6, s96")
    for v in range(4): a(f"s_mov_b32 s49, {hex(0x07060500 + v)}\nv_perm_b32 v{16+v}, v{16+v}, v6, s49")
    a("buffer_store_dwordx4 v[16:19], v1, s[36:39], s48 offen sc1")
    set_flag(F_QP, 1)
    stamp(8)
    a("s_branch L_S")

    a("L_W2:")
    a("v_lshlrev_b32 v2, 4, v0")
    a(f"s_lshl_b32 s48, s101, 13\ns_add_u32 s48, s48, s63\ns_add_u32 s48, s48, {QP}\ns_add_u32 s49, s48, 4096")
    a("s_waitcnt lgkmcnt(0)")
    epoch()
    srd(36, 26, WS_BYTES)
    epoch_wait()
    a("s_barrier")
    for k in range(4): a(f"s_bfe_u32 s{52+k}, s96, {hex(0x80000 + 8 * k)}")
    wait_flag(F_QP, 1, sl=2)
    if P["q_gate"]: wait_flag(F_K, P["q_gate"], sl=4)
    stamp(7)
    nap(P["pre_q"])
    if P["noq"]: a("s_branch L_W2q")
    a("L_W2p:")
    for k in range(8): a(f"buffer_load_dwordx4 v[{16+4*k}:{19+4*k}], v2, s[36:39], s{48+(k>>2)} offen offset:{(k&3)*1024} sc1")
    vm(0)
    for r in range(16, 48): a(f"v_xor_b32 v{r}, s{52+(r&3)}, v{r}")
    a("v_or_b32 v15, v16, v17")
    for r in range(18, 48, 2): a(f"v_or3_b32 v15, v15, v{r}, v{r+1}")
    a("v_and_b32 v15, 0xff, v15\nv_cmp_ne_u32 vcc, 0, v15\ns_cbranch_vccz L_W2q")
    nap(P["sl_q"])
    budget()
    a("s_branch L_W2p\nL_W2q:")
    for h in range(2):
        for ks in range(1, 4):
            for z in range(2):
                r = 16 + 4 * h + 2 * z
                a(f"v_pk_add_f32 v[{r}:{r+1}], v[{r}:{r+1}], v[{r+8*ks}:{r+8*ks+1}]")
        a(f"v_cvt_pk_bf16_f32 v{6+2*h}, v{16+4*h}, v{17+4*h}\nv_cvt_pk_bf16_f32 v{7+2*h}, v{18+4*h}, v{19+4*h}")
    a(f"v_lshlrev_b32 v1, 3, v0\nv_add_u32 v1, {L_Q}, v1")
    a("ds_write_b64 v1, v[6:7]\nds_write_b64 v1, v[8:9] offset:512")
    set_flag(F_Q, 1)
    stamp(8)
    a("s_branch L_S")

    a("L_W3:")
    a("s_mov_b32 s31, 0")
    if P["pref"]:
        a("s_getpc_b64 s[48:49]\nL_pc:")
        a(f"s_sub_u32 s48, s48, L_pc-{KNAME}\ns_subb_u32 s49, s49, 0")
        a(f"s_mov_b32 s50, L_fin-{KNAME}-4")
        a("v_lshlrev_b32 v1, 7, v0")
        for k in range(2):
            a(f"v_add_u32 v2, {k*8192}, v1\nv_min_u32 v2, s50, v2\nglobal_load_dword v{16+k}, v2, s[48:49]")
    a("v_lshl_add_u32 v1, v0, 2, v14\nv_mov_b32 v2, 0\nds_write_b32 v1, v2")
    a("s_waitcnt lgkmcnt(0)\ns_barrier")
    def touch(v, p): a(f"global_load_dword v18, {v}, s[{p}:{p+1}] sc1 nt\nglobal_load_dword v18, {v}, s[{p}:{p+1}] sc1")
    if P["c3"]:
        if P["c3"] > 1: wait_flag(F_K, P["c3"], sl=4)
        a("s_bitcmp1_b32 s28, 2\ns_cbranch_scc1 L_W3f")
        a("s_lshr_b32 s55, s2, 4\ns_lshl_b32 s48, s100, 19\ns_lshl_b32 s49, s55, 15\ns_add_u32 s49, s49, s48\ns_add_u32 s49, s49, 384")
        a("v_and_b32 v1, 31, v0\nv_lshl_add_u32 v1, v1, 10, s49\ns_mov_b32 exec_hi, 0")
        touch("v1", 12)
        a("s_mov_b64 exec, -1")
        for k in range(P["alpha"]):
            a(f"s_lshr_b32 s49, s55, 2\ns_lshl_b32 s49, s49, 7\ns_and_b32 s50, s55, 3\ns_lshl_b32 s50, s50, 3\ns_add_u32 s49, s49, s50\ns_add_u32 s49, s49, {96 - 32 * k}\ns_lshl_b32 s49, s49, 10\ns_add_u32 s49, s49, s48")
            a("v_lshl_add_u32 v1, v0, 7, s49")
            touch("v1", 12)
        a("s_branch L_S")
        a("L_W3f:")
        a("s_lshr_b32 s55, s2, 3\ns_and_b32 s52, s28, 3\ns_mul_i32 s52, s52, 7\ns_or_b32 s49, s52, 3\ns_cmp_eq_u32 s52, 0\ns_cselect_b32 s50, 0, 4")
        a("v_bfe_u32 v1, v0, 3, 1\nv_mul_u32_u24 v1, s50, v1\nv_add_u32 v1, s49, v1\nv_bfe_u32 v3, v1, 2, 1")
        a("v_and_b32 v2, 7, v0\nv_lshl_add_u32 v2, v2, 1, v3\nv_mul_u32_u24 v2, 3584, v2\nv_lshl_add_u32 v2, v1, 7, v2")
        a(f"s_mul_i32 s51, s55, {16*3584}\nv_add_u32 v2, s51, v2")
        a("s_mov_b64 exec, 0xffff"); touch("v2", 16); touch("v2", 18)
        a("s_mov_b64 exec, -1")
        if P["beta"]:
            nr = 4 * P["beta"]
            a(f"s_lshr_b32 s48, s55, 3\ns_lshl_b32 s48, s48, 7\ns_and_b32 s49, s55, 7\ns_mul_i32 s49, s49, {nr}\ns_add_u32 s48, s48, s49\ns_add_u32 s48, s48, {128 - 8 * nr}")
            a("s_mul_i32 s48, s48, 3584\ns_lshl_b32 s52, s52, 7\ns_add_u32 s48, s48, s52")
            a(f"v_lshrrev_b32 v2, 3, v0\nv_min_u32 v2, {nr - 1}, v2\nv_mul_u32_u24 v2, 3584, v2\nv_and_b32 v3, 7, v0\nv_min_u32 v3, 6, v3\nv_lshl_add_u32 v2, v3, 7, v2\nv_add_u32 v2, s48, v2")
            if nr == 4: a("s_mov_b32 exec_hi, 0")
            touch("v2", 16); touch("v2", 18)
            a("s_mov_b64 exec, -1")

    a("L_S:")
    srd(40, 8, 0x8000000); srd(36, 26, WS_BYTES)
    a("v_lshlrev_b32 v1, 4, v0")
    a(f"s_mul_i32 s48, s31, {P['SJ']}\ns_add_u32 s48, s48, s60")
    for tau in range(8):
        a(f"s_add_u32 s49, s62, {tau}\ns_and_b32 s49, s49, 7\ns_lshl_b32 s49, s49, 12\ns_add_u32 s{52+tau}, s49, s48")
    a(f"v_lshrrev_b32 v2, 2, v13\nv_lshl_add_u32 v2, v12, 4, v2\nv_lshlrev_b32 v2, 4, v2\ns_lshl_b32 s49, s31, 10\ns_add_u32 s49, s49, {L_P}\nv_add_u32 v2, s49, v2")
    a(f"s_lshl_b32 s49, s31, 11\ns_add_u32 s49, s49, {L_DEP - 2048}\nv_lshl_add_u32 v3, v0, 2, s49")
    a("s_lshl_b32 s49, s31, 2\nv_add_u32 v5, s49, v14")
    a(f"s_lshl_b32 s48, s101, 13\ns_lshl_b32 s49, s30, 10\ns_add_u32 s48, s48, s49\ns_add_u32 s48, s48, s63")
    for t in range(8): a(f"v_mov_b32 v{32+4*t}, 0")
    a("s_add_u32 s50, s31, 1")
    wait_flag(F_TURN, "s50")
    stamp(1)
    for tau in range(8):
        if 4 * tau > P["thrV"]: vm(P["thrV"])
        for q in range(4):
            r = 96 + 16 * tau + 4 * q
            a(f"buffer_load_dwordx4 v[{r}:{r+3}], v1, s[40:43], s{52+tau} offen offset:{q*1024} nt")
    a("s_add_u32 s51, s31, 2")
    set_flag(F_TURN, "s51")
    if P["prio"]: a("s_setprio 3")
    stamp(2)
    vm(24); transpose(64, 96)
    wait_flag(F_P, 1, addr="v5")
    for q in range(4): a(f"ds_read_b128 v[{16+4*q}:{19+4*q}], v2 offset:{64*q}")
    a("s_cmp_eq_u32 s31, 0\ns_cbranch_scc1 L_Sc")
    wait_flag(F_DEP, "s31")
    for t in range(8): a(f"ds_read_b32 v{32+4*t}, v3 offset:{256*t}")
    a("L_Sc:")
    lgkm(0)
    stamp(3)
    for q in range(4):
        if q in (1, 2): vm(24 - 8 * q); transpose(64 + 32 * q, 96 + 32 * q)
        if q == 3:
            for p in range(4):
                vm(6 - 2 * p); transpose(160, 192, [p])
            stamp(4)
        for t in range(8): mfma(32 + 4 * t, 16 + 4 * q, 64 + 32 * q + 4 * t, 32 + 4 * t)
    a("s_cmp_eq_u32 s31, 3\ns_cbranch_scc1 L_S3")
    for k in range(4): a(f"ds_write2st64_b32 v3, v{32+8*k}, v{36+8*k} offset0:{8+2*k} offset1:{9+2*k}")
    set_flag(F_DEP, "s50")
    a("s_branch L_exit")
    a("L_S3:")
    for k in range(4): a(f"v_cvt_pk_bf16_f32 v{8+k}, v{32+8*k}, v{36+8*k}\nv_min_u32 v{8+k}, -2, v{8+k}")
    a(f"buffer_store_dwordx4 v[8:11], v1, s[36:39], s48 offen{P['st1']}")
    set_flag(F_TURN, 6)
    stamp(5)
    a("s_branch L_exit")

    a("L_T:")
    fr = P["free"]
    a("v_bfe_u32 v11, v0, 3, 1\nv_lshl_add_u32 v11, v11, 2, v12")
    a(f"s_cmp_gt_u32 s30, {fr}\ns_cselect_b32 s97, 1, 0\ns_sub_u32 s97, s30, s97")
    a("s_lshl_b32 s97, s97, 1\ns_add_u32 s97, s97, s101\ns_and_b32 s61, s28, 3\ns_mul_i32 s61, s61, 14\ns_add_u32 s61, s61, s97\ns_lshl_b32 s53, s31, 8")
    a(f"s_and_b32 s62, s29, 2\ns_lshl_b32 s52, s62, 12\ns_add_u32 s52, s52, {DP}")
    a(f"s_lshr_b32 s51, s100, 2\ns_add_u32 s51, s51, 14\ns_mul_i32 s51, s51, {RS}\ns_and_b32 s49, s100, 3\ns_lshl_b32 s49, s49, 10\ns_add_u32 s51, s51, s49")
    a(f"s_add_u32 s51, s51, s52\ns_lshl_b32 s49, s30, 7\ns_add_u32 s51, s51, s49")
    a(f"s_add_u32 s55, s52, s53\ns_lshr_b32 s54, s61, 2\ns_mul_i32 s54, s54, {RS}\ns_and_b32 s49, s61, 3\ns_lshl_b32 s49, s49, 10\ns_add_u32 s54, s54, s49")
    a(f"s_add_u32 s54, s54, s55\ns_add_u32 s55, s55, {14*RS}")
    a(f"s_lshl_b32 s60, s101, 13\ns_add_u32 s60, s60, s53\ns_add_u32 s60, s60, s63\ns_lshl_b32 s49, s30, 10\ns_add_u32 s50, s60, s49")
    a("v_lshlrev_b32 v246, 12, v12\nv_lshl_add_u32 v246, v13, 4, v246")
    a("v_mov_b32 v16, -1\nv_mov_b32 v17, -1\nv_mov_b32 v18, -1\nv_mov_b32 v19, -1")
    a(f"v_and_b32 v1, 3, v0\nv_lshlrev_b32 v1, 8, v1\nv_lshl_add_u32 v1, v12, 4, v1\nv_add_u32 v1, {L_Q}, v1")
    a("v_and_b32 v8, 3, v0\nv_lshlrev_b32 v8, 2, v8\nv_lshrrev_b32 v9, 2, v13\nv_add_u32 v8, v8, v9\nv_lshlrev_b32 v8, 8, v8")
    a("s_lshl_b32 s48, s31, 15\nv_add_u32 v8, s48, v8")
    for m in range(4):
        a(f"v_add_u32 v9, {4*m}, v12\nv_xor_b32 v9, v9, v13\nv_lshl_add_u32 v{4+m}, v9, 4, v8")
    a("s_waitcnt lgkmcnt(0)")
    epoch()
    srd(36, 26, WS_BYTES)
    a(f"s_mov_b64 exec, 0xffff\nbuffer_store_dwordx4 v[16:19], v246, s[36:39], s50 offen{P['stc']}")
    a("s_bitcmp1_b32 s28, 2\ns_cbranch_scc1 L_Tc1")
    a("s_cmp_lg_u32 s31, 3\ns_cbranch_scc1 L_Tc2")
    a(f"s_mov_b64 exec, 0x00ff00ff\nbuffer_store_dwordx4 v[16:19], v246, s[36:39], s51 offen{P['stc']}")
    a("s_branch L_Tc2")
    a(f"L_Tc1:\ns_cmp_eq_u32 s30, {fr}\ns_cbranch_scc1 L_Tc2")
    a(f"s_mov_b32 exec_lo, -1\nbuffer_store_dwordx4 v[16:19], v246, s[36:39], s54 offen{P['stc']}")
    a("L_Tc2:\ns_mov_b64 exec, -1")
    epoch_wait()
    a("s_barrier")

    wait_flag(F_Q, 1, sl=2)
    stamp(3)
    for m in range(4): a(f"ds_read_b128 v[{16+4*m}:{19+4*m}], v1 offset:{64*m}")
    a("s_add_u32 s48, s31, 1\ns_lshl_b32 s48, s48, 3")
    wait_flag(F_K, "s48", sl=2)
    stamp(4)
    def kread(tau):
        for m in range(4):
            r = 96 + 16 * tau + 4 * m
            a(f"ds_read_b128 v[{r}:{r+3}], v{4+m} offset:{4096*tau}")
    kread(0); kread(1)
    for tau in range(8):
        if tau + 2 < 8: kread(tau + 2)
        lgkm(8 if tau < 6 else 4 if tau == 6 else 0)
        for m in range(4): mfma(32 + 4 * tau, 96 + 16 * tau + 4 * m, 16 + 4 * m, None if m == 0 else 32 + 4 * tau)
    for q in range(1, 4):
        for k in range(8): dpp("v_mov_b32", 32 + k, 32 + 8 * q + k, None, "quad_perm:[0,1,2,3]", hex(1 << q))
    a("s_mov_b32 s50, 0x3db504f3\ns_mov_b32 s59, 0x3fb8aa3b")
    for k in range(0, 8, 2):
        x, y = 32 + k, 33 + k
        a(f"v_cvt_pk_bf16_f32 v{y}, v{x}, v{y}\nv_lshlrev_b32 v{x}, 16, v{y}\nv_and_b32 v{y}, 0xffff0000, v{y}")
        a(f"v_mul_f32 v{x}, s50, v{x}\nv_mul_f32 v{y}, s50, v{y}")
        a(f"v_cvt_pk_bf16_f32 v{y}, v{x}, v{y}\nv_lshlrev_b32 v{x}, 16, v{y}\nv_and_b32 v{y}, 0xffff0000, v{y}")
    a("v_max3_f32 v8, v32, v33, v34\nv_max3_f32 v8, v8, v35, v36\nv_max3_f32 v8, v8, v37, v38\nv_max_f32 v8, v8, v39")
    red_head("v_max_f32", 8)
    a(f"v_and_b32 v5, 3, v0\nv_lshlrev_b32 v5, 4, v5\nv_add_u32 v5, {L_M}, v5\ns_lshl_b32 s48, s31, 2\nv_add_u32 v4, s48, v5")
    vm(0)
    a("s_mov_b64 exec, 15\nds_write_b32 v4, v8")
    add_flag(F_M)
    wait_flag(F_M, 4)
    a("ds_read_b128 v[16:19], v5")
    lgkm(0)
    a("v_max3_f32 v8, v16, v17, v18\nv_max_f32 v8, v8, v19")
    for k in range(8): a(f"v_sub_f32 v{40+k}, v{32+k}, v8")
    for k in range(8): a(f"v_mul_f32 v{40+k}, s59, v{40+k}")
    for k in range(8): a(f"v_exp_f32 v{40+k}, v{40+k}")
    a("v_lshlrev_b32 v4, 4, v0")
    for k in range(4): a(f"v_cvt_pk_bf16_f32 v{16+k}, v{40+2*k}, v{41+2*k}")
    a(f"s_lshl_b32 s48, s31, 10\ns_add_u32 s48, s48, {L_P}\nv_add_u32 v5, s48, v4\nds_write_b128 v5, v[16:19]")
    a("s_lshl_b32 s48, s31, 2\nv_add_u32 v5, s48, v14")
    set_flag(F_P, 1, addr="v5")
    stamp(5)
    a("v_add_f32 v9, v40, v41")
    for k in range(2, 8): a(f"v_add_f32 v9, v9, v{40+k}")
    red_head("v_add_f32", 9)
    a(f"s_lshl_b32 s58, s101, 11\ns_add_u32 s58, s58, s63\ns_add_u32 s58, s58, {ST}")
    a("s_lshl_b32 s49, s30, 2\ns_add_u32 s49, s49, s31\ns_lshl_b32 s49, s49, 6\ns_add_u32 s49, s49, s58")
    a("v_mov_b32 v20, v8\nv_mov_b32 v21, s96\nv_mov_b32 v22, v9\nv_mov_b32 v23, s96")
    a("s_mov_b64 exec, 15\nbuffer_store_dwordx4 v[20:23], v4, s[36:39], s49 offen sc1\ns_mov_b64 exec, -1")
    a("s_lshl_b32 s57, s31, 15")
    a("v_bfe_u32 v8, v0, 3, 1\nv_and_b32 v9, 1, v12\nv_lshl_add_u32 v8, v9, 1, v8")
    a("v_lshlrev_b32 v9, 10, v12\nv_bfe_u32 v10, v0, 2, 2\nv_lshl_add_u32 v9, v10, 7, v9\nv_and_b32 v10, 3, v0\nv_lshl_add_u32 v9, v10, 3, v9\nv_add_u32 v9, s57, v9")
    for t in range(4): a(f"v_xor_b32 v10, {t}, v8\nv_lshl_add_u32 v{4+t}, v10, 5, v9")
    a("s_add_u32 s56, s57, 16384\nv_lshl_add_u32 v9, v13, 8, s56")
    for k in range(4):
        a(f"v_add_u32 v10, {4*k}, v12\nv_xor_b32 v10, v10, v13\nv_lshl_add_u32 v{60+k}, v10, 4, v9\nv_lshlrev_b32 v10, 4, v10\nv_lshl_add_u32 v{252+k}, v12, 10, v10")
    a("v_bfe_u32 v8, v0, 4, 1\nv_lshlrev_b32 v8, 1, v8\nv_and_b32 v9, 7, v0\nv_xor_b32 v8, v8, v9\nv_lshrrev_b32 v9, 3, v0")
    a("s_bitcmp1_b32 s28, 2\ns_cbranch_scc1 L_F")

    def wreads(ks):
        for t in range(4):
            for hh in range(2):
                r = 64 + 16 * ks + 4 * t + 2 * hh
                a(f"ds_read_b64_tr_b16 v[{r}:{r+1}], v{4+t} offset:{4096*ks + 512*hh}")
    def gather_dma(soffs):
        for k in range(4):
            a(f"s_add_u32 m0, s56, {1024*k}")
            a(f"buffer_load_dwordx4 v{252+k}, s[36:39], {soffs[k]} offen sc1 lds")
    def gather_finish(soff, sleep):
        vm(0)
        for k in range(4): a(f"ds_read_b128 v[{16+4*k}:{19+4*k}], v{60+k}")
        a("s_waitcnt lgkmcnt(0)")
        poll([f"buffer_load_dwordx4 v[{16+4*ks}:{19+4*ks}], v1, s[36:39], {soff} offen offset:{64*ks} sc1" for ks in range(4)], range(16, 32), sleep, issued=True)
    def gemv(post):
        for t in range(4):
            for ks in range(4):
                mfma(32 + 4 * t, 16 + 4 * ks, 64 + 16 * ks + 4 * t, None if ks == 0 else 32 + 4 * t)
                post(t, ks)

    srd(40, 12, 0x400000)
    a("v_lshlrev_b32 v2, 10, v9\nv_lshl_add_u32 v2, v8, 4, v2\nv_xor_b32 v3, 64, v2")
    a(f"s_lshl_b32 s63, s100, 1\ns_lshr_b32 s49, s29, 1\ns_add_u32 s63, s63, s49\ns_mul_i32 s63, s63, {RS}\ns_add_u32 s60, s63, s53\ns_add_u32 s58, s63, {ST}")
    a("s_add_u32 s61, s60, 4096\ns_add_u32 s54, s60, 8192\ns_add_u32 s55, s60, 12288")
    a("s_lshl_b32 s48, s100, 19\ns_lshl_b32 s49, s31, 17\ns_add_u32 s48, s48, s49\ns_lshl_b32 s49, s30, 7\ns_add_u32 s48, s48, s49")
    a("s_mov_b32 s44, s4\ns_mov_b32 s45, s5\ns_cmp_eq_u32 s100, 0\ns_cselect_b32 s46, 4096, 0\ns_mov_b32 s47, 0x20000")
    a("s_lshl_b32 s50, s62, 10\ns_add_u32 s50, s50, s49")
    a("v_lshrrev_b32 v8, 5, v0\nv_bfe_u32 v9, v0, 1, 4\nv_lshlrev_b32 v10, 3, v9\nv_lshl_add_u32 v11, v8, 10, v10\nv_lshl_add_u32 v59, v8, 12, v10")
    a("buffer_load_dwordx2 v[56:57], v11, s[44:47], s50 offen")
    a(f"v_and_b32 v10, 1, v0\nv_lshl_add_u32 v58, v8, 1, v10\nv_mul_u32_u24 v58, 320, v58\nv_lshl_add_u32 v58, v9, 4, v58\nv_add_u32 v58, {L_RED}, v58")
    a(f"v_mul_u32_u24 v247, 320, v12\nv_lshl_add_u32 v247, v13, 2, v247\ns_mul_i32 s49, s31, 1280\ns_add_u32 s49, s49, {L_RED}\nv_add_u32 v247, s49, v247")
    a("v_lshlrev_b32 v11, 6, v0\ns_lshl_b32 s49, s31, 4\ns_add_u32 s58, s58, s49")
    a("v_lshlrev_b32 v1, 10, v13\nv_lshl_add_u32 v1, v12, 4, v1")
    wait_flag(F_TURN, P["gS"], sl=1)
    a("L_Tsp:")
    a("buffer_load_dwordx4 v[32:35], v11, s[36:39], s58 offen sc1")
    vm(0)
    a("v_xor_b32 v33, s96, v33\nv_xor_b32 v35, s96, v35\nv_or_b32 v15, v33, v35")
    a("v_cmp_ne_u32 vcc, 0, v15\ns_cbranch_vccz L_Tsq")
    nap(P["sl_st"])
    budget()
    a("s_branch L_Tsp\nL_Tsq:")
    a("v_mov_b32 v8, v32")
    dpp("v_max_f32", 8, 8, 8, "row_ror:4"); dpp("v_max_f32", 8, 8, 8, "row_ror:8")
    a("v_mov_b32 v10, v8\nv_permlane16_swap_b32 v8, v10\nv_max_f32 v8, v8, v10")
    a("v_sub_f32 v32, v32, v8\nv_mul_f32 v32, s59, v32\nv_exp_f32 v32, v32\nv_mul_f32 v9, v32, v34")
    for ctl in ("quad_perm:[1,0,3,2]", "quad_perm:[2,3,0,1]", "row_ror:4", "row_ror:8"): dpp("v_add_f32", 9, 9, 9, ctl)
    a("v_mov_b32 v10, v9\nv_permlane16_swap_b32 v9, v10\nv_add_f32 v9, v9, v10")
    a("v_rcp_f32 v9, v9\nv_mul_f32 v32, v32, v9")
    for r in range(4): dpp("v_mov_b32", 48 + r, 32, None, f"row_newbcast:{4*r}")
    a("v_lshlrev_b32 v52, 16, v56\nv_and_b32 v53, 0xffff0000, v56\nv_lshlrev_b32 v54, 16, v57\nv_and_b32 v55, 0xffff0000, v57")
    stamp(7)
    wait_flag(F_TURN, P["gW"], sl=1)
    cap = P["capW"]
    for n in range(16):
        a(f"s_add_u32 m0, s57, {1024*n}")
        if n >= cap and n % 2 == 0: vm(cap - 2)
        a(f"buffer_load_dwordx4 v{2+(n&1)}, s[40:43], s48 offen{P['ntw']} lds")
        if n < 15: a("s_add_u32 s48, s48, 8192")
    stamp(1)
    go = ["s60", "s61", "s54", "s55"]
    ex = 4 if P["pg"] else 0
    if P["pg"]: gather_dma(go)
    for ks in range(4):
        vm(12 - 4 * ks + ex)
        if ks == 3 and not P["pg"]: gather_dma(go)
        if ks: a("s_waitcnt lgkmcnt(0)")
        wreads(ks)
    stamp(6)
    gather_finish("s60", P["sl_h1"])
    stamp(8)
    def scale(t, r): a(f"v_mul_f32 v{8+t}, v{32+4*t}, v48" if r == 0 else f"v_fmac_f32 v{8+t}, v{32+4*t+r}, v{48+r}")
    def wpost(t, ks):
        if t == 3: scale(0, ks); scale(1, ks)
    gemv(wpost)
    a("ds_write2_b32 v247, v8, v9 offset0:0 offset1:16")
    for t in (2, 3):
        for r in range(4): scale(t, r)
    a("ds_write2_b32 v247, v10, v11 offset0:32 offset1:48\ns_waitcnt lgkmcnt(0)\ns_barrier")
    a("s_cmp_lg_u32 s31, 3\ns_cbranch_scc1 L_exit")
    for k in range(4): a(f"ds_read_b128 v[{32+4*k}:{35+4*k}], v58 offset:{1280*k}")
    lgkm(2)
    a("v_pk_add_f32 v[32:33], v[32:33], v[36:37]\nv_pk_add_f32 v[34:35], v[34:35], v[38:39]")
    lgkm(0)
    a("v_pk_add_f32 v[40:41], v[40:41], v[44:45]\nv_pk_add_f32 v[42:43], v[42:43], v[46:47]")
    a("v_pk_add_f32 v[32:33], v[32:33], v[40:41]\nv_pk_add_f32 v[34:35], v[34:35], v[42:43]")
    for v in range(4): dpp("v_add_f32", 32 + v, 32 + v, 32 + v, "quad_perm:[1,0,3,2]")
    a("v_pk_add_f32 v[32:33], v[32:33], v[52:53]\nv_pk_add_f32 v[34:35], v[34:35], v[54:55]")
    a("v_cvt_pk_bf16_f32 v36, v32, v33\nv_cvt_pk_bf16_f32 v37, v34, v35\nv_min_u32 v36, -2, v36\nv_min_u32 v37, -2, v37")
    dpp("v_mov_b32", 38, 36, None, "quad_perm:[2,3,2,3]"); dpp("v_mov_b32", 39, 37, None, "quad_perm:[2,3,2,3]")
    a("s_mov_b32 exec_lo, 0x11111111\ns_mov_b32 exec_hi, 0x11111111")
    a("buffer_store_dwordx4 v[36:39], v59, s[36:39], s51 offen sc1")
    stamp(9)
    a("s_branch L_exit")

    a("L_F:")
    a(f"s_cmp_eq_u32 s30, {fr}\ns_cbranch_scc1 L_exit")
    a("v_mul_u32_u24 v10, 3584, v9\nv_and_b32 v11, 3, v8\nv_lshl_add_u32 v10, v11, 4, v10")
    a(f"s_mul_i32 s49, s31, {128*3584}\ns_lshl_b32 s50, s61, 6\ns_add_u32 s49, s49, s50\nv_add_u32 v10, s49, v10\nv_mov_b32 v11, 0")
    a("v_lshl_add_u64 v[224:225], v[10:11], 0, s[16:17]\nv_lshl_add_u64 v[226:227], v[10:11], 0, s[18:19]")
    a("s_mov_b32 exec_lo, 0xf0f0f0f0\ns_mov_b32 exec_hi, 0xf0f0f0f0")
    a("v_lshl_add_u64 v[224:225], v[10:11], 0, s[18:19]\nv_lshl_add_u64 v[226:227], v[10:11], 0, s[16:17]\ns_mov_b64 exec, -1")
    a(f"s_mov_b32 s98, {8*3584}\ns_mov_b32 s99, 0\nv_lshl_add_u64 v[226:227], v[226:227], 0, s[98:99]\ns_mov_b32 s98, {16*3584}")
    srd(40, 20, 1792 * 1024); srd(44, 22, 4096)
    a("v_lshlrev_b32 v228, 12, v12\nv_lshl_add_u32 v228, v13, 4, v228")
    a("s_lshl_b32 s49, s61, 15\ns_add_u32 s49, s49, s53\ns_add_u32 s48, s49, 16384")
    a(f"s_mul_i32 s50, s31, 320\ns_add_u32 s50, s50, {L_CS}\nv_lshl_add_u32 v247, v13, 4, s50")
    for k in range(4): a(f"v_mov_b32 v{240+k}, 0x3f803f80")
    a("v_lshrrev_b32 v229, 2, v0\nv_lshlrev_b32 v229, 8, v229")
    a(f"s_lshl_b32 s58, s31, 1\ns_lshr_b32 s50, s29, 1\ns_add_u32 s58, s58, s50\ns_mul_i32 s58, s58, {RS}\ns_add_u32 s58, s58, {ST + 4}")
    a(f"v_bfe_u32 v1, v0, 2, 1\nv_mul_u32_u24 v1, {RS}, v1\nv_and_b32 v3, 3, v0\nv_lshl_add_u32 v1, v3, 10, v1\nv_bfe_u32 v3, v0, 3, 1\nv_lshl_add_u32 v1, v3, 12, v1\nv_lshl_add_u32 v1, v12, 4, v1")
    a(f"s_add_u32 s60, s55, {RS}\ns_add_u32 s63, s55, 4096\ns_add_u32 s51, s55, {RS + 4096}")
    a(f"v_mul_u32_u24 v2, 320, v12\nv_lshl_add_u32 v2, v13, 4, v2\ns_mul_i32 s50, s31, 1280\ns_add_u32 s50, s50, {L_RED}\nv_add_u32 v2, s50, v2")
    a("v_and_b32 v8, 3, v0\nv_lshl_add_u32 v8, v12, 2, v8\nv_lshlrev_b32 v8, 4, v8\nv_bfe_u32 v9, v0, 3, 1\nv_bfe_u32 v10, v0, 2, 1")
    a(f"v_mul_u32_u24 v230, 640, v9\nv_add3_u32 v230, v230, v8, v14\nv_add_u32 v230, {L_CS - L_FLAG}, v230")
    a(f"v_lshl_add_u32 v231, v10, 1, v9\nv_mul_u32_u24 v231, 320, v231\nv_add_u32 v231, v231, v8\nv_add_u32 v231, {L_RED}, v231")
    a(f"v_lshlrev_b32 v3, 5, v10\nv_add_u32 v3, {L_STAT}, v3")
    a(f"s_lshl_b32 s50, s31, 2\ns_add_u32 s50, s50, {L_STAT}\nv_lshl_add_u32 v59, v12, 4, s50")
    a(f"v_lshrrev_b32 v244, 2, v0\nv_mul_u32_u24 v244, {RS}, v244\nv_and_b32 v245, 3, v0\nv_lshl_add_u32 v244, v245, 10, v244\nv_lshlrev_b32 v245, 1, v0")
    a("s_and_b32 s50, s28, 3\ns_lshl_b32 s50, s50, 1\ns_and_b32 s100, s31, 1\ns_add_u32 s50, s50, s100\ns_lshl_b32 s50, s50, 7\ns_lshl_b32 s100, s97, 4\ns_add_u32 s100, s100, s50")
    a("s_lshr_b32 s50, s31, 1\ns_add_u32 s101, s62, s50\ns_lshl_b32 s101, s101, 10\ns_add_u32 s101, s101, s100")
    a("s_lshl_b32 s50, s50, 12\ns_add_u32 s100, s100, s50\ns_add_u32 s100, s100, s52")
    a("v_lshrrev_b32 v8, 1, v13\nv_and_b32 v9, 1, v0\nv_lshlrev_b32 v9, 4, v9\ns_mov_b32 s50, 0x3f80\nv_lshlrev_b32 v9, v9, s50")
    for k in range(4): a(f"v_cmp_eq_u32 vcc, {k}, v8\nv_cndmask_b32 v{248+k}, 0, v9, vcc")
    wait_flag(F_TURN, P["gF"], sl=1)
    a("buffer_load_dword v58, v229, s[36:39], s58 offen sc1")
    cap = P["capF"]
    for n in range(16):
        if n == P["nF6"]: wait_flag(F_TURN, 6, sl=1)
        a(f"s_add_u32 m0, s57, {1024*n}")
        if cap <= n < P["nF6"]: vm(cap - 1)
        r = 224 + 2 * (n & 1)
        a(f"global_load_lds_dwordx4 v[{r}:{r+1}], off{P['ntw']}")
        if n < 14: a(f"v_lshl_add_u64 v[{r}:{r+1}], v[{r}:{r+1}], 0, s[98:99]")
    for jj in range(8):
        r = 192 + 4 * jj
        a(f"buffer_load_dwordx4 v[{r}:{r+3}], v228, s[40:43], s{48 if jj & 1 else 49} offen offset:{(jj>>1)*1024}{P['ntw']}")
    stamp(1)
    vm(24)
    a("L_Fcp:")
    a("v_cmp_ne_u32 vcc, s96, v58\ns_cbranch_vccz L_Fcq")
    nap(P["sl_st"])
    budget()
    a("buffer_load_dword v58, v229, s[36:39], s58 offen sc1")
    vm(0)
    a("s_branch L_Fcp\nL_Fcq:")
    add_flag(F_GO)
    stamp(7)
    def csum(ks):
        for t in range(4): mfma(32 + 4 * t, 240, 64 + 16 * ks + 4 * t, None if ks == 0 else 32 + 4 * t)
    for ks in range(4):
        vm(20 - 4 * ks)
        a("s_waitcnt lgkmcnt(0)")
        wreads(ks)
        if ks: csum(ks - 1)
    wait_flag(F_GO, 4, sl=1)
    csum(3)
    stamp(2)
    wait_flag(F_TURN, P["g2"], sl=1)
    nap(P["pre2"])
    gather_dma(["s55", "s60", "s63", "s51"])
    for t in range(4): a(f"v_mov_b32 v{8+t}, v{32+4*t}")
    a("s_mov_b64 exec, 0xffff\nds_write_b128 v247, v[8:11]\ns_mov_b64 exec, -1")
    vm(4); transpose(128, 192)
    stamp(6)
    gather_finish("s55", P["sl_h2"])
    stamp(10)
    for ks in range(4): mfma(232, 16 + 4 * ks, 16 + 4 * ks, None if ks == 0 else 232)
    for ks in range(4): mfma(236, 16 + 4 * ks, 240, None if ks == 0 else 236)
    def rsum(t): a(f"v_add_f32 v{8+t}, v{32+4*t}, v{33+4*t}\nv_add_f32 v{34+4*t}, v{34+4*t}, v{35+4*t}\nv_add_f32 v{8+t}, v{8+t}, v{34+4*t}")
    def fpost(t, ks):
        n = 4 * t + ks
        if n == 3: a("v_add_f32 v232, v232, v233\nv_add_f32 v234, v234, v235")
        if n == 4: a("v_add_f32 v232, v232, v234")
        if n == 6: dpp("v_add_f32", 232, 232, 232, "quad_perm:[1,0,3,2]"); a("v_add_f32 v236, v236, v237")
        if n == 7: dpp("v_add_f32", 232, 232, 232, "quad_perm:[2,3,0,1]"); a("v_add_f32 v238, v238, v239")
        if n == 8: dpp("v_add_f32", 232, 232, 232, "row_half_mirror"); a("v_add_f32 v236, v236, v238")
        if n == 10: a("v_permlane16_swap_b32 v232, v236\nv_add_f32 v232, v232, v236")
        if n == 12: rsum(0)
        if n == 14: rsum(1)
    gemv(fpost)
    a("s_mov_b32 exec_lo, 0x00010001\ns_mov_b32 exec_hi, 0x01000100\nds_write_b32 v59, v232\ns_mov_b64 exec, -1")
    rsum(2); rsum(3)
    a("ds_write_b128 v2, v[8:11]\ns_waitcnt lgkmcnt(0)\ns_barrier")
    stamp(11)
    a("ds_read_b128 v[48:51], v3\nds_read_b128 v[52:55], v3 offset:16")
    a("ds_read_b128 v[16:19], v230\nds_read_b128 v[20:23], v230 offset:320")
    for k in range(4): a(f"ds_read_b128 v[{32+4*k}:{35+4*k}], v231 offset:{1280*k}")
    lgkm(6)
    a("v_pk_add_f32 v[48:49], v[48:49], v[50:51]\nv_pk_add_f32 v[52:53], v[52:53], v[54:55]")
    a("v_add_f32 v48, v48, v49\nv_add_f32 v52, v52, v53")
    a("v_mul_f32 v52, 0x3b000000, v52\nv_mul_f32 v48, 0x3b000000, v48")
    a("v_fma_f32 v48, -v52, v52, v48\nv_max_f32 v48, 0, v48\nv_add_f32 v48, 0x3727c5ac, v48\nv_rsq_f32 v48, v48")
    lgkm(4)
    a("v_pk_add_f32 v[16:17], v[16:17], v[20:21]\nv_pk_add_f32 v[18:19], v[18:19], v[22:23]")
    lgkm(2)
    a("v_pk_add_f32 v[32:33], v[32:33], v[36:37]\nv_pk_add_f32 v[34:35], v[34:35], v[38:39]")
    for v in range(4): a(f"v_fma_f32 v{32+v}, -v52, v{16+v}, v{32+v}")
    a("v_mul_f32 v49, 0xbfb8aa3b, v48\nv_mul_f32 v48, v48, v48")
    lgkm(0)
    a("v_pk_add_f32 v[40:41], v[40:41], v[44:45]\nv_pk_add_f32 v[42:43], v[42:43], v[46:47]")
    a("v_pk_add_f32 v[32:33], v[32:33], v[40:41]\nv_pk_add_f32 v[34:35], v[34:35], v[42:43]")
    for v in range(4): dpp("v_add_f32", 32 + v, 32 + v, 32 + v, "row_ror:8")
    a("v_mul_f32 v36, v49, v32\nv_mul_f32 v37, v49, v33\nv_exp_f32 v36, v36\nv_exp_f32 v37, v37")
    a("v_mul_f32 v32, v32, v48\nv_mul_f32 v33, v33, v48\nv_add_f32 v36, 1.0, v36\nv_add_f32 v37, 1.0, v37")
    a("v_rcp_f32 v36, v36\nv_rcp_f32 v37, v37\nv_mul_f32 v32, v32, v34\nv_mul_f32 v33, v33, v35")
    a("v_mul_f32 v32, v32, v36\nv_mul_f32 v33, v33, v37\nv_cvt_pk_bf16_f32 v20, v32, v33")
    for p in range(4): dpp("v_mov_b32", 16 + p, 20, None, f"quad_perm:[{p},{p},{p},{p}]")
    for t in range(8): mfma(64 + 4 * t, 16, 128 + 4 * t, None)
    for k in range(4): a(f"v_cvt_pk_bf16_f32 v{8+k}, v{64+8*k}, v{68+8*k}\nv_min_u32 v{8+k}, -2, v{8+k}")
    a("s_mov_b32 exec_hi, 0\nbuffer_store_dwordx4 v[8:11], v246, s[36:39], s54 offen sc1\ns_mov_b64 exec, -1")
    stamp(12)

    a("s_cmp_ge_u32 s97, 8\ns_cbranch_scc1 L_exit")
    nap(P["pre3"])
    poll(["buffer_load_dwordx4 v[16:19], v244, s[36:39], s100 offen sc1"], range(16, 20), P["sl_h3"])
    stamp(13)
    mfma(24, 16, 248, None)
    a("v_pk_add_f32 v[24:25], v[24:25], v[26:27]\nv_add_f32 v24, v24, v25")
    xrow("v_add_f32", 24, 25)
    a("v_cvt_pk_bf16_f32 v24, v24, v24")
    a("s_mov_b64 exec, 0xff\nbuffer_store_short v24, v245, s[44:47], s101 offen")
    a("s_xor_b32 s48, s2, 4\ns_or_b32 s48, s48, s31\ns_cbranch_scc1 L_Tend")
    a(f"s_mov_b64 exec, 1\nv_mov_b32 v25, s96\ns_mov_b32 s48, {hex(EP)}\nbuffer_store_dword v25, v245, s[36:39], s48 offen sc1")
    a("L_Tend:")
    stamp(14)

    a("L_exit:")
    if P.get("pad"):
        a("s_cmp_lt_u32 s3, 4\ns_cbranch_scc1 L_padd")
        a(f"L_pad:\ns_memrealtime s[98:99]\ns_waitcnt lgkmcnt(0)\ns_sub_u32 s98, s98, s100\ns_cmp_lt_u32 s98, {P['pad']}\ns_cbranch_scc1 L_pad\nL_padd:")
    if dbg:
        stamp(15)
        a("s_mov_b64 exec, -1\ns_waitcnt lgkmcnt(0)")
        for k in range(16): a(f"v_mov_b32 v{16+k}, s{64+2*k}")
        a(f"s_and_b32 s48, s3, 3\ns_lshl_b32 s48, s48, 6\ns_add_u32 s49, s48, {L_FLAG + 256}\nv_mov_b32 v2, s49\nv_mov_b32 v1, 0\ns_mov_b64 exec, 1")
        a("s_cmp_ge_u32 s3, 4\ns_cbranch_scc1 L_dT")
        for k in range(4): a(f"ds_write_b128 v2, v[{16+4*k}:{19+4*k}] offset:{16*k}")
        a("s_waitcnt lgkmcnt(0)\ns_endpgm\nL_dT:\ns_barrier")
        for k in range(4): a(f"ds_read_b128 v[{32+4*k}:{35+4*k}], v2 offset:{16*k}")
        a(f"s_lshl_b32 s49, s2, 9\ns_add_u32 s48, s48, s49\ns_add_u32 s48, s48, {STAMP}\ns_add_u32 s26, s26, s48\ns_addc_u32 s27, s27, 0")
        a("s_sleep 100\ns_sleep 100\ns_waitcnt lgkmcnt(0)")
        for k in range(4): a(f"global_store_dwordx4 v1, v[{32+4*k}:{35+4*k}], s[26:27] offset:{16*k}")
        for k in range(4): a(f"global_store_dwordx4 v1, v[{16+4*k}:{19+4*k}], s[26:27] offset:{256+16*k}")
    a("L_end:\ns_endpgm\nL_fin:")

    if P["now"]:
        a.lines = [l for l in a.lines if not l.endswith("; w")]
    head = open("sequential_preLN__sliding_block_cached__swiglu_ffn__decode.s.ref").read().split("; Override launch")[0]
    return head + f"""; @launch grid=(256,1,1) block=(512,1,1) lds={LDS_BYTES}
.amdgcn_target "amdgcn-amd-amdhsa--gfx950"
.text
.globl {KNAME}
.p2align 8
.type {KNAME},@function
""" + a.padded() + f""".section .rodata,"a"
.p2align 6
.amdhsa_kernel {KNAME}
  .amdhsa_next_free_vgpr 256
  .amdhsa_next_free_sgpr 102
  .amdhsa_accum_offset 256
  .amdhsa_group_segment_fixed_size 0
  .amdhsa_kernarg_size 96
  .amdhsa_user_sgpr_count 2
  .amdhsa_user_sgpr_kernarg_segment_ptr 1
  .amdhsa_system_sgpr_workgroup_id_x 1
  .amdhsa_float_denorm_mode_32 3
.end_amdhsa_kernel
"""

if __name__ == "__main__":
    out = sys.argv[1]
    kw = {}
    for x in sys.argv[2:]:
        k, v = x.split("=", 1)
        try: kw[k] = int(v, 0)
        except ValueError: kw[k] = (" " + v.replace("+", " ")) if v else ""
    open(out, "w").write(gen(**kw))
```

```python
import sys
from asmlib import Asm
KNAME = "sequential_preLN__sliding_block_cached__swiglu_ffn__decode_kernel"

OP, QP, ST, DP = 0x0000, 0x4000, 0x8000, 0xC000
STAMP = 0x10000000
L_Q, L_P, L_DEP, L_RED, L_RED2, L_CS, L_STAT, L_FLAG = 131072, 132096, 136192, 142336, 147456, 152576, 153856, 154112
L_M = L_STAT + 128
LDS_BYTES = 154624
F_TURN, F_K, F_Q, F_GO, F_DEP, F_QP, F_R, F_P, F_M = 0, 4, 8, 12, 16, 20, 24, 32, 48

DEF = dict(dbg=0, thrK=20, thrV=20, thrW=4, burst=6, SS=32768, SJ=262144, rot=1, ntw=" nt", ntq=" nt", st1=" sc1",
           sl_lds=1, sl_flag=8, sl_q=4, pre_q=8, sl_st=4, sl_h1=0, sl_h2=1, sl_h3=0, pre1=0, pre2=0, pre3=6, pref=2,
           free=3, grpW=4, q_gate=16, now=0, noq=0, stc=" sc1",
           part=1, gW=5, gF=5, gS=4, gC=4, pg=0, capW=8, capF=3, nF6=3, eG=0, eW=0, capE=2, gE=0, c3f=0, c3w=1, fpar=0, dW=0, bi=0, bw=0, gDn=0, capD=8, dyn=1, shW=1, wfirst=0, sto="", qcap=16, tlb=0, can=0, canc=3, sdc=2, rotg=0, ntg=" nt", loc3=0, dF=0, ord=4, prq=0, th1=64, th2=64, sd1=2, sd2=2, stq=" sc1", noclr=0, tK=(20, 20, 20, 20), tV=(20, 20, 20, 20), hV=(63, 63, 63, 63, 63), c3=1, alpha=0, beta=0, shQ=1, thr3=0, g2=6, prio=1, RS=0x44000)

def gen(**kw):
    P = dict(DEF); P.update(kw)
    dbg = P["dbg"]
    RS = P["RS"]; EP = 0x9000; TK = 0x9080; WS_BYTES = 16 * RS
    a = Asm()
    uid = [0]
    def L(s):
        uid[0] += 1
        return f"L_{s}_{uid[0]}"
    def stamp(k):
        if dbg: a(f"s_memrealtime s[{64+2*k}:{65+2*k}]")
    def lgkm(n=0): a(f"s_waitcnt lgkmcnt({0 if dbg else n})")
    def vm(n): a(f"s_waitcnt vmcnt({n})")
    def vm_by(reg, vals, lims):
        l = L("vb"); used = False
        for k, v in enumerate(vals):
            if k == 0 or v < vals[k - 1]:
                if k: a(f"s_cmp_lt_u32 {reg}, {lims[k-1]}\ns_cbranch_scc1 {l}"); used = True
                if v < 63: vm(v)
        if used: a(f"{l}:")
    def vm_role(v):
        d = P["dF"] or P["dW"]
        if not d: return vm(v)
        l = L("vr")
        if v + d < 63: vm(v + d)
        a(f"s_bitcmp{P['fpar'] if P['dF'] else 1 - P['fpar']}_b32 s28, 0\ns_cbranch_scc1 {l}")
        vm(v)
        a(f"{l}:")
    def srd(d, p, nbytes):
        a(f"s_mov_b32 s{d}, s{p}\ns_mov_b32 s{d+1}, s{p+1}\ns_mov_b32 s{d+2}, {hex(nbytes)}\ns_mov_b32 s{d+3}, 0x20000")
    def budget(): a("s_sub_u32 s32, s32, 1\ns_cbranch_scc1 L_exit")
    def nap(n):
        if n: a(f"s_sleep {n}")
    def wait_flag(off, val, addr="v14", sl=None):
        l, d = L("wf"), L("wfd")
        a(f"{l}:\nds_read_b32 v15, {addr} offset:{off}")
        a("s_waitcnt lgkmcnt(0)\nv_readfirstlane_b32 s33, v15")
        a(f"s_cmp_ge_u32 s33, {val}\ns_cbranch_scc1 {d}")
        nap(P["sl_lds"] if sl is None else sl)
        budget()
        a(f"s_branch {l}\n{d}:")
    def set_flag(off, val, addr="v14"):
        a(f"v_mov_b32 v15, {val}\nds_write_b32 {addr}, v15 offset:{off}")
    def add_flag(off):
        a(f"s_mov_b64 exec, 1\nv_mov_b32 v15, 1\nds_add_u32 v14, v15 offset:{off}\ns_mov_b64 exec, -1")
    def poll(loads, regs, sleep, issued=False):
        l, c, d = L("pl"), L("plc"), L("pld")
        if issued: a(f"s_branch {c}")
        a(f"{l}:")
        for x in loads: a(x)
        vm(0)
        a(f"{c}:")
        rs = list(regs)
        a(f"v_max_u32 v15, v{rs[0]}, v{rs[1]}")
        for i in range(2, len(rs), 2): a(f"v_max3_u32 v15, v15, v{rs[i]}, v{rs[i+1]}")
        a(f"v_cmp_eq_u32 vcc, -1, v15\ns_cbranch_vccz {d}")
        a("s_mov_b64 exec, vcc")
        nap(sleep)
        budget()
        a(f"s_branch {l}\n{d}:")
        a("s_mov_b64 exec, -1")
    def transpose(dst, src, ps=range(4)):
        for p in ps:
            for d in range(4):
                for e in range(2):
                    a(f"v_perm_b32 v{dst+4*(2*d+e)+p}, v{src+4*(2*p+1)+d}, v{src+8*p+d}, s{34+e}")
    def mfma(d, A, B, c):
        cc = "0" if c is None else f"v[{c}:{c+3}]"
        a(f"v_mfma_f32_16x16x32_bf16 v[{d}:{d+3}], v[{A}:{A+3}], v[{B}:{B+3}], {cc}")
    def dpp(op, d, s0, s1, ctl, bank="0xf"):
        a(f"{op}_dpp v{d}, v{s0}" + (f", v{s1}" if s1 is not None else "") + f" {ctl} row_mask:0xf bank_mask:{bank}")
    def xrow(op, v, t):
        a(f"v_mov_b32 v{t}, v{v}\nv_permlane16_swap_b32 v{v}, v{t}\n{op} v{v}, v{v}, v{t}")
        a(f"v_mov_b32 v{t}, v{v}\nv_permlane32_swap_b32 v{v}, v{t}\n{op} v{v}, v{v}, v{t}")
    def rbf(d, s):
        a(f"v_cvt_pk_bf16_f32 v{d}, v{s}, v{s}\nv_and_b32 v{d}, 0xffff0000, v{d}")
    def fold(res, t, x, y):
        if t < 4: dpp("v_add_f32", res + t, y, x, "row_ror:8", "0x3")
        else: dpp("v_add_f32", res + t - 4, x, y, "row_ror:8", "0xc")
    def red_head(op, v):
        dpp(op, v, v, v, "row_ror:4"); dpp(op, v, v, v, "row_ror:8"); xrow(op, v, 10)

    def epoch():
        a(f"s_load_dword s96, s[26:27], {hex(EP)}")
    def epoch_wait():
        a("s_waitcnt lgkmcnt(0)\ns_add_u32 s96, s96, 0x01010101")
    a(f"{KNAME}:")
    if dbg:
        for k in range(66, 96, 2): a(f"s_mov_b64 s[{k}:{k+1}], 0")
    stamp(0)
    pass
    a("s_load_dwordx16 s[4:19], s[0:1], 0\ns_load_dwordx8 s[20:27], s[0:1], 64")
    a("s_cmp_ge_u32 s2, 256\ns_cbranch_scc1 L_end")
    a("v_lshrrev_b32 v1, 6, v0\nv_and_b32 v0, 63, v0\nv_readfirstlane_b32 s3, v1")
    a("s_and_b32 s28, s2, 7\ns_bfe_u32 s29, s2, 0x20003\ns_lshr_b32 s30, s2, 5")
    a("s_mov_b32 s32, 0x8000\ns_mov_b32 s34, 0x05040100\ns_mov_b32 s35, 0x07060302")
    a(f"v_mov_b32 v14, {L_FLAG}")
    a("v_lshrrev_b32 v12, 4, v0\nv_and_b32 v13, 15, v0")
    a("s_and_b32 s31, s3, 3")
    a("s_lshl_b32 s60, s29, 3\ns_add_u32 s60, s60, s28\ns_lshl_b32 s60, s60, 22")
    a(f"s_mul_i32 s61, s30, {P['SS']}\ns_add_u32 s60, s60, s61\ns_add_u32 s60, s60, 0x300000")
    a(f"s_mul_i32 s62, s2, {P['rot']}")
    a(f"s_lshl_b32 s63, s28, 1\ns_lshr_b32 s61, s29, 1\ns_add_u32 s63, s63, s61\ns_mul_i32 s63, s63, {RS}\ns_and_b32 s101, s29, 1")
    a(f"s_add_u32 s100, s28, {P['shW']}\ns_and_b32 s100, s100, 7")
    a("s_cmp_eq_u32 s3, 1\ns_cbranch_scc1 L_W1")
    a("s_cmp_eq_u32 s3, 2\ns_cbranch_scc1 L_W2")
    a("s_cmp_eq_u32 s3, 3\ns_cbranch_scc1 L_W3")
    a("s_cmp_ge_u32 s3, 4\ns_cbranch_scc1 L_T")

    a("s_mov_b32 s31, 3")
    for ii in range(4):
        a(f"v_lshl_add_u32 v1, v12, 2, {ii}\nv_xor_b32 v1, v1, v13\nv_lshlrev_b32 v1, 4, v1\nv_lshl_add_u32 v{4+ii}, v12, 8, v1")
    a("s_mov_b32 s48, 0")
    a("s_waitcnt lgkmcnt(0)")
    srd(40, 6, 0x8000000)
    def ktile():
        a(f"s_add_u32 s49, s48, s62\ns_and_b32 s49, s49, 7\ns_lshl_b32 s49, s49, 12")
        a(f"s_lshr_b32 s50, s48, 3\ns_mul_i32 s50, s50, {P['SJ']}\ns_add_u32 s49, s49, s50\ns_add_u32 s49, s49, s60")
        a("s_lshl_b32 m0, s48, 12\ns_add_u32 s48, s48, 1")
        for ii in range(4):
            a(f"buffer_load_dwordx4 v{4+ii}, s[40:43], s49 offen offset:{ii*1024} nt lds")
    a("L_kA:"); ktile()
    a(f"s_cmp_lt_u32 s48, {P['burst']}\ns_cbranch_scc1 L_kA")
    stamp(9)
    a("s_barrier")
    stamp(8)
    a("L_kB:")
    hi = P["thrK"] + (P["dF"] or P["dW"])
    vm_role(P["thrK"])
    a(f"s_sub_u32 s51, s48, {(hi+3)//4}\ns_max_i32 s51, s51, 0")
    set_flag(F_K, "s51")
    ktile()
    a("s_cmp_lt_u32 s48, 32\ns_cbranch_scc1 L_kB")
    if P["hV"][0] < 63: vm(P["hV"][0])
    set_flag(F_TURN, 1)
    stamp(6)
    vm(0)
    set_flag(F_K, 32)
    stamp(7)
    if P["dyn"]:
        wait_flag(F_Q, 1, sl=2)
        a(f"s_add_u32 s48, s63, {TK}\ns_add_u32 s50, s26, s48\ns_addc_u32 s51, s27, 0\ns_mov_b32 s48, 1\ns_atomic_add s48, s[50:51], 0 glc\ns_waitcnt lgkmcnt(0)")
    else:
        a("s_add_u32 s48, s30, 4\ns_and_b32 s48, s48, 7\ns_cmp_eq_u32 s48, 7\ns_cselect_b32 s48, 15, s48")
        a("s_add_u32 s49, s30, 5\ns_and_b32 s49, s49, 7\ns_add_u32 s49, s49, 7\ns_cmp_eq_u32 s101, 1\ns_cselect_b32 s48, s48, s49")
    a("s_and_b32 s48, s48, 15\ns_add_u32 s48, s48, 1")
    set_flag(F_R, "s48")
    a("s_branch L_S")

    a("L_W1:")
    a("v_bfe_u32 v1, v0, 2, 2\nv_lshlrev_b32 v1, 10, v1")
    a("v_and_b32 v2, 3, v0\nv_lshl_add_u32 v2, v12, 2, v2\nv_lshl_add_u32 v2, v2, 6, v1")
    a("v_and_b32 v3, 1, v0\nv_lshlrev_b32 v3, 6, v3\nv_lshl_add_u32 v3, v12, 4, v3\nv_add_u32 v3, v3, v1")
    a("v_bfe_u32 v4, v0, 3, 1\nv_lshl_add_u32 v4, v4, 2, v12\nv_lshlrev_b32 v4, 16, v4\nv_and_b32 v5, 7, v0\nv_lshl_add_u32 v4, v5, 4, v4")
    a(f"s_add_u32 s59, s28, {P['shQ']}\ns_and_b32 s59, s59, 7")
    a("s_lshl_b32 s48, s29, 20\ns_lshl_b32 s49, s59, 10\ns_add_u32 s48, s48, s49\ns_lshl_b32 s49, s30, 7\ns_add_u32 s48, s48, s49")
    a("s_lshl_b32 s50, s29, 8")
    a("s_waitcnt lgkmcnt(0)")
    epoch()
    srd(40, 4, 4096); srd(44, 10, 0x400000); srd(36, 26, WS_BYTES)
    a("s_or_b32 s49, s30, s101\ns_cbranch_scc1 L_W1t")
    a(f"s_lshl_b32 s49, s59, 1\ns_lshr_b32 s51, s29, 1\ns_add_u32 s49, s49, s51\ns_mul_i32 s49, s49, {RS}\ns_add_u32 s49, s49, {TK}")
    a("s_mov_b64 exec, 1\nv_mov_b32 v6, 0\nbuffer_store_dword v6, v6, s[36:39], s49 offen sc1\ns_mov_b64 exec, -1\nL_W1t:")
    for k in range(4): a(f"buffer_load_dwordx4 v[{16+4*k}:{19+4*k}], v2, s[40:43], 0 offen offset:{16*k}")
    for u in range(2): a(f"buffer_load_dwordx4 v[{32+4*u}:{35+4*u}], v3, s[40:43], s50 offen offset:{128*u}")
    def wql(n):
        r = 96 + 4 * n
        a(f"buffer_load_dwordx4 v[{r}:{r+3}], v4, s[44:47], s48 offen{P['ntq']}")
        if n < 15: a(f"s_add_u32 s48, s48, {8192 if n != 7 else 57*8192}")
    qc = P["qcap"]
    for n in range(qc): wql(n)
    epoch_wait()
    a("s_barrier")
    vm(qc + 2)
    for k in range(16):
        a(f"v_lshlrev_b32 v{160+2*k}, 16, v{16+k}\nv_and_b32 v{161+2*k}, 0xffff0000, v{16+k}")
    a("v_pk_add_f32 v[6:7], v[160:161], v[162:163]")
    for k in range(2, 16): a(f"v_pk_add_f32 v[6:7], v[6:7], v[{160+2*k}:{161+2*k}]")
    a("v_add_f32 v6, v6, v7")
    def red_batch(v):
        dpp("v_add_f32", v, v, v, "quad_perm:[1,0,3,2]"); dpp("v_add_f32", v, v, v, "quad_perm:[2,3,0,1]")
        xrow("v_add_f32", v, 9)
    red_batch(6)
    a("v_mul_f32 v6, 0x3b000000, v6")
    a("v_mov_b32 v7, 0")
    for k in range(32): a(f"v_sub_f32 v{160+k}, v{160+k}, v6")
    for k in range(32): a(f"v_fmac_f32 v7, v{160+k}, v{160+k}")
    red_batch(7)
    a("v_mul_f32 v7, 0x3b000000, v7")
    rbf(6, 6); rbf(7, 7)
    a("v_add_f32 v7, 0x3727c5ac, v7"); rbf(7, 7)
    a("v_sqrt_f32 v7, v7"); rbf(7, 7)
    a("v_rcp_f32 v7, v7")
    vm(qc)
    for k in range(8):
        a(f"v_lshlrev_b32 v8, 16, v{32+k}\nv_and_b32 v9, 0xffff0000, v{32+k}\nv_sub_f32 v8, v8, v6\nv_sub_f32 v9, v9, v6")
        a(f"v_cvt_pk_bf16_f32 v9, v8, v9\nv_lshlrev_b32 v8, 16, v9\nv_and_b32 v9, 0xffff0000, v9")
        a(f"v_mul_f32 v8, v8, v7\nv_mul_f32 v9, v9, v7\nv_cvt_pk_bf16_f32 v{32+k}, v8, v9")
    stamp(6)
    for n in range(qc, 16):
        vm(qc - 1); wql(n)
    vm(8); transpose(64, 96)
    for t in range(8): mfma(192 + 4 * t, 32, 64 + 4 * t, None)
    vm(0); transpose(96, 128)
    for t in range(8): mfma(192 + 4 * t, 36, 96 + 4 * t, 192 + 4 * t)
    a(f"v_lshrrev_b32 v1, 5, v0\nv_mul_u32_u24 v1, {RS}, v1\nv_and_b32 v2, 1, v12\nv_lshl_add_u32 v1, v2, 13, v1")
    a("v_lshl_add_u32 v1, v5, 5, v1\nv_bfe_u32 v2, v0, 3, 1\nv_lshl_add_u32 v1, v2, 4, v1")
    a(f"s_mul_i32 s48, s59, {2*RS}\ns_lshl_b32 s49, s29, 11\ns_add_u32 s48, s48, s49\ns_lshl_b32 s49, s30, 8\ns_add_u32 s48, s48, s49\ns_add_u32 s48, s48, {QP}")
    for t in range(8): fold(16, t, 192 + 4 * t, 193 + 4 * t)
    a("v_mov_b32 v6, s96")
    for v in range(4): a(f"s_mov_b32 s49, {hex(0x07060500 + v)}\nv_perm_b32 v{16+v}, v{16+v}, v6, s49")
    if P["noq"] < 2: a(f"buffer_store_dwordx4 v[16:19], v1, s[36:39], s48 offen{P['stq']}")
    set_flag(F_QP, 1)
    stamp(8)
    a("s_branch L_S")

    a("L_W2:")
    a("v_lshlrev_b32 v2, 4, v0")
    a(f"s_lshl_b32 s48, s101, 13\ns_add_u32 s48, s48, s63\ns_add_u32 s48, s48, {QP}\ns_add_u32 s49, s48, 4096")
    a("s_waitcnt lgkmcnt(0)")
    epoch()
    srd(36, 26, WS_BYTES)
    epoch_wait()
    a("s_barrier")
    for k in range(4): a(f"s_bfe_u32 s{52+k}, s96, {hex(0x80000 + 8 * k)}")
    wait_flag(F_QP, 1, sl=2)
    if P["q_gate"]: wait_flag(F_K, P["q_gate"], sl=4)
    stamp(7)
    nap(P["pre_q"])
    if P["noq"]: a("s_branch L_W2q")
    a("L_W2p:")
    for k in range(8): a(f"buffer_load_dwordx4 v[{16+4*k}:{19+4*k}], v2, s[36:39], s{48+(k>>2)} offen offset:{(k&3)*1024} sc1")
    vm(0)
    for r in range(16, 48): a(f"v_xor_b32 v{r}, s{52+(r&3)}, v{r}")
    a("v_or_b32 v15, v16, v17")
    for r in range(18, 48, 2): a(f"v_or3_b32 v15, v15, v{r}, v{r+1}")
    a("v_and_b32 v15, 0xff, v15\nv_cmp_ne_u32 vcc, 0, v15\ns_cbranch_vccz L_W2q")
    nap(P["sl_q"])
    budget()
    a("s_branch L_W2p\nL_W2q:")
    for h in range(2):
        for ks in range(1, 4):
            for z in range(2):
                r = 16 + 4 * h + 2 * z
                a(f"v_pk_add_f32 v[{r}:{r+1}], v[{r}:{r+1}], v[{r+8*ks}:{r+8*ks+1}]")
        a(f"v_cvt_pk_bf16_f32 v{6+2*h}, v{16+4*h}, v{17+4*h}\nv_cvt_pk_bf16_f32 v{7+2*h}, v{18+4*h}, v{19+4*h}")
    a(f"v_lshlrev_b32 v1, 3, v0\nv_add_u32 v1, {L_Q}, v1")
    a("ds_write_b64 v1, v[6:7]\nds_write_b64 v1, v[8:9] offset:512")
    set_flag(F_Q, 1)
    stamp(8)
    a("s_branch L_S")

    a("L_W3:")
    a("s_mov_b32 s31, 0")
    if P["pref"]:
        a("s_getpc_b64 s[48:49]\nL_pc:")
        a(f"s_sub_u32 s48, s48, L_pc-{KNAME}\ns_subb_u32 s49, s49, 0")
        a(f"s_mov_b32 s50, L_fin-{KNAME}-4")
        a("v_lshlrev_b32 v1, 7, v0")
        if P["pref"] == 2:
            a("s_lshr_b32 s51, s2, 3\ns_lshl_b32 s51, s51, 9\nv_add_u32 v2, s51, v1\nv_min_u32 v2, s50, v2\ns_mov_b64 exec, 15\nglobal_load_dword v16, v2, s[48:49]\ns_mov_b64 exec, -1")
        else:
            for k in range(2):
                a(f"v_add_u32 v2, {k*8192}, v1\nv_min_u32 v2, s50, v2\nglobal_load_dword v{16+k}, v2, s[48:49]")
    a("v_lshl_add_u32 v1, v0, 2, v14\nv_mov_b32 v2, 0\nds_write_b32 v1, v2")
    a("s_waitcnt lgkmcnt(0)\ns_barrier")
    if P["tlb"]:
        a("v_mov_b32 v1, s60\ns_mov_b64 exec, 1\nglobal_load_dword v19, v1, s[8:9] nt")
        if P["tlb"] > 1:
            a("s_lshl_b32 s48, s100, 19\nv_mov_b32 v1, s48\nglobal_load_dword v19, v1, s[12:13] nt\nv_mov_b32 v1, 0")
            for p in (16, 18, 20, 22): a(f"global_load_dword v19, v1, s[{p}:{p+1}] nt")
        a("s_mov_b64 exec, -1")
    def touch(v, p): a(f"global_load_dword v18, {v}, s[{p}:{p+1}] sc1 nt\nglobal_load_dword v18, {v}, s[{p}:{p+1}] sc1")
    if P["c3"]:
        if P["c3"] > 1: wait_flag(F_K, P["c3"], sl=4)
        a("s_lshr_b32 s55, s2, 3")
        if P["c3w"]:
            a("s_lshl_b32 s48, s100, 19\ns_lshl_b32 s49, s55, 14\ns_add_u32 s48, s48, s49\ns_add_u32 s48, s48, 384")
            a("v_lshlrev_b32 v1, 10, v13\nv_add_u32 v1, s48, v1\ns_mov_b64 exec, 0xffff"); touch("v1", 12); a("s_mov_b64 exec, -1")
        if P["c3f"]:
            a("s_mul_i32 s52, s28, 448\ns_lshr_b32 s52, s52, 7\ns_or_b32 s49, s52, 3\ns_bfe_u32 s50, s49, 0x10002\ns_lshl_b32 s49, s49, 7")
            a("v_and_b32 v2, 7, v0\nv_lshlrev_b32 v2, 1, v2\nv_add_u32 v2, s50, v2\nv_mul_u32_u24 v2, 3584, v2")
            a(f"s_mul_i32 s51, s55, {16*3584}\ns_add_u32 s51, s51, s49\nv_add_u32 v2, s51, v2")
            a("s_mov_b64 exec, 0xff"); touch("v2", 16); touch("v2", 18); a("s_mov_b64 exec, -1")

    a("L_S:")
    srd(40, 8, 0x8000000); srd(36, 26, WS_BYTES)
    a("v_lshlrev_b32 v1, 4, v0")
    a(f"s_mul_i32 s48, s31, {P['SJ']}\ns_add_u32 s48, s48, s60")
    for tau in range(8):
        a(f"s_add_u32 s49, s62, {tau}\ns_and_b32 s49, s49, 7\ns_lshl_b32 s49, s49, 12\ns_add_u32 s{52+tau}, s49, s48")
    a(f"v_lshrrev_b32 v2, 2, v13\nv_lshl_add_u32 v2, v12, 4, v2\nv_lshlrev_b32 v2, 4, v2\ns_lshl_b32 s49, s31, 10\ns_add_u32 s49, s49, {L_P}\nv_add_u32 v2, s49, v2")
    a(f"s_lshl_b32 s49, s31, 11\ns_add_u32 s49, s49, {L_DEP - 2048}\nv_lshl_add_u32 v3, v0, 2, s49")
    a("s_lshl_b32 s49, s31, 2\nv_add_u32 v5, s49, v14")
    a(f"s_lshl_b32 s48, s101, 13\ns_lshl_b32 s49, s30, 10\ns_add_u32 s48, s48, s49\ns_add_u32 s48, s48, s63")
    for t in range(8): a(f"v_mov_b32 v{32+4*t}, 0")
    a("s_add_u32 s50, s31, 1")
    wait_flag(F_TURN, "s50")
    stamp(1)
    for tau in range(8):
        if 4 * tau > P["thrV"]: vm_role(P["thrV"])
        for q in range(4):
            r = 96 + 16 * tau + 4 * q
            a(f"buffer_load_dwordx4 v[{r}:{r+3}], v1, s[40:43], s{52+tau} offen offset:{q*1024} nt")
    vm_by("s31", P["hV"][1:], (1, 2, 3))
    a("s_add_u32 s51, s31, 2")
    set_flag(F_TURN, "s51")
    if P["prio"]: a("s_setprio 3")
    stamp(2)
    vm(24); transpose(64, 96)
    wait_flag(F_P, 1, addr="v5")
    for q in range(4): a(f"ds_read_b128 v[{16+4*q}:{19+4*q}], v2 offset:{64*q}")
    a("s_cmp_eq_u32 s31, 0\ns_cbranch_scc1 L_Sc")
    wait_flag(F_DEP, "s31")
    for t in range(8): a(f"ds_read_b32 v{32+4*t}, v3 offset:{256*t}")
    a("L_Sc:")
    lgkm(0)
    stamp(3)
    for q in range(4):
        if q in (1, 2): vm(24 - 8 * q); transpose(64 + 32 * q, 96 + 32 * q)
        if q == 3:
            for p in range(4):
                vm(6 - 2 * p); transpose(160, 192, [p])
            stamp(4)
        for t in range(8): mfma(32 + 4 * t, 16 + 4 * q, 64 + 32 * q + 4 * t, 32 + 4 * t)
    a("s_cmp_eq_u32 s31, 3\ns_cbranch_scc1 L_S3")
    for k in range(4): a(f"ds_write2st64_b32 v3, v{32+8*k}, v{36+8*k} offset0:{8+2*k} offset1:{9+2*k}")
    set_flag(F_DEP, "s50")
    a("s_branch L_exit")
    a("L_S3:")
    for k in range(4): a(f"v_cvt_pk_bf16_f32 v{8+k}, v{32+8*k}, v{36+8*k}\nv_min_u32 v{8+k}, -2, v{8+k}")
    a(f"buffer_store_dwordx4 v[8:11], v1, s[36:39], s48 offen{P['st1']}")
    set_flag(F_TURN, 6)
    stamp(5)
    a("s_branch L_exit")

    a("L_T:")
    def hp_addr(g, cs):
        a(f"s_lshr_b32 s51, {g}, 2\ns_add_u32 s51, s51, 14\ns_mul_i32 s51, s51, {RS}\ns_and_b32 s49, {g}, 3\ns_lshl_b32 s49, s49, 10\ns_add_u32 s51, s51, s49")
        a(f"s_add_u32 s51, s51, s52\ns_lshl_b32 s49, {cs}, 7\ns_add_u32 s51, s51, s49")
    def dp_addr(sp):
        a(f"s_mul_i32 s61, s28, 7\ns_add_u32 s61, s61, {sp}")
        a(f"s_add_u32 s55, s52, s53\ns_lshr_b32 s54, s61, 2\ns_mul_i32 s54, s54, {RS}\ns_and_b32 s49, s61, 3\ns_lshl_b32 s49, s49, 10\ns_add_u32 s54, s54, s49")
        a(f"s_add_u32 s54, s54, s55\ns_add_u32 s55, s55, {14*RS}")
    a(f"s_lshl_b32 s53, s31, 8\ns_and_b32 s62, s29, 2\ns_lshl_b32 s52, s62, 12\ns_add_u32 s52, s52, {DP}")
    hp_addr("s28", "s30"); dp_addr("s30")
    a(f"s_lshl_b32 s60, s101, 13\ns_add_u32 s60, s60, s53\ns_add_u32 s60, s60, s63\ns_lshl_b32 s49, s30, 10\ns_add_u32 s50, s60, s49")
    a("v_lshlrev_b32 v246, 12, v12\nv_lshl_add_u32 v246, v13, 4, v246")
    a("v_mov_b32 v248, -1\nv_mov_b32 v249, -1\nv_mov_b32 v250, -1\nv_mov_b32 v251, -1")
    a(f"v_and_b32 v1, 3, v0\nv_lshlrev_b32 v1, 8, v1\nv_lshl_add_u32 v1, v12, 4, v1\nv_add_u32 v1, {L_Q}, v1")
    a("v_and_b32 v8, 3, v0\nv_lshlrev_b32 v8, 2, v8\nv_lshrrev_b32 v9, 2, v13\nv_add_u32 v8, v8, v9\nv_lshlrev_b32 v8, 8, v8")
    a("s_lshl_b32 s48, s31, 15\nv_add_u32 v8, s48, v8")
    for m in range(4):
        a(f"v_add_u32 v9, {4*m}, v12\nv_xor_b32 v9, v9, v13\nv_lshl_add_u32 v{4+m}, v9, 4, v8")
    a("s_waitcnt lgkmcnt(0)")
    epoch()
    srd(36, 26, WS_BYTES)
    a(f"s_mov_b64 exec, 0xffff\nbuffer_store_dwordx4 v[248:251], v246, s[36:39], s50 offen{P['st1']}")
    a("s_cmp_eq_u32 s101, 1\ns_cbranch_scc1 L_Tc1")
    a("s_cmp_lg_u32 s31, 3\ns_cbranch_scc1 L_Tc2")
    a(f"s_mov_b64 exec, 0x00ff00ff\nbuffer_store_dwordx4 v[248:251], v246, s[36:39], s51 offen{P['stc']}")
    a("s_branch L_Tc2")
    a(f"L_Tc1:\ns_cmp_eq_u32 s30, 7\ns_cbranch_scc1 L_Tc2")
    a(f"s_mov_b32 exec_lo, -1\nbuffer_store_dwordx4 v[248:251], v246, s[36:39], s54 offen{P['stc']}")
    a("L_Tc2:\ns_mov_b64 exec, -1")
    epoch_wait()
    a("s_barrier")

    wait_flag(F_Q, 1, sl=2)
    stamp(3)
    for m in range(4): a(f"ds_read_b128 v[{16+4*m}:{19+4*m}], v1 offset:{64*m}")
    a("s_add_u32 s48, s31, 1\ns_lshl_b32 s48, s48, 3")
    wait_flag(F_K, "s48", sl=2)
    stamp(4)
    def kread(tau):
        for m in range(4):
            r = 64 + 16 * (tau % 6) + 4 * m
            a(f"ds_read_b128 v[{r}:{r+3}], v{4+m} offset:{4096*tau}")
    kread(0); kread(1)
    for tau in range(8):
        if tau + 2 < 8: kread(tau + 2)
        lgkm(8 if tau < 6 else 4 if tau == 6 else 0)
        for m in range(4): mfma(32 + 4 * tau, 64 + 16 * (tau % 6) + 4 * m, 16 + 4 * m, None if m == 0 else 32 + 4 * tau)
    for q in range(1, 4):
        for k in range(8): dpp("v_mov_b32", 32 + k, 32 + 8 * q + k, None, "quad_perm:[0,1,2,3]", hex(1 << q))
    a("s_mov_b32 s50, 0x3db504f3\ns_mov_b32 s59, 0x3fb8aa3b")
    for k in range(0, 8, 2):
        x, y = 32 + k, 33 + k
        a(f"v_cvt_pk_bf16_f32 v{y}, v{x}, v{y}\nv_lshlrev_b32 v{x}, 16, v{y}\nv_and_b32 v{y}, 0xffff0000, v{y}")
        a(f"v_mul_f32 v{x}, s50, v{x}\nv_mul_f32 v{y}, s50, v{y}")
        a(f"v_cvt_pk_bf16_f32 v{y}, v{x}, v{y}\nv_lshlrev_b32 v{x}, 16, v{y}\nv_and_b32 v{y}, 0xffff0000, v{y}")
    a("v_max3_f32 v8, v32, v33, v34\nv_max3_f32 v8, v8, v35, v36\nv_max3_f32 v8, v8, v37, v38\nv_max_f32 v8, v8, v39")
    red_head("v_max_f32", 8)
    a(f"v_and_b32 v5, 3, v0\nv_lshlrev_b32 v5, 4, v5\nv_add_u32 v5, {L_M}, v5\ns_lshl_b32 s48, s31, 2\nv_add_u32 v4, s48, v5")
    vm(0)
    a("s_mov_b64 exec, 15\nds_write_b32 v4, v8")
    add_flag(F_M)
    wait_flag(F_M, 4)
    a("ds_read_b128 v[16:19], v5")
    lgkm(0)
    a("v_max3_f32 v8, v16, v17, v18\nv_max_f32 v8, v8, v19")
    for k in range(8): a(f"v_sub_f32 v{40+k}, v{32+k}, v8")
    for k in range(8): a(f"v_mul_f32 v{40+k}, s59, v{40+k}")
    for k in range(8): a(f"v_exp_f32 v{40+k}, v{40+k}")
    a("v_lshlrev_b32 v4, 4, v0")
    for k in range(4): a(f"v_cvt_pk_bf16_f32 v{16+k}, v{40+2*k}, v{41+2*k}")
    a(f"s_lshl_b32 s48, s31, 10\ns_add_u32 s48, s48, {L_P}\nv_add_u32 v5, s48, v4\nds_write_b128 v5, v[16:19]")
    a("s_lshl_b32 s48, s31, 2\nv_add_u32 v5, s48, v14")
    set_flag(F_P, 1, addr="v5")
    stamp(5)
    a("v_add_f32 v9, v40, v41")
    for k in range(2, 8): a(f"v_add_f32 v9, v9, v{40+k}")
    red_head("v_add_f32", 9)
    a(f"s_lshl_b32 s58, s101, 11\ns_add_u32 s58, s58, s63\ns_add_u32 s58, s58, {ST}")
    a("s_lshl_b32 s49, s30, 2\ns_add_u32 s49, s49, s31\ns_lshl_b32 s49, s49, 6\ns_add_u32 s49, s49, s58")
    a("v_mov_b32 v20, v8\nv_mov_b32 v21, s96\nv_mov_b32 v22, v9\nv_mov_b32 v23, s96")
    a("s_mov_b64 exec, 15\nbuffer_store_dwordx4 v[20:23], v4, s[36:39], s49 offen sc1\ns_mov_b64 exec, -1")
    a("s_lshl_b32 s57, s31, 15")
    a("v_bfe_u32 v8, v0, 3, 1\nv_and_b32 v9, 1, v12\nv_lshl_add_u32 v8, v9, 1, v8")
    a("v_lshlrev_b32 v9, 10, v12\nv_bfe_u32 v10, v0, 2, 2\nv_lshl_add_u32 v9, v10, 7, v9\nv_and_b32 v10, 3, v0\nv_lshl_add_u32 v9, v10, 3, v9\nv_add_u32 v9, s57, v9")
    for t in range(4): a(f"v_xor_b32 v10, {t}, v8\nv_lshl_add_u32 v{4+t}, v10, 5, v9")
    a("s_add_u32 s56, s57, 16384\nv_lshl_add_u32 v9, v13, 8, s56")
    for k in range(4):
        a(f"v_add_u32 v10, {4*k}, v12\nv_xor_b32 v10, v10, v13\nv_lshl_add_u32 v{60+k}, v10, 4, v9\nv_lshlrev_b32 v10, 4, v10\nv_lshl_add_u32 v{252+k}, v12, 10, v10")
    a("v_bfe_u32 v8, v0, 4, 1\nv_lshlrev_b32 v8, 1, v8\nv_and_b32 v9, 7, v0\nv_xor_b32 v8, v8, v9\nv_lshrrev_b32 v9, 3, v0")
    wait_flag(F_R, 1, sl=2)
    a("s_sub_u32 s97, s33, 1\ns_cmp_eq_u32 s97, 15\ns_cbranch_scc1 L_exit")
    if P["wfirst"]: a("s_add_u32 s97, s97, 7\ns_cmp_ge_u32 s97, 15\ns_cselect_b32 s49, 15, 0\ns_sub_u32 s97, s97, s49")
    a("s_cmp_lt_u32 s97, 7\ns_cbranch_scc1 L_F")
    a("s_sub_u32 s30, s97, 4\ns_and_b32 s30, s30, 7")
    hp_addr("s100", "s30")

    def wreads(ks):
        for t in range(4):
            for hh in range(2):
                r = 64 + 16 * ks + 4 * t + 2 * hh
                a(f"ds_read_b64_tr_b16 v[{r}:{r+1}], v{4+t} offset:{4096*ks + 512*hh}")
    def gather_dma(soffs):
        for k in range(4):
            a(f"s_add_u32 m0, s56, {1024*k}")
            a(f"buffer_load_dwordx4 v{252+k}, s[36:39], {soffs[k]} offen sc1 lds")
    def gather_finish(soffs, sleep, th, sd, n=0, va=None):
        l, c, p, d = L("gl"), L("gc"), L("gp"), L("gd")
        def check():
            a("v_max_u32 v15, v16, v17")
            for i in range(18, 32, 2): a(f"v_max3_u32 v15, v15, v{i}, v{i+1}")
            a(f"v_cmp_eq_u32 vcc, -1, v15\ns_cbranch_vccz {d}")
        vm(n)
        a(f"{c}:")
        for k in range(4): a(f"ds_read_b128 v[{16+4*k}:{19+4*k}], v{60+k}")
        a("s_waitcnt lgkmcnt(0)")
        check()
        a(f"s_bcnt1_i32_b64 s33, vcc\ns_cmp_le_u32 s33, {th}\ns_cbranch_scc1 {p}")
        nap(sd)
        budget()
        gather_dma(soffs)
        vm(0)
        a(f"s_branch {c}")
        a(f"{p}:\ns_mov_b64 exec, vcc")
        for ks in range(4):
            if va is None: a(f"buffer_load_dwordx4 v[{16+4*ks}:{19+4*ks}], v1, s[36:39], {soffs[0]} offen offset:{64*ks} sc1")
            else: a(f"buffer_load_dwordx4 v[{16+4*ks}:{19+4*ks}], v{va+ks}, s[36:39], {soffs[0]} offen sc1")
        vm(0)
        check()
        nap(sleep)
        budget()
        a(f"s_branch {p}\n{d}:\ns_mov_b64 exec, -1")
    def gemv(post):
        for t in range(4):
            for ks in range(4):
                mfma(32 + 4 * t, 16 + 4 * ks, 64 + 16 * ks + 4 * t, None if ks == 0 else 32 + 4 * t)
                post(t, ks)

    srd(40, 12, 0x400000)
    a("v_lshlrev_b32 v2, 10, v9\nv_lshl_add_u32 v2, v8, 4, v2\nv_xor_b32 v3, 64, v2")
    a(f"s_lshl_b32 s63, s100, 1\ns_lshr_b32 s49, s29, 1\ns_add_u32 s63, s63, s49\ns_mul_i32 s63, s63, {RS}\ns_add_u32 s60, s63, s53\ns_add_u32 s58, s63, {ST}")
    a("s_add_u32 s61, s60, 4096\ns_add_u32 s54, s60, 8192\ns_add_u32 s55, s60, 12288")
    a("s_lshl_b32 s48, s100, 19\ns_lshl_b32 s49, s31, 17\ns_add_u32 s48, s48, s49\ns_lshl_b32 s49, s30, 7\ns_add_u32 s48, s48, s49")
    a("s_mov_b32 s44, s4\ns_mov_b32 s45, s5\ns_cmp_eq_u32 s100, 0\ns_cselect_b32 s46, 4096, 0\ns_mov_b32 s47, 0x20000")
    a("s_lshl_b32 s50, s62, 10\ns_add_u32 s50, s50, s49")
    a("v_lshrrev_b32 v8, 5, v0\nv_bfe_u32 v9, v0, 1, 4\nv_lshlrev_b32 v10, 3, v9\nv_lshl_add_u32 v11, v8, 10, v10\nv_lshl_add_u32 v59, v8, 12, v10")
    a("buffer_load_dwordx2 v[56:57], v11, s[44:47], s50 offen")
    a(f"v_and_b32 v10, 1, v0\nv_lshl_add_u32 v58, v8, 1, v10\nv_mul_u32_u24 v58, 320, v58\nv_lshl_add_u32 v58, v9, 4, v58\nv_add_u32 v58, {L_RED}, v58")
    a(f"v_mul_u32_u24 v247, 320, v12\nv_lshl_add_u32 v247, v13, 2, v247\ns_mul_i32 s49, s31, 1280\ns_add_u32 s49, s49, {L_RED}\nv_add_u32 v247, s49, v247")
    a("v_lshlrev_b32 v11, 6, v0\ns_lshl_b32 s49, s31, 4\ns_add_u32 s58, s58, s49")
    a("v_lshlrev_b32 v1, 10, v13\nv_lshl_add_u32 v1, v12, 4, v1")
    def wol(n):
        a(f"s_add_u32 m0, s57, {1024*n}\ns_add_u32 s49, s48, {8192*n}")
        a(f"buffer_load_dwordx4 v{2+(n&1)}, s[40:43], s49 offen{P['ntw']} lds")
    nw = 4 - P["eW"]
    if P["eW"]:
        if P["gE"]: wait_flag(F_TURN, P["gE"], sl=2)
        for n in range(4 * nw, 16):
            if n - 4 * nw >= 2 * P["capE"]: vm(2 * P["capE"] - 1)
            wol(n)
        vm(0)
        for ks in range(nw, 4):
            wreads(ks); a("s_waitcnt lgkmcnt(0)")
    wait_flag(F_TURN, P["gS"], sl=1)
    a("L_Tsp:")
    a("buffer_load_dwordx4 v[32:35], v11, s[36:39], s58 offen sc1")
    vm(0)
    a("v_xor_b32 v33, s96, v33\nv_xor_b32 v35, s96, v35\nv_or_b32 v15, v33, v35")
    a("v_cmp_ne_u32 vcc, 0, v15\ns_cbranch_vccz L_Tsq")
    nap(P["sl_st"])
    budget()
    a("s_branch L_Tsp\nL_Tsq:")
    a("v_mov_b32 v8, v32")
    dpp("v_max_f32", 8, 8, 8, "row_ror:4"); dpp("v_max_f32", 8, 8, 8, "row_ror:8")
    a("v_mov_b32 v10, v8\nv_permlane16_swap_b32 v8, v10\nv_max_f32 v8, v8, v10")
    a("v_sub_f32 v32, v32, v8\nv_mul_f32 v32, s59, v32\nv_exp_f32 v32, v32\nv_mul_f32 v9, v32, v34")
    for ctl in ("quad_perm:[1,0,3,2]", "quad_perm:[2,3,0,1]", "row_ror:4", "row_ror:8"): dpp("v_add_f32", 9, 9, 9, ctl)
    a("v_mov_b32 v10, v9\nv_permlane16_swap_b32 v9, v10\nv_add_f32 v9, v9, v10")
    a("v_rcp_f32 v9, v9\nv_mul_f32 v32, v32, v9")
    for r in range(4): dpp("v_mov_b32", 48 + r, 32, None, f"row_newbcast:{4*r}")
    a("v_lshlrev_b32 v52, 16, v56\nv_and_b32 v53, 0xffff0000, v56\nv_lshlrev_b32 v54, 16, v57\nv_and_b32 v55, 0xffff0000, v57")
    stamp(7)
    wait_flag(F_TURN, P["gW"], sl=1)
    cap = P["capW"]
    for n in range(4 * nw):
        if n >= cap and n % 2 == 0: vm(cap - 2)
        wol(n)
    stamp(1)
    go = ["s60", "s61", "s54", "s55"]
    for ks in range(nw):
        vm(4 * (nw - 1 - ks))
        if ks == nw - 1:
            if P["bw"]: a("s_barrier")
            gather_dma(go)
        if ks: a("s_waitcnt lgkmcnt(0)")
        wreads(ks)
    if nw == 0:
        wait_flag(F_TURN, 6, sl=0); gather_dma(go)
    stamp(6)
    gather_finish(go, P["sl_h1"], P["th1"], P["sd1"])
    stamp(8)
    def scale(t, r): a(f"v_mul_f32 v{8+t}, v{32+4*t}, v48" if r == 0 else f"v_fmac_f32 v{8+t}, v{32+4*t+r}, v{48+r}")
    def wpost(t, ks):
        if t == 3: scale(0, ks); scale(1, ks)
    gemv(wpost)
    a("ds_write2_b32 v247, v8, v9 offset0:0 offset1:16")
    for t in (2, 3):
        for r in range(4): scale(t, r)
    a("ds_write2_b32 v247, v10, v11 offset0:32 offset1:48\ns_waitcnt lgkmcnt(0)\ns_barrier")
    a("s_cmp_lg_u32 s31, 3\ns_cbranch_scc1 L_exit")
    for k in range(4): a(f"ds_read_b128 v[{32+4*k}:{35+4*k}], v58 offset:{1280*k}")
    lgkm(2)
    a("v_pk_add_f32 v[32:33], v[32:33], v[36:37]\nv_pk_add_f32 v[34:35], v[34:35], v[38:39]")
    lgkm(0)
    a("v_pk_add_f32 v[40:41], v[40:41], v[44:45]\nv_pk_add_f32 v[42:43], v[42:43], v[46:47]")
    a("v_pk_add_f32 v[32:33], v[32:33], v[40:41]\nv_pk_add_f32 v[34:35], v[34:35], v[42:43]")
    for v in range(4): dpp("v_add_f32", 32 + v, 32 + v, 32 + v, "quad_perm:[1,0,3,2]")
    a("v_pk_add_f32 v[32:33], v[32:33], v[52:53]\nv_pk_add_f32 v[34:35], v[34:35], v[54:55]")
    a("v_cvt_pk_bf16_f32 v36, v32, v33\nv_cvt_pk_bf16_f32 v37, v34, v35\nv_min_u32 v36, -2, v36\nv_min_u32 v37, -2, v37")
    dpp("v_mov_b32", 38, 36, None, "quad_perm:[2,3,2,3]"); dpp("v_mov_b32", 39, 37, None, "quad_perm:[2,3,2,3]")
    a("s_mov_b32 exec_lo, 0x11111111\ns_mov_b32 exec_hi, 0x11111111")
    a("buffer_store_dwordx4 v[36:39], v59, s[36:39], s51 offen sc1")
    stamp(9)
    a("s_branch L_exit")

    a("L_F:")
    a("s_add_u32 s30, s97, s28\ns_add_u32 s30, s30, 5\ns_mul_i32 s49, s30, 37\ns_lshr_b32 s49, s49, 8\ns_mul_i32 s49, s49, 7\ns_sub_u32 s30, s30, s49")
    dp_addr("s30")
    a("v_mul_u32_u24 v10, 3584, v9\nv_and_b32 v11, 3, v8\nv_lshl_add_u32 v10, v11, 4, v10")
    a(f"s_mul_i32 s49, s31, {128*3584}\ns_lshl_b32 s50, s61, 6\ns_add_u32 s49, s49, s50\nv_add_u32 v10, s49, v10\nv_mov_b32 v11, 0")
    a("v_lshl_add_u64 v[224:225], v[10:11], 0, s[16:17]\nv_lshl_add_u64 v[226:227], v[10:11], 0, s[18:19]")
    a("s_mov_b32 exec_lo, 0xf0f0f0f0\ns_mov_b32 exec_hi, 0xf0f0f0f0")
    a("v_lshl_add_u64 v[224:225], v[10:11], 0, s[18:19]\nv_lshl_add_u64 v[226:227], v[10:11], 0, s[16:17]\ns_mov_b64 exec, -1")
    a(f"s_mov_b32 s98, {8*3584}\ns_mov_b32 s99, 0\nv_lshl_add_u64 v[226:227], v[226:227], 0, s[98:99]\ns_mov_b32 s98, {16*3584}")
    srd(40, 20, 1792 * 1024); srd(44, 22, 4096)
    a("v_lshlrev_b32 v228, 12, v12\nv_lshl_add_u32 v228, v13, 4, v228")
    a("s_lshl_b32 s49, s61, 15\ns_add_u32 s49, s49, s53\ns_add_u32 s48, s49, 16384")
    a(f"s_mul_i32 s50, s31, 320\ns_add_u32 s50, s50, {L_CS}\nv_lshl_add_u32 v247, v13, 4, s50")
    for k in range(4): a(f"v_mov_b32 v{240+k}, 0x3f803f80")
    a(f"v_lshrrev_b32 v229, 5, v0\nv_mul_u32_u24 v229, {2*RS}, v229\nv_bfe_u32 v1, v0, 2, 3\nv_lshl_add_u32 v229, v1, 8, v229")
    a(f"s_lshl_b32 s58, s31, 2\ns_lshr_b32 s50, s29, 1\ns_add_u32 s58, s58, s50\ns_mul_i32 s58, s58, {RS}\ns_add_u32 s58, s58, {ST + 4}")
    a(f"v_bfe_u32 v1, v0, 2, 1\nv_mul_u32_u24 v1, {RS}, v1\nv_and_b32 v3, 3, v0\nv_lshl_add_u32 v1, v3, 10, v1\nv_bfe_u32 v3, v0, 3, 1\nv_lshl_add_u32 v1, v3, 12, v1\nv_lshl_add_u32 v1, v12, 4, v1")
    a(f"s_add_u32 s60, s55, {RS}\ns_add_u32 s63, s55, 4096\ns_add_u32 s51, s55, {RS + 4096}")
    a(f"v_mul_u32_u24 v2, 320, v12\nv_lshl_add_u32 v2, v13, 4, v2\ns_mul_i32 s50, s31, 1280\ns_add_u32 s50, s50, {L_RED}\nv_add_u32 v2, s50, v2")
    a("v_and_b32 v8, 3, v0\nv_lshl_add_u32 v8, v12, 2, v8\nv_lshlrev_b32 v8, 4, v8\nv_bfe_u32 v9, v0, 3, 1\nv_bfe_u32 v10, v0, 2, 1")
    a(f"v_mul_u32_u24 v230, 640, v9\nv_add3_u32 v230, v230, v8, v14\nv_add_u32 v230, {L_CS - L_FLAG}, v230")
    a(f"v_lshl_add_u32 v231, v10, 1, v9\nv_mul_u32_u24 v231, 320, v231\nv_add_u32 v231, v231, v8\nv_add_u32 v231, {L_RED}, v231")
    a(f"v_lshlrev_b32 v3, 5, v10\nv_add_u32 v3, {L_STAT}, v3")
    a(f"s_lshl_b32 s50, s31, 2\ns_add_u32 s50, s50, {L_STAT}\nv_lshl_add_u32 v59, v12, 4, s50")
    a(f"v_lshrrev_b32 v244, 2, v0\nv_mul_u32_u24 v244, {RS}, v244\nv_and_b32 v245, 3, v0\nv_lshl_add_u32 v244, v245, 10, v244\nv_lshlrev_b32 v245, 1, v0")
    a("s_lshl_b32 s50, s97, 1\ns_and_b32 s100, s31, 1\ns_add_u32 s50, s50, s100\ns_lshl_b32 s50, s50, 4\ns_lshl_b32 s100, s28, 7\ns_add_u32 s100, s100, s50")
    a("s_lshr_b32 s50, s31, 1\ns_add_u32 s101, s62, s50\ns_lshl_b32 s101, s101, 10\ns_add_u32 s101, s101, s100")
    a("s_lshl_b32 s50, s50, 12\ns_add_u32 s100, s100, s50\ns_add_u32 s100, s100, s52")
    a("v_lshrrev_b32 v8, 1, v13\nv_and_b32 v9, 1, v0\nv_lshlrev_b32 v9, 4, v9\ns_mov_b32 s50, 0x3f80\nv_lshlrev_b32 v9, v9, s50")
    for k in range(4): a(f"v_cmp_eq_u32 vcc, {k}, v8\nv_cndmask_b32 v{248+k}, 0, v9, vcc")
    def dnl():
        for jj in range(8):
            r = 192 + 4 * jj
            a(f"buffer_load_dwordx4 v[{r}:{r+3}], v228, s[40:43], s{48 if jj & 1 else 49} offen offset:{(jj>>1)*1024}{P['ntw']}")
    def gul(n):
        r = 224 + 2 * (n & 1)
        if n % 2 == 0: a(f"s_mov_b32 s98, {(n>>1)*16*3584}")
        a(f"v_lshl_add_u64 v[10:11], v[{r}:{r+1}], 0, s[98:99]\ns_add_u32 m0, s57, {1024*n}")
        a(f"global_load_lds_dwordx4 v[10:11], off{P['ntg']}")
    done = []
    def csum(ks):
        for t in range(4): mfma(32 + 4 * t, 240, 64 + 16 * ks + 4 * t, 32 + 4 * t if done else None)
        done.append(ks)
    if P["ord"] == 4:
        if P["gDn"]: wait_flag(F_TURN, P["gDn"], sl=2)
        dnl(); vm(0); transpose(128, 192)
    nl = 4 - P["eG"]
    if P["eG"]:
        if P["gE"]: wait_flag(F_TURN, P["gE"], sl=2)
        for n in range(4 * nl, 16):
            if n - 4 * nl >= P["capE"]: vm(P["capE"] - 1)
            gul(n)
        vm(0)
        for ks in range(nl, 4):
            wreads(ks); a("s_waitcnt lgkmcnt(0)"); csum(ks)
    cm = hex(P["can"])
    canl = "buffer_load_dword v57, v1, s[36:39], s50 offen sc1"
    a(f"s_sub_u32 s50, s55, s53\ns_add_u32 s50, s50, {128*P['canc']}")
    stamp(7)
    wait_flag(F_TURN, P["gF"], sl=1)
    a("buffer_load_dword v58, v229, s[36:39], s58 offen sc1")
    ex = 8 if P["ord"] == 1 else 0
    if P["ord"] == 6: dnl()
    for n in range(4 * nl):
        if n == P["nF6"]: wait_flag(F_TURN, 6, sl=1)
        gul(n)
    if ex: dnl()
    stamp(1)
    vm(4 * nl + ex)
    a("L_Fcp:")
    a("v_cmp_ne_u32 vcc, s96, v58\ns_cbranch_vccz L_Fcq")
    nap(P["sl_st"])
    budget()
    a("buffer_load_dword v58, v229, s[36:39], s58 offen sc1")
    vm(0)
    a("s_branch L_Fcp\nL_Fcq:")
    if P["ord"] == 6: transpose(128, 192)
    fo = ["s55", "s60", "s63", "s51"]
    def first():
        a("s_barrier")
        if P["can"]: a(f"s_mov_b64 exec, {cm}\n{canl}\ns_mov_b64 exec, -1")
        else: gather_dma(fo)
    nf = 1 if P["can"] else 4
    if P["bi"]: first()
    ex2 = ex + (nf if P["bi"] else 0)
    for ks in range(nl):
        vm(4 * (nl - 1 - ks) + ex2)
        if ks == nl - 1 and not ex and not P["bi"]: first()
        a("s_waitcnt lgkmcnt(0)")
        wreads(ks)
        if ks: csum(ks - 1)
    a("s_waitcnt lgkmcnt(0)")
    csum(nl - 1)
    stamp(2)
    for t in range(4): a(f"v_mov_b32 v{8+t}, v{32+4*t}")
    a("s_mov_b64 exec, 0xffff\nds_write_b128 v247, v[8:11]\ns_mov_b64 exec, -1")
    if ex:
        vm(nf if P["bi"] else 0)
        if not P["bi"]: first()
        transpose(128, 192)
    stamp(6)
    if P["can"]:
        a(f"s_mov_b64 exec, {cm}\nL_Fn:")
        vm(0)
        a("v_cmp_eq_u32 vcc, -1, v57\ns_cbranch_vccz L_Fp\ns_mov_b64 exec, vcc")
        nap(P["sdc"])
        budget()
        a(f"{canl}\ns_branch L_Fn\nL_Fp:\ns_mov_b64 exec, -1")
        gather_dma(fo)
    gather_finish(fo, P["sl_h2"], P["th2"], P["sd2"])
    stamp(10)
    for ks in range(4): mfma(232, 16 + 4 * ks, 16 + 4 * ks, None if ks == 0 else 232)
    for ks in range(4): mfma(236, 16 + 4 * ks, 240, None if ks == 0 else 236)
    def rsum(t): a(f"v_add_f32 v{8+t}, v{32+4*t}, v{33+4*t}\nv_add_f32 v{34+4*t}, v{34+4*t}, v{35+4*t}\nv_add_f32 v{8+t}, v{8+t}, v{34+4*t}")
    def fpost(t, ks):
        n = 4 * t + ks
        if n == 3: a("v_add_f32 v232, v232, v233\nv_add_f32 v234, v234, v235")
        if n == 4: a("v_add_f32 v232, v232, v234")
        if n == 6: dpp("v_add_f32", 232, 232, 232, "quad_perm:[1,0,3,2]"); a("v_add_f32 v236, v236, v237")
        if n == 7: dpp("v_add_f32", 232, 232, 232, "quad_perm:[2,3,0,1]"); a("v_add_f32 v238, v238, v239")
        if n == 8: dpp("v_add_f32", 232, 232, 232, "row_half_mirror"); a("v_add_f32 v236, v236, v238")
        if n == 10: a("v_permlane16_swap_b32 v232, v236\nv_add_f32 v232, v232, v236")
        if n == 12: rsum(0)
        if n == 14: rsum(1)
    gemv(fpost)
    a("s_mov_b32 exec_lo, 0x00010001\ns_mov_b32 exec_hi, 0x01000100\nds_write_b32 v59, v232\ns_mov_b64 exec, -1")
    rsum(2); rsum(3)
    a("ds_write_b128 v2, v[8:11]\ns_waitcnt lgkmcnt(0)\ns_barrier")
    stamp(11)
    a("ds_read_b128 v[48:51], v3\nds_read_b128 v[52:55], v3 offset:16")
    a("ds_read_b128 v[16:19], v230\nds_read_b128 v[20:23], v230 offset:320")
    for k in range(4): a(f"ds_read_b128 v[{32+4*k}:{35+4*k}], v231 offset:{1280*k}")
    lgkm(6)
    a("v_pk_add_f32 v[48:49], v[48:49], v[50:51]\nv_pk_add_f32 v[52:53], v[52:53], v[54:55]")
    a("v_add_f32 v48, v48, v49\nv_add_f32 v52, v52, v53")
    a("v_mul_f32 v52, 0x3b000000, v52\nv_mul_f32 v48, 0x3b000000, v48")
    a("v_fma_f32 v48, -v52, v52, v48\nv_max_f32 v48, 0, v48\nv_add_f32 v48, 0x3727c5ac, v48\nv_rsq_f32 v48, v48")
    lgkm(4)
    a("v_pk_add_f32 v[16:17], v[16:17], v[20:21]\nv_pk_add_f32 v[18:19], v[18:19], v[22:23]")
    lgkm(2)
    a("v_pk_add_f32 v[32:33], v[32:33], v[36:37]\nv_pk_add_f32 v[34:35], v[34:35], v[38:39]")
    for v in range(4): a(f"v_fma_f32 v{32+v}, -v52, v{16+v}, v{32+v}")
    a("v_mul_f32 v49, 0xbfb8aa3b, v48\nv_mul_f32 v48, v48, v48")
    lgkm(0)
    a("v_pk_add_f32 v[40:41], v[40:41], v[44:45]\nv_pk_add_f32 v[42:43], v[42:43], v[46:47]")
    a("v_pk_add_f32 v[32:33], v[32:33], v[40:41]\nv_pk_add_f32 v[34:35], v[34:35], v[42:43]")
    for v in range(4): dpp("v_add_f32", 32 + v, 32 + v, 32 + v, "row_ror:8")
    a("v_mul_f32 v36, v49, v32\nv_mul_f32 v37, v49, v33\nv_exp_f32 v36, v36\nv_exp_f32 v37, v37")
    a("v_mul_f32 v32, v32, v48\nv_mul_f32 v33, v33, v48\nv_add_f32 v36, 1.0, v36\nv_add_f32 v37, 1.0, v37")
    a("v_rcp_f32 v36, v36\nv_rcp_f32 v37, v37\nv_mul_f32 v32, v32, v34\nv_mul_f32 v33, v33, v35")
    a("v_mul_f32 v32, v32, v36\nv_mul_f32 v33, v33, v37\nv_cvt_pk_bf16_f32 v20, v32, v33")
    for p in range(4): dpp("v_mov_b32", 16 + p, 20, None, f"quad_perm:[{p},{p},{p},{p}]")
    if P["ord"] == 3:
        vm(0)
        for t in range(8):
            d, e = t >> 1, t & 1
            for p in range(4): a(f"v_perm_b32 v{128+4*t+p}, v{192+4*(2*p+1)+d}, v{192+8*p+d}, s{34+e}")
            if t: mfma(64 + 4 * (t - 1), 16, 128 + 4 * (t - 1), None)
        mfma(92, 16, 156, None)
    else:
        for t in range(8): mfma(64 + 4 * t, 16, (160 if P["ord"] == 5 else 128) + 4 * t, None)
    for k in range(4): a(f"v_cvt_pk_bf16_f32 v{8+k}, v{64+8*k}, v{68+8*k}\nv_min_u32 v{8+k}, -2, v{8+k}")
    a("s_mov_b32 exec_hi, 0")
    if P["loc3"]:
        a("s_lshr_b32 s50, s28, 1\ns_cmp_eq_u32 s50, s31\ns_cbranch_scc1 L_Fl")
    a("buffer_store_dwordx4 v[8:11], v246, s[36:39], s54 offen sc1")
    if P["loc3"]:
        a("s_branch L_Fm\nL_Fl:\nbuffer_store_dwordx4 v[8:11], v246, s[36:39], s54 offen\nL_Fm:")
    a("s_mov_b64 exec, -1")
    stamp(12)

    a("s_cmp_ge_u32 s97, 4\ns_cbranch_scc1 L_exit")
    nap(P["pre3"])
    poll(["buffer_load_dwordx4 v[16:19], v244, s[36:39], s100 offen sc1"], range(16, 20), P["sl_h3"])
    stamp(13)
    mfma(24, 16, 248, None)
    a("v_pk_add_f32 v[24:25], v[24:25], v[26:27]\nv_add_f32 v24, v24, v25")
    xrow("v_add_f32", 24, 25)
    a("v_cvt_pk_bf16_f32 v24, v24, v24")
    a(f"s_mov_b64 exec, 0xff\nbuffer_store_short v24, v245, s[44:47], s101 offen{P['sto']}")
    a(f"s_or_b32 s48, s28, s62\ns_or_b32 s48, s48, s97\ns_or_b32 s48, s48, s31\ns_cbranch_scc1 L_Tend")
    a(f"s_mov_b64 exec, 1\nv_mov_b32 v25, s96\ns_mov_b32 s48, {hex(EP)}\nbuffer_store_dword v25, v245, s[36:39], s48 offen sc1")
    a("L_Tend:")
    stamp(14)

    a("L_exit:")
    if P.get("pad"):
        a("s_cmp_lt_u32 s3, 4\ns_cbranch_scc1 L_padd")
        a(f"L_pad:\ns_memrealtime s[98:99]\ns_waitcnt lgkmcnt(0)\ns_sub_u32 s98, s98, s100\ns_cmp_lt_u32 s98, {P['pad']}\ns_cbranch_scc1 L_pad\nL_padd:")
    if dbg:
        stamp(15)
        a("s_mov_b64 exec, -1\ns_waitcnt lgkmcnt(0)")
        for k in range(16): a(f"v_mov_b32 v{16+k}, s{64+2*k}")
        a(f"s_and_b32 s48, s3, 3\ns_lshl_b32 s48, s48, 6\ns_add_u32 s49, s48, {L_FLAG + 256}\nv_mov_b32 v2, s49\nv_mov_b32 v1, 0\ns_mov_b64 exec, 1")
        a("s_cmp_ge_u32 s3, 4\ns_cbranch_scc1 L_dT")
        for k in range(4): a(f"ds_write_b128 v2, v[{16+4*k}:{19+4*k}] offset:{16*k}")
        a("s_waitcnt lgkmcnt(0)\ns_endpgm\nL_dT:\ns_barrier")
        for k in range(4): a(f"ds_read_b128 v[{32+4*k}:{35+4*k}], v2 offset:{16*k}")
        a(f"s_lshl_b32 s49, s2, 9\ns_add_u32 s48, s48, s49\ns_add_u32 s48, s48, {STAMP}\ns_add_u32 s26, s26, s48\ns_addc_u32 s27, s27, 0")
        a("s_sleep 100\ns_sleep 100\ns_waitcnt lgkmcnt(0)")
        for k in range(4): a(f"global_store_dwordx4 v1, v[{32+4*k}:{35+4*k}], s[26:27] offset:{16*k}")
        for k in range(4): a(f"global_store_dwordx4 v1, v[{16+4*k}:{19+4*k}], s[26:27] offset:{256+16*k}")
    a("L_end:\ns_endpgm\nL_fin:")

    if P["now"]:
        a.lines = [l for l in a.lines if not l.endswith("; w")]
    if P["noclr"] & 1: a.lines = [l for l in a.lines if "v[16:19], v246, s[36:39], s50" not in l]
    if P["noclr"] & 2: a.lines = [l for l in a.lines if "v[16:19], v246, s[36:39], s54" not in l and "v[16:19], v246, s[36:39], s51" not in l]
    head = open("sequential_preLN__sliding_block_cached__swiglu_ffn__decode.s.ref").read().split("; Override launch")[0]
    return head + f"""; @launch grid=(256,1,1) block=(512,1,1) lds={LDS_BYTES}
.amdgcn_target "amdgcn-amd-amdhsa--gfx950"
.text
.globl {KNAME}
.p2align 8
.type {KNAME},@function
""" + a.padded() + f""".section .rodata,"a"
.p2align 6
.amdhsa_kernel {KNAME}
  .amdhsa_next_free_vgpr 256
  .amdhsa_next_free_sgpr 102
  .amdhsa_accum_offset 256
  .amdhsa_group_segment_fixed_size 0
  .amdhsa_kernarg_size 96
  .amdhsa_user_sgpr_count 2
  .amdhsa_user_sgpr_kernarg_segment_ptr 1
  .amdhsa_system_sgpr_workgroup_id_x 1
  .amdhsa_float_denorm_mode_32 3
.end_amdhsa_kernel
"""

if __name__ == "__main__":
    out = sys.argv[1]
    kw = {}
    for x in sys.argv[2:]:
        k, v = x.split("=", 1)
        try: kw[k] = tuple(int(y) for y in v.split(",")) if "," in v else int(v, 0)
        except ValueError: kw[k] = (" " + v.replace("+", " ")) if v else ""
    open(out, "w").write(gen(**kw))
```

```python
import sys
from asmlib import Asm
KNAME = "sequential_preLN__sliding_block_cached__swiglu_ffn__decode_kernel"

OP, QP, ST, DP = 0x0000, 0x4000, 0x8000, 0xC000
STAMP = 0x10000000
L_Q, L_P, L_DEP, L_RED, L_RED2, L_CS, L_STAT, L_FLAG = 131072, 132096, 136192, 142336, 147456, 152576, 153856, 154112
L_M = L_STAT + 128
LDS_BYTES = 154624
F_TURN, F_K, F_Q, F_GO, F_DEP, F_QP, F_R, F_P, F_M = 0, 4, 8, 12, 16, 20, 24, 32, 48

DEF = dict(dbg=0, thrK=20, thrV=20, thrW=4, burst=6, SS=32768, SJ=262144, rot=1, ntw=" nt", ntq=" nt", st1=" sc1",
           sl_lds=1, sl_flag=8, sl_q=4, pre_q=8, sl_st=4, sl_h1=0, sl_h2=1, sl_h3=0, pre1=0, pre2=0, pre3=6, pref=2,
           free=3, grpW=4, q_gate=16, now=0, noq=0, stc=" sc1",
           part=1, gW=5, gF=5, gS=4, gC=4, pg=0, capW=8, capF=3, nF6=3, eG=0, eW=0, capE=2, gE=0, c3f=0, c3w=1, fpar=0, dW=0, bi=0, bw=0, gDn=0, capD=8, dyn=1, shW=1, wfirst=0, sto="", qcap=16, tlb=0, can=0, canc=3, sdc=2, rotg=0, ntg=" nt", loc3=0, dF=0, ord=4, prq=0, th1=64, th2=64, sd1=2, sd2=2, stq=" sc1", noclr=0, tK=(20, 20, 20, 20), tV=(20, 20, 20, 20), hV=(63, 63, 63, 63, 63), c3=1, alpha=0, beta=0, shQ=1, thr3=0, g2=6, prio=1, RS=0x44000)

def gen(**kw):
    P = dict(DEF); P.update(kw)
    dbg = P["dbg"]
    RS = P["RS"]; EP = 0x9000; TK = 0x9080; WS_BYTES = 16 * RS
    a = Asm()
    uid = [0]
    def L(s):
        uid[0] += 1
        return f"L_{s}_{uid[0]}"
    def stamp(k):
        if dbg: a(f"s_memrealtime s[{64+2*k}:{65+2*k}]")
        elif "enc" in P and k == 0: a("s_memrealtime s[64:65]\ns_mov_b32 s68, 0")
        elif P.get("enc") == k: a("s_memrealtime s[66:67]\ns_waitcnt lgkmcnt(0)\ns_sub_u32 s68, s66, s64")
    def lgkm(n=0): a(f"s_waitcnt lgkmcnt({0 if dbg else n})")
    def vm(n): a(f"s_waitcnt vmcnt({n})")
    def vm_by(reg, vals, lims):
        l = L("vb"); used = False
        for k, v in enumerate(vals):
            if k == 0 or v < vals[k - 1]:
                if k: a(f"s_cmp_lt_u32 {reg}, {lims[k-1]}\ns_cbranch_scc1 {l}"); used = True
                if v < 63: vm(v)
        if used: a(f"{l}:")
    def vm_role(v):
        d = P["dF"] or P["dW"]
        if not d: return vm(v)
        l = L("vr")
        if v + d < 63: vm(v + d)
        a(f"s_bitcmp{P['fpar'] if P['dF'] else 1 - P['fpar']}_b32 s28, 0\ns_cbranch_scc1 {l}")
        vm(v)
        a(f"{l}:")
    def srd(d, p, nbytes):
        a(f"s_mov_b32 s{d}, s{p}\ns_mov_b32 s{d+1}, s{p+1}\ns_mov_b32 s{d+2}, {hex(nbytes)}\ns_mov_b32 s{d+3}, 0x20000")
    def budget(): a("s_sub_u32 s32, s32, 1\ns_cbranch_scc1 L_exit")
    def nap(n):
        if n: a(f"s_sleep {n}")
    def wait_flag(off, val, addr="v14", sl=None):
        l, d = L("wf"), L("wfd")
        a(f"{l}:\nds_read_b32 v15, {addr} offset:{off}")
        a("s_waitcnt lgkmcnt(0)\nv_readfirstlane_b32 s33, v15")
        a(f"s_cmp_ge_u32 s33, {val}\ns_cbranch_scc1 {d}")
        nap(P["sl_lds"] if sl is None else sl)
        budget()
        a(f"s_branch {l}\n{d}:")
    def set_flag(off, val, addr="v14"):
        a(f"v_mov_b32 v15, {val}\nds_write_b32 {addr}, v15 offset:{off}")
    def add_flag(off):
        a(f"s_mov_b64 exec, 1\nv_mov_b32 v15, 1\nds_add_u32 v14, v15 offset:{off}\ns_mov_b64 exec, -1")
    def poll(loads, regs, sleep, issued=False):
        l, c, d = L("pl"), L("plc"), L("pld")
        if issued: a(f"s_branch {c}")
        a(f"{l}:")
        for x in loads: a(x)
        vm(0)
        a(f"{c}:")
        rs = list(regs)
        a(f"v_max_u32 v15, v{rs[0]}, v{rs[1]}")
        for i in range(2, len(rs), 2): a(f"v_max3_u32 v15, v15, v{rs[i]}, v{rs[i+1]}")
        a(f"v_cmp_eq_u32 vcc, -1, v15\ns_cbranch_vccz {d}")
        a("s_mov_b64 exec, vcc")
        nap(sleep)
        budget()
        a(f"s_branch {l}\n{d}:")
        a("s_mov_b64 exec, -1")
    def transpose(dst, src, ps=range(4)):
        for p in ps:
            for d in range(4):
                for e in range(2):
                    a(f"v_perm_b32 v{dst+4*(2*d+e)+p}, v{src+4*(2*p+1)+d}, v{src+8*p+d}, s{34+e}")
    def mfma(d, A, B, c):
        cc = "0" if c is None else f"v[{c}:{c+3}]"
        a(f"v_mfma_f32_16x16x32_bf16 v[{d}:{d+3}], v[{A}:{A+3}], v[{B}:{B+3}], {cc}")
    def dpp(op, d, s0, s1, ctl, bank="0xf"):
        a(f"{op}_dpp v{d}, v{s0}" + (f", v{s1}" if s1 is not None else "") + f" {ctl} row_mask:0xf bank_mask:{bank}")
    def xrow(op, v, t):
        a(f"v_mov_b32 v{t}, v{v}\nv_permlane16_swap_b32 v{v}, v{t}\n{op} v{v}, v{v}, v{t}")
        a(f"v_mov_b32 v{t}, v{v}\nv_permlane32_swap_b32 v{v}, v{t}\n{op} v{v}, v{v}, v{t}")
    def rbf(d, s):
        a(f"v_cvt_pk_bf16_f32 v{d}, v{s}, v{s}\nv_and_b32 v{d}, 0xffff0000, v{d}")
    def fold(res, t, x, y):
        if t < 4: dpp("v_add_f32", res + t, y, x, "row_ror:8", "0x3")
        else: dpp("v_add_f32", res + t - 4, x, y, "row_ror:8", "0xc")
    def red_head(op, v):
        dpp(op, v, v, v, "row_ror:4"); dpp(op, v, v, v, "row_ror:8"); xrow(op, v, 10)

    def epoch():
        a(f"s_load_dword s96, s[26:27], {hex(EP)}")
    def epoch_wait():
        a("s_waitcnt lgkmcnt(0)\ns_add_u32 s96, s96, 0x01010101")
    a(f"{KNAME}:")
    if dbg:
        for k in range(66, 96, 2): a(f"s_mov_b64 s[{k}:{k+1}], 0")
    stamp(0)
    pass
    a("s_load_dwordx16 s[4:19], s[0:1], 0\ns_load_dwordx8 s[20:27], s[0:1], 64")
    a("s_cmp_ge_u32 s2, 256\ns_cbranch_scc1 L_end")
    a("v_lshrrev_b32 v1, 6, v0\nv_and_b32 v0, 63, v0\nv_readfirstlane_b32 s3, v1")
    a("s_and_b32 s28, s2, 7\ns_bfe_u32 s29, s2, 0x20003\ns_lshr_b32 s30, s2, 5")
    a("s_mov_b32 s32, 0x8000\ns_mov_b32 s34, 0x05040100\ns_mov_b32 s35, 0x07060302")
    a(f"v_mov_b32 v14, {L_FLAG}")
    a("v_lshrrev_b32 v12, 4, v0\nv_and_b32 v13, 15, v0")
    a("s_and_b32 s31, s3, 3")
    a("s_lshl_b32 s60, s29, 3\ns_add_u32 s60, s60, s28\ns_lshl_b32 s60, s60, 22")
    a(f"s_mul_i32 s61, s30, {P['SS']}\ns_add_u32 s60, s60, s61\ns_add_u32 s60, s60, 0x300000")
    a(f"s_mul_i32 s62, s2, {P['rot']}")
    a(f"s_lshl_b32 s63, s28, 1\ns_lshr_b32 s61, s29, 1\ns_add_u32 s63, s63, s61\ns_mul_i32 s63, s63, {RS}\ns_and_b32 s101, s29, 1")
    a(f"s_add_u32 s100, s28, {P['shW']}\ns_and_b32 s100, s100, 7")
    a("s_cmp_eq_u32 s3, 1\ns_cbranch_scc1 L_W1")
    a("s_cmp_eq_u32 s3, 2\ns_cbranch_scc1 L_W2")
    a("s_cmp_eq_u32 s3, 3\ns_cbranch_scc1 L_W3")
    a("s_cmp_ge_u32 s3, 4\ns_cbranch_scc1 L_T")

    a("s_mov_b32 s31, 3")
    for ii in range(4):
        a(f"v_lshl_add_u32 v1, v12, 2, {ii}\nv_xor_b32 v1, v1, v13\nv_lshlrev_b32 v1, 4, v1\nv_lshl_add_u32 v{4+ii}, v12, 8, v1")
    a("s_mov_b32 s48, 0")
    a("s_waitcnt lgkmcnt(0)")
    srd(40, 6, 0x8000000)
    def ktile():
        a(f"s_add_u32 s49, s48, s62\ns_and_b32 s49, s49, 7\ns_lshl_b32 s49, s49, 12")
        a(f"s_lshr_b32 s50, s48, 3\ns_mul_i32 s50, s50, {P['SJ']}\ns_add_u32 s49, s49, s50\ns_add_u32 s49, s49, s60")
        a("s_lshl_b32 m0, s48, 12\ns_add_u32 s48, s48, 1")
        for ii in range(4):
            a(f"buffer_load_dwordx4 v{4+ii}, s[40:43], s49 offen offset:{ii*1024} nt lds")
    a("L_kA:"); ktile()
    a(f"s_cmp_lt_u32 s48, {P['burst']}\ns_cbranch_scc1 L_kA")
    stamp(9)
    a("s_barrier")
    stamp(8)
    a("L_kB:")
    hi = P["thrK"] + (P["dF"] or P["dW"])
    vm_role(P["thrK"])
    a(f"s_sub_u32 s51, s48, {(hi+3)//4}\ns_max_i32 s51, s51, 0")
    set_flag(F_K, "s51")
    ktile()
    a("s_cmp_lt_u32 s48, 32\ns_cbranch_scc1 L_kB")
    if P["hV"][0] < 63: vm(P["hV"][0])
    set_flag(F_TURN, 1)
    stamp(6)
    vm(0)
    set_flag(F_K, 32)
    stamp(7)
    if P["dyn"]:
        wait_flag(F_Q, 1, sl=2)
        a(f"s_add_u32 s48, s63, {TK}\ns_add_u32 s50, s26, s48\ns_addc_u32 s51, s27, 0\ns_mov_b32 s48, 1\ns_atomic_add s48, s[50:51], 0 glc\ns_waitcnt lgkmcnt(0)")
    else:
        a("s_add_u32 s48, s30, 4\ns_and_b32 s48, s48, 7\ns_cmp_eq_u32 s48, 7\ns_cselect_b32 s48, 15, s48")
        a("s_add_u32 s49, s30, 5\ns_and_b32 s49, s49, 7\ns_add_u32 s49, s49, 7\ns_cmp_eq_u32 s101, 1\ns_cselect_b32 s48, s48, s49")
    a("s_and_b32 s48, s48, 15\ns_add_u32 s48, s48, 1")
    set_flag(F_R, "s48")
    a("s_branch L_S")

    a("L_W1:")
    a("v_bfe_u32 v1, v0, 2, 2\nv_lshlrev_b32 v1, 10, v1")
    a("v_and_b32 v2, 3, v0\nv_lshl_add_u32 v2, v12, 2, v2\nv_lshl_add_u32 v2, v2, 6, v1")
    a("v_and_b32 v3, 1, v0\nv_lshlrev_b32 v3, 6, v3\nv_lshl_add_u32 v3, v12, 4, v3\nv_add_u32 v3, v3, v1")
    a("v_bfe_u32 v4, v0, 3, 1\nv_lshl_add_u32 v4, v4, 2, v12\nv_lshlrev_b32 v4, 16, v4\nv_and_b32 v5, 7, v0\nv_lshl_add_u32 v4, v5, 4, v4")
    a(f"s_add_u32 s59, s28, {P['shQ']}\ns_and_b32 s59, s59, 7")
    a("s_lshl_b32 s48, s29, 20\ns_lshl_b32 s49, s59, 10\ns_add_u32 s48, s48, s49\ns_lshl_b32 s49, s30, 7\ns_add_u32 s48, s48, s49")
    a("s_lshl_b32 s50, s29, 8")
    a("s_waitcnt lgkmcnt(0)")
    epoch()
    srd(40, 4, 4096); srd(44, 10, 0x400000); srd(36, 26, WS_BYTES)
    a("s_or_b32 s49, s30, s101\ns_cbranch_scc1 L_W1t")
    a(f"s_lshl_b32 s49, s59, 1\ns_lshr_b32 s51, s29, 1\ns_add_u32 s49, s49, s51\ns_mul_i32 s49, s49, {RS}\ns_add_u32 s49, s49, {TK}")
    a("s_mov_b64 exec, 1\nv_mov_b32 v6, 0\nbuffer_store_dword v6, v6, s[36:39], s49 offen sc1\ns_mov_b64 exec, -1\nL_W1t:")
    for k in range(4): a(f"buffer_load_dwordx4 v[{16+4*k}:{19+4*k}], v2, s[40:43], 0 offen offset:{16*k}")
    for u in range(2): a(f"buffer_load_dwordx4 v[{32+4*u}:{35+4*u}], v3, s[40:43], s50 offen offset:{128*u}")
    def wql(n):
        r = 96 + 4 * n
        a(f"buffer_load_dwordx4 v[{r}:{r+3}], v4, s[44:47], s48 offen{P['ntq']}")
        if n < 15: a(f"s_add_u32 s48, s48, {8192 if n != 7 else 57*8192}")
    qc = P["qcap"]
    for n in range(qc): wql(n)
    epoch_wait()
    a("s_barrier")
    vm(qc + 2)
    for k in range(16):
        a(f"v_lshlrev_b32 v{160+2*k}, 16, v{16+k}\nv_and_b32 v{161+2*k}, 0xffff0000, v{16+k}")
    a("v_pk_add_f32 v[6:7], v[160:161], v[162:163]")
    for k in range(2, 16): a(f"v_pk_add_f32 v[6:7], v[6:7], v[{160+2*k}:{161+2*k}]")
    a("v_add_f32 v6, v6, v7")
    def red_batch(v):
        dpp("v_add_f32", v, v, v, "quad_perm:[1,0,3,2]"); dpp("v_add_f32", v, v, v, "quad_perm:[2,3,0,1]")
        xrow("v_add_f32", v, 9)
    red_batch(6)
    a("v_mul_f32 v6, 0x3b000000, v6")
    a("v_mov_b32 v7, 0")
    for k in range(32): a(f"v_sub_f32 v{160+k}, v{160+k}, v6")
    for k in range(32): a(f"v_fmac_f32 v7, v{160+k}, v{160+k}")
    red_batch(7)
    a("v_mul_f32 v7, 0x3b000000, v7")
    rbf(6, 6); rbf(7, 7)
    a("v_add_f32 v7, 0x3727c5ac, v7"); rbf(7, 7)
    a("v_sqrt_f32 v7, v7"); rbf(7, 7)
    a("v_rcp_f32 v7, v7")
    vm(qc)
    for k in range(8):
        a(f"v_lshlrev_b32 v8, 16, v{32+k}\nv_and_b32 v9, 0xffff0000, v{32+k}\nv_sub_f32 v8, v8, v6\nv_sub_f32 v9, v9, v6")
        a(f"v_cvt_pk_bf16_f32 v9, v8, v9\nv_lshlrev_b32 v8, 16, v9\nv_and_b32 v9, 0xffff0000, v9")
        a(f"v_mul_f32 v8, v8, v7\nv_mul_f32 v9, v9, v7\nv_cvt_pk_bf16_f32 v{32+k}, v8, v9")
    stamp(6)
    for n in range(qc, 16):
        vm(qc - 1); wql(n)
    vm(8); transpose(64, 96)
    for t in range(8): mfma(192 + 4 * t, 32, 64 + 4 * t, None)
    vm(0); transpose(96, 128)
    for t in range(8): mfma(192 + 4 * t, 36, 96 + 4 * t, 192 + 4 * t)
    a(f"v_lshrrev_b32 v1, 5, v0\nv_mul_u32_u24 v1, {RS}, v1\nv_and_b32 v2, 1, v12\nv_lshl_add_u32 v1, v2, 13, v1")
    a("v_lshl_add_u32 v1, v5, 5, v1\nv_bfe_u32 v2, v0, 3, 1\nv_lshl_add_u32 v1, v2, 4, v1")
    a(f"s_mul_i32 s48, s59, {2*RS}\ns_lshl_b32 s49, s29, 11\ns_add_u32 s48, s48, s49\ns_lshl_b32 s49, s30, 8\ns_add_u32 s48, s48, s49\ns_add_u32 s48, s48, {QP}")
    for t in range(8): fold(16, t, 192 + 4 * t, 193 + 4 * t)
    a("v_mov_b32 v6, s96")
    for v in range(4): a(f"s_mov_b32 s49, {hex(0x07060500 + v)}\nv_perm_b32 v{16+v}, v{16+v}, v6, s49")
    if P["noq"] < 2: a(f"buffer_store_dwordx4 v[16:19], v1, s[36:39], s48 offen{P['stq']}")
    set_flag(F_QP, 1)
    stamp(8)
    a("s_branch L_S")

    a("L_W2:")
    a("v_lshlrev_b32 v2, 4, v0")
    a(f"s_lshl_b32 s48, s101, 13\ns_add_u32 s48, s48, s63\ns_add_u32 s48, s48, {QP}\ns_add_u32 s49, s48, 4096")
    a("s_waitcnt lgkmcnt(0)")
    epoch()
    srd(36, 26, WS_BYTES)
    epoch_wait()
    a("s_barrier")
    for k in range(4): a(f"s_bfe_u32 s{52+k}, s96, {hex(0x80000 + 8 * k)}")
    wait_flag(F_QP, 1, sl=2)
    if P["q_gate"]: wait_flag(F_K, P["q_gate"], sl=4)
    stamp(7)
    nap(P["pre_q"])
    if P["noq"]: a("s_branch L_W2q")
    a("L_W2p:")
    for k in range(8): a(f"buffer_load_dwordx4 v[{16+4*k}:{19+4*k}], v2, s[36:39], s{48+(k>>2)} offen offset:{(k&3)*1024} sc1")
    vm(0)
    for r in range(16, 48): a(f"v_xor_b32 v{r}, s{52+(r&3)}, v{r}")
    a("v_or_b32 v15, v16, v17")
    for r in range(18, 48, 2): a(f"v_or3_b32 v15, v15, v{r}, v{r+1}")
    a("v_and_b32 v15, 0xff, v15\nv_cmp_ne_u32 vcc, 0, v15\ns_cbranch_vccz L_W2q")
    nap(P["sl_q"])
    budget()
    a("s_branch L_W2p\nL_W2q:")
    for h in range(2):
        for ks in range(1, 4):
            for z in range(2):
                r = 16 + 4 * h + 2 * z
                a(f"v_pk_add_f32 v[{r}:{r+1}], v[{r}:{r+1}], v[{r+8*ks}:{r+8*ks+1}]")
        a(f"v_cvt_pk_bf16_f32 v{6+2*h}, v{16+4*h}, v{17+4*h}\nv_cvt_pk_bf16_f32 v{7+2*h}, v{18+4*h}, v{19+4*h}")
    a(f"v_lshlrev_b32 v1, 3, v0\nv_add_u32 v1, {L_Q}, v1")
    a("ds_write_b64 v1, v[6:7]\nds_write_b64 v1, v[8:9] offset:512")
    set_flag(F_Q, 1)
    stamp(8)
    a("s_branch L_S")

    a("L_W3:")
    a("s_mov_b32 s31, 0")
    if P["pref"]:
        a("s_getpc_b64 s[48:49]\nL_pc:")
        a(f"s_sub_u32 s48, s48, L_pc-{KNAME}\ns_subb_u32 s49, s49, 0")
        a(f"s_mov_b32 s50, L_fin-{KNAME}-4")
        a("v_lshlrev_b32 v1, 7, v0")
        if P["pref"] == 2:
            a("s_lshr_b32 s51, s2, 3\ns_lshl_b32 s51, s51, 9\nv_add_u32 v2, s51, v1\nv_min_u32 v2, s50, v2\ns_mov_b64 exec, 15\nglobal_load_dword v16, v2, s[48:49]\ns_mov_b64 exec, -1")
        else:
            for k in range(2):
                a(f"v_add_u32 v2, {k*8192}, v1\nv_min_u32 v2, s50, v2\nglobal_load_dword v{16+k}, v2, s[48:49]")
    a("v_lshl_add_u32 v1, v0, 2, v14\nv_mov_b32 v2, 0\nds_write_b32 v1, v2")
    a("s_waitcnt lgkmcnt(0)\ns_barrier")
    if P["tlb"]:
        a("v_mov_b32 v1, s60\ns_mov_b64 exec, 1\nglobal_load_dword v19, v1, s[8:9] nt")
        if P["tlb"] > 1:
            a("s_lshl_b32 s48, s100, 19\nv_mov_b32 v1, s48\nglobal_load_dword v19, v1, s[12:13] nt\nv_mov_b32 v1, 0")
            for p in (16, 18, 20, 22): a(f"global_load_dword v19, v1, s[{p}:{p+1}] nt")
        a("s_mov_b64 exec, -1")
    def touch(v, p): a(f"global_load_dword v18, {v}, s[{p}:{p+1}] sc1 nt\nglobal_load_dword v18, {v}, s[{p}:{p+1}] sc1")
    if P["c3"]:
        if P["c3"] > 1: wait_flag(F_K, P["c3"], sl=4)
        a("s_lshr_b32 s55, s2, 3")
        if P["c3w"]:
            a("s_lshl_b32 s48, s100, 19\ns_lshl_b32 s49, s55, 14\ns_add_u32 s48, s48, s49\ns_add_u32 s48, s48, 384")
            a("v_lshlrev_b32 v1, 10, v13\nv_add_u32 v1, s48, v1\ns_mov_b64 exec, 0xffff"); touch("v1", 12); a("s_mov_b64 exec, -1")
        if P["c3f"]:
            a("s_mul_i32 s52, s28, 448\ns_lshr_b32 s52, s52, 7\ns_or_b32 s49, s52, 3\ns_bfe_u32 s50, s49, 0x10002\ns_lshl_b32 s49, s49, 7")
            a("v_and_b32 v2, 7, v0\nv_lshlrev_b32 v2, 1, v2\nv_add_u32 v2, s50, v2\nv_mul_u32_u24 v2, 3584, v2")
            a(f"s_mul_i32 s51, s55, {16*3584}\ns_add_u32 s51, s51, s49\nv_add_u32 v2, s51, v2")
            a("s_mov_b64 exec, 0xff"); touch("v2", 16); touch("v2", 18); a("s_mov_b64 exec, -1")

    a("L_S:")
    srd(40, 8, 0x8000000); srd(36, 26, WS_BYTES)
    a("v_lshlrev_b32 v1, 4, v0")
    a(f"s_mul_i32 s48, s31, {P['SJ']}\ns_add_u32 s48, s48, s60")
    for tau in range(8):
        a(f"s_add_u32 s49, s62, {tau}\ns_and_b32 s49, s49, 7\ns_lshl_b32 s49, s49, 12\ns_add_u32 s{52+tau}, s49, s48")
    a(f"v_lshrrev_b32 v2, 2, v13\nv_lshl_add_u32 v2, v12, 4, v2\nv_lshlrev_b32 v2, 4, v2\ns_lshl_b32 s49, s31, 10\ns_add_u32 s49, s49, {L_P}\nv_add_u32 v2, s49, v2")
    a(f"s_lshl_b32 s49, s31, 11\ns_add_u32 s49, s49, {L_DEP - 2048}\nv_lshl_add_u32 v3, v0, 2, s49")
    a("s_lshl_b32 s49, s31, 2\nv_add_u32 v5, s49, v14")
    a(f"s_lshl_b32 s48, s101, 13\ns_lshl_b32 s49, s30, 10\ns_add_u32 s48, s48, s49\ns_add_u32 s48, s48, s63")
    for t in range(8): a(f"v_mov_b32 v{32+4*t}, 0")
    a("s_add_u32 s50, s31, 1")
    wait_flag(F_TURN, "s50")
    stamp(1)
    for tau in range(8):
        if 4 * tau > P["thrV"]: vm_role(P["thrV"])
        for q in range(4):
            r = 96 + 16 * tau + 4 * q
            a(f"buffer_load_dwordx4 v[{r}:{r+3}], v1, s[40:43], s{52+tau} offen offset:{q*1024} nt")
    vm_by("s31", P["hV"][1:], (1, 2, 3))
    a("s_add_u32 s51, s31, 2")
    set_flag(F_TURN, "s51")
    if P["prio"]: a("s_setprio 3")
    stamp(2)
    vm(24); transpose(64, 96)
    wait_flag(F_P, 1, addr="v5")
    for q in range(4): a(f"ds_read_b128 v[{16+4*q}:{19+4*q}], v2 offset:{64*q}")
    a("s_cmp_eq_u32 s31, 0\ns_cbranch_scc1 L_Sc")
    wait_flag(F_DEP, "s31")
    for t in range(8): a(f"ds_read_b32 v{32+4*t}, v3 offset:{256*t}")
    a("L_Sc:")
    lgkm(0)
    stamp(3)
    for q in range(4):
        if q in (1, 2): vm(24 - 8 * q); transpose(64 + 32 * q, 96 + 32 * q)
        if q == 3:
            for p in range(4):
                vm(6 - 2 * p); transpose(160, 192, [p])
            stamp(4)
        for t in range(8): mfma(32 + 4 * t, 16 + 4 * q, 64 + 32 * q + 4 * t, 32 + 4 * t)
    a("s_cmp_eq_u32 s31, 3\ns_cbranch_scc1 L_S3")
    for k in range(4): a(f"ds_write2st64_b32 v3, v{32+8*k}, v{36+8*k} offset0:{8+2*k} offset1:{9+2*k}")
    set_flag(F_DEP, "s50")
    a("s_branch L_exit")
    a("L_S3:")
    for k in range(4): a(f"v_cvt_pk_bf16_f32 v{8+k}, v{32+8*k}, v{36+8*k}\nv_min_u32 v{8+k}, -2, v{8+k}")
    a(f"buffer_store_dwordx4 v[8:11], v1, s[36:39], s48 offen{P['st1']}")
    set_flag(F_TURN, 6)
    stamp(5)
    a("s_branch L_exit")

    a("L_T:")
    def hp_addr(g, cs):
        a(f"s_lshr_b32 s51, {g}, 2\ns_add_u32 s51, s51, 14\ns_mul_i32 s51, s51, {RS}\ns_and_b32 s49, {g}, 3\ns_lshl_b32 s49, s49, 10\ns_add_u32 s51, s51, s49")
        a(f"s_add_u32 s51, s51, s52\ns_lshl_b32 s49, {cs}, 7\ns_add_u32 s51, s51, s49")
    def dp_addr(sp):
        a(f"s_mul_i32 s61, s28, 7\ns_add_u32 s61, s61, {sp}")
        a(f"s_add_u32 s55, s52, s53\ns_lshr_b32 s54, s61, 2\ns_mul_i32 s54, s54, {RS}\ns_and_b32 s49, s61, 3\ns_lshl_b32 s49, s49, 10\ns_add_u32 s54, s54, s49")
        a(f"s_add_u32 s54, s54, s55\ns_add_u32 s55, s55, {14*RS}")
    a(f"s_lshl_b32 s53, s31, 8\ns_and_b32 s62, s29, 2\ns_lshl_b32 s52, s62, 12\ns_add_u32 s52, s52, {DP}")
    hp_addr("s28", "s30"); dp_addr("s30")
    a(f"s_lshl_b32 s60, s101, 13\ns_add_u32 s60, s60, s53\ns_add_u32 s60, s60, s63\ns_lshl_b32 s49, s30, 10\ns_add_u32 s50, s60, s49")
    a("v_lshlrev_b32 v246, 12, v12\nv_lshl_add_u32 v246, v13, 4, v246")
    a("v_mov_b32 v248, -1\nv_mov_b32 v249, -1\nv_mov_b32 v250, -1\nv_mov_b32 v251, -1")
    a(f"v_and_b32 v1, 3, v0\nv_lshlrev_b32 v1, 8, v1\nv_lshl_add_u32 v1, v12, 4, v1\nv_add_u32 v1, {L_Q}, v1")
    a("v_and_b32 v8, 3, v0\nv_lshlrev_b32 v8, 2, v8\nv_lshrrev_b32 v9, 2, v13\nv_add_u32 v8, v8, v9\nv_lshlrev_b32 v8, 8, v8")
    a("s_lshl_b32 s48, s31, 15\nv_add_u32 v8, s48, v8")
    for m in range(4):
        a(f"v_add_u32 v9, {4*m}, v12\nv_xor_b32 v9, v9, v13\nv_lshl_add_u32 v{4+m}, v9, 4, v8")
    a("s_waitcnt lgkmcnt(0)")
    epoch()
    srd(36, 26, WS_BYTES)
    a(f"s_mov_b64 exec, 0xffff\nbuffer_store_dwordx4 v[248:251], v246, s[36:39], s50 offen{P['st1']}")
    a("s_cmp_eq_u32 s101, 1\ns_cbranch_scc1 L_Tc1")
    a("s_cmp_lg_u32 s31, 3\ns_cbranch_scc1 L_Tc2")
    a(f"s_mov_b64 exec, 0x00ff00ff\nbuffer_store_dwordx4 v[248:251], v246, s[36:39], s51 offen{P['stc']}")
    a("s_branch L_Tc2")
    a(f"L_Tc1:\ns_cmp_eq_u32 s30, 7\ns_cbranch_scc1 L_Tc2")
    a(f"s_mov_b32 exec_lo, -1\nbuffer_store_dwordx4 v[248:251], v246, s[36:39], s54 offen{P['stc']}")
    a("L_Tc2:\ns_mov_b64 exec, -1")
    epoch_wait()
    a("s_barrier")

    wait_flag(F_Q, 1, sl=2)
    stamp(3)
    for m in range(4): a(f"ds_read_b128 v[{16+4*m}:{19+4*m}], v1 offset:{64*m}")
    a("s_add_u32 s48, s31, 1\ns_lshl_b32 s48, s48, 3")
    wait_flag(F_K, "s48", sl=2)
    stamp(4)
    def kread(tau):
        for m in range(4):
            r = 64 + 16 * (tau % 6) + 4 * m
            a(f"ds_read_b128 v[{r}:{r+3}], v{4+m} offset:{4096*tau}")
    kread(0); kread(1)
    for tau in range(8):
        if tau + 2 < 8: kread(tau + 2)
        lgkm(8 if tau < 6 else 4 if tau == 6 else 0)
        for m in range(4): mfma(32 + 4 * tau, 64 + 16 * (tau % 6) + 4 * m, 16 + 4 * m, None if m == 0 else 32 + 4 * tau)
    for q in range(1, 4):
        for k in range(8): dpp("v_mov_b32", 32 + k, 32 + 8 * q + k, None, "quad_perm:[0,1,2,3]", hex(1 << q))
    a("s_mov_b32 s50, 0x3db504f3\ns_mov_b32 s59, 0x3fb8aa3b")
    for k in range(0, 8, 2):
        x, y = 32 + k, 33 + k
        a(f"v_cvt_pk_bf16_f32 v{y}, v{x}, v{y}\nv_lshlrev_b32 v{x}, 16, v{y}\nv_and_b32 v{y}, 0xffff0000, v{y}")
        a(f"v_mul_f32 v{x}, s50, v{x}\nv_mul_f32 v{y}, s50, v{y}")
        a(f"v_cvt_pk_bf16_f32 v{y}, v{x}, v{y}\nv_lshlrev_b32 v{x}, 16, v{y}\nv_and_b32 v{y}, 0xffff0000, v{y}")
    a("v_max3_f32 v8, v32, v33, v34\nv_max3_f32 v8, v8, v35, v36\nv_max3_f32 v8, v8, v37, v38\nv_max_f32 v8, v8, v39")
    red_head("v_max_f32", 8)
    a(f"v_and_b32 v5, 3, v0\nv_lshlrev_b32 v5, 4, v5\nv_add_u32 v5, {L_M}, v5\ns_lshl_b32 s48, s31, 2\nv_add_u32 v4, s48, v5")
    vm(0)
    a("s_mov_b64 exec, 15\nds_write_b32 v4, v8")
    add_flag(F_M)
    wait_flag(F_M, 4)
    a("ds_read_b128 v[16:19], v5")
    lgkm(0)
    a("v_max3_f32 v8, v16, v17, v18\nv_max_f32 v8, v8, v19")
    for k in range(8): a(f"v_sub_f32 v{40+k}, v{32+k}, v8")
    for k in range(8): a(f"v_mul_f32 v{40+k}, s59, v{40+k}")
    for k in range(8): a(f"v_exp_f32 v{40+k}, v{40+k}")
    a("v_lshlrev_b32 v4, 4, v0")
    for k in range(4): a(f"v_cvt_pk_bf16_f32 v{16+k}, v{40+2*k}, v{41+2*k}")
    a(f"s_lshl_b32 s48, s31, 10\ns_add_u32 s48, s48, {L_P}\nv_add_u32 v5, s48, v4\nds_write_b128 v5, v[16:19]")
    a("s_lshl_b32 s48, s31, 2\nv_add_u32 v5, s48, v14")
    set_flag(F_P, 1, addr="v5")
    stamp(5)
    a("v_add_f32 v9, v40, v41")
    for k in range(2, 8): a(f"v_add_f32 v9, v9, v{40+k}")
    red_head("v_add_f32", 9)
    a(f"s_lshl_b32 s58, s101, 11\ns_add_u32 s58, s58, s63\ns_add_u32 s58, s58, {ST}")
    a("s_lshl_b32 s49, s30, 2\ns_add_u32 s49, s49, s31\ns_lshl_b32 s49, s49, 6\ns_add_u32 s49, s49, s58")
    a("v_mov_b32 v20, v8\nv_mov_b32 v21, s96\nv_mov_b32 v22, v9\nv_mov_b32 v23, s96")
    a("s_mov_b64 exec, 15\nbuffer_store_dwordx4 v[20:23], v4, s[36:39], s49 offen sc1\ns_mov_b64 exec, -1")
    a("s_lshl_b32 s57, s31, 15")
    a("v_bfe_u32 v8, v0, 3, 1\nv_and_b32 v9, 1, v12\nv_lshl_add_u32 v8, v9, 1, v8")
    a("v_lshlrev_b32 v9, 10, v12\nv_bfe_u32 v10, v0, 2, 2\nv_lshl_add_u32 v9, v10, 7, v9\nv_and_b32 v10, 3, v0\nv_lshl_add_u32 v9, v10, 3, v9\nv_add_u32 v9, s57, v9")
    for t in range(4): a(f"v_xor_b32 v10, {t}, v8\nv_lshl_add_u32 v{4+t}, v10, 5, v9")
    a("s_add_u32 s56, s57, 16384\nv_lshl_add_u32 v9, v13, 8, s56")
    for k in range(4):
        a(f"v_add_u32 v10, {4*k}, v12\nv_xor_b32 v10, v10, v13\nv_lshl_add_u32 v{60+k}, v10, 4, v9\nv_lshlrev_b32 v10, 4, v10\nv_lshl_add_u32 v{252+k}, v12, 10, v10")
    a("v_bfe_u32 v8, v0, 4, 1\nv_lshlrev_b32 v8, 1, v8\nv_and_b32 v9, 7, v0\nv_xor_b32 v8, v8, v9\nv_lshrrev_b32 v9, 3, v0")
    wait_flag(F_R, 1, sl=2)
    a("s_sub_u32 s97, s33, 1\ns_cmp_eq_u32 s97, 15\ns_cbranch_scc1 L_exit")
    if P["wfirst"]: a("s_add_u32 s97, s97, 7\ns_cmp_ge_u32 s97, 15\ns_cselect_b32 s49, 15, 0\ns_sub_u32 s97, s97, s49")
    a("s_cmp_lt_u32 s97, 7\ns_cbranch_scc1 L_F")
    a("s_sub_u32 s30, s97, 4\ns_and_b32 s30, s30, 7")
    hp_addr("s100", "s30")

    def wreads(ks):
        for t in range(4):
            for hh in range(2):
                r = 64 + 16 * ks + 4 * t + 2 * hh
                a(f"ds_read_b64_tr_b16 v[{r}:{r+1}], v{4+t} offset:{4096*ks + 512*hh}")
    def gather_dma(soffs):
        for k in range(4):
            a(f"s_add_u32 m0, s56, {1024*k}")
            a(f"buffer_load_dwordx4 v{252+k}, s[36:39], {soffs[k]} offen sc1 lds")
    def gather_finish(soffs, sleep, th, sd, n=0, va=None):
        l, c, p, d = L("gl"), L("gc"), L("gp"), L("gd")
        def check():
            a("v_max_u32 v15, v16, v17")
            for i in range(18, 32, 2): a(f"v_max3_u32 v15, v15, v{i}, v{i+1}")
            a(f"v_cmp_eq_u32 vcc, -1, v15\ns_cbranch_vccz {d}")
        vm(n)
        a(f"{c}:")
        for k in range(4): a(f"ds_read_b128 v[{16+4*k}:{19+4*k}], v{60+k}")
        a("s_waitcnt lgkmcnt(0)")
        check()
        a(f"s_bcnt1_i32_b64 s33, vcc\ns_cmp_le_u32 s33, {th}\ns_cbranch_scc1 {p}")
        nap(sd)
        budget()
        gather_dma(soffs)
        vm(0)
        a(f"s_branch {c}")
        a(f"{p}:\ns_mov_b64 exec, vcc")
        for ks in range(4):
            if va is None: a(f"buffer_load_dwordx4 v[{16+4*ks}:{19+4*ks}], v1, s[36:39], {soffs[0]} offen offset:{64*ks} sc1")
            else: a(f"buffer_load_dwordx4 v[{16+4*ks}:{19+4*ks}], v{va+ks}, s[36:39], {soffs[0]} offen sc1")
        vm(0)
        check()
        nap(sleep)
        budget()
        a(f"s_branch {p}\n{d}:\ns_mov_b64 exec, -1")
    def gemv(post):
        for t in range(4):
            for ks in range(4):
                mfma(32 + 4 * t, 16 + 4 * ks, 64 + 16 * ks + 4 * t, None if ks == 0 else 32 + 4 * t)
                post(t, ks)

    srd(40, 12, 0x400000)
    a("v_lshlrev_b32 v2, 10, v9\nv_lshl_add_u32 v2, v8, 4, v2\nv_xor_b32 v3, 64, v2")
    a(f"s_lshl_b32 s63, s100, 1\ns_lshr_b32 s49, s29, 1\ns_add_u32 s63, s63, s49\ns_mul_i32 s63, s63, {RS}\ns_add_u32 s60, s63, s53\ns_add_u32 s58, s63, {ST}")
    a("s_add_u32 s61, s60, 4096\ns_add_u32 s54, s60, 8192\ns_add_u32 s55, s60, 12288")
    a("s_lshl_b32 s48, s100, 19\ns_lshl_b32 s49, s31, 17\ns_add_u32 s48, s48, s49\ns_lshl_b32 s49, s30, 7\ns_add_u32 s48, s48, s49")
    a("s_mov_b32 s44, s4\ns_mov_b32 s45, s5\ns_cmp_eq_u32 s100, 0\ns_cselect_b32 s46, 4096, 0\ns_mov_b32 s47, 0x20000")
    a("s_lshl_b32 s50, s62, 10\ns_add_u32 s50, s50, s49")
    a("v_lshrrev_b32 v8, 5, v0\nv_bfe_u32 v9, v0, 1, 4\nv_lshlrev_b32 v10, 3, v9\nv_lshl_add_u32 v11, v8, 10, v10\nv_lshl_add_u32 v59, v8, 12, v10")
    a("buffer_load_dwordx2 v[56:57], v11, s[44:47], s50 offen")
    a(f"v_and_b32 v10, 1, v0\nv_lshl_add_u32 v58, v8, 1, v10\nv_mul_u32_u24 v58, 320, v58\nv_lshl_add_u32 v58, v9, 4, v58\nv_add_u32 v58, {L_RED}, v58")
    a(f"v_mul_u32_u24 v247, 320, v12\nv_lshl_add_u32 v247, v13, 2, v247\ns_mul_i32 s49, s31, 1280\ns_add_u32 s49, s49, {L_RED}\nv_add_u32 v247, s49, v247")
    a("v_lshlrev_b32 v11, 6, v0\ns_lshl_b32 s49, s31, 4\ns_add_u32 s58, s58, s49")
    a("v_lshlrev_b32 v1, 10, v13\nv_lshl_add_u32 v1, v12, 4, v1")
    def wol(n):
        a(f"s_add_u32 m0, s57, {1024*n}\ns_add_u32 s49, s48, {8192*n}")
        a(f"buffer_load_dwordx4 v{2+(n&1)}, s[40:43], s49 offen{P['ntw']} lds")
    nw = 4 - P["eW"]
    if P["eW"]:
        if P["gE"]: wait_flag(F_TURN, P["gE"], sl=2)
        for n in range(4 * nw, 16):
            if n - 4 * nw >= 2 * P["capE"]: vm(2 * P["capE"] - 1)
            wol(n)
        vm(0)
        for ks in range(nw, 4):
            wreads(ks); a("s_waitcnt lgkmcnt(0)")
    wait_flag(F_TURN, P["gS"], sl=1)
    a("L_Tsp:")
    a("buffer_load_dwordx4 v[32:35], v11, s[36:39], s58 offen sc1")
    vm(0)
    a("v_xor_b32 v33, s96, v33\nv_xor_b32 v35, s96, v35\nv_or_b32 v15, v33, v35")
    a("v_cmp_ne_u32 vcc, 0, v15\ns_cbranch_vccz L_Tsq")
    nap(P["sl_st"])
    budget()
    a("s_branch L_Tsp\nL_Tsq:")
    a("v_mov_b32 v8, v32")
    dpp("v_max_f32", 8, 8, 8, "row_ror:4"); dpp("v_max_f32", 8, 8, 8, "row_ror:8")
    a("v_mov_b32 v10, v8\nv_permlane16_swap_b32 v8, v10\nv_max_f32 v8, v8, v10")
    a("v_sub_f32 v32, v32, v8\nv_mul_f32 v32, s59, v32\nv_exp_f32 v32, v32\nv_mul_f32 v9, v32, v34")
    for ctl in ("quad_perm:[1,0,3,2]", "quad_perm:[2,3,0,1]", "row_ror:4", "row_ror:8"): dpp("v_add_f32", 9, 9, 9, ctl)
    a("v_mov_b32 v10, v9\nv_permlane16_swap_b32 v9, v10\nv_add_f32 v9, v9, v10")
    a("v_rcp_f32 v9, v9\nv_mul_f32 v32, v32, v9")
    for r in range(4): dpp("v_mov_b32", 48 + r, 32, None, f"row_newbcast:{4*r}")
    a("v_lshlrev_b32 v52, 16, v56\nv_and_b32 v53, 0xffff0000, v56\nv_lshlrev_b32 v54, 16, v57\nv_and_b32 v55, 0xffff0000, v57")
    stamp(7)
    wait_flag(F_TURN, P["gW"], sl=1)
    cap = P["capW"]
    for n in range(4 * nw):
        if n >= cap and n % 2 == 0: vm(cap - 2)
        wol(n)
    stamp(1)
    go = ["s60", "s61", "s54", "s55"]
    for ks in range(nw):
        vm(4 * (nw - 1 - ks))
        if ks == nw - 1:
            if P["bw"]: a("s_barrier")
            gather_dma(go)
        if ks: a("s_waitcnt lgkmcnt(0)")
        wreads(ks)
    if nw == 0:
        wait_flag(F_TURN, 6, sl=0); gather_dma(go)
    stamp(6)
    gather_finish(go, P["sl_h1"], P["th1"], P["sd1"])
    stamp(8)
    def scale(t, r): a(f"v_mul_f32 v{8+t}, v{32+4*t}, v48" if r == 0 else f"v_fmac_f32 v{8+t}, v{32+4*t+r}, v{48+r}")
    def wpost(t, ks):
        if t == 3: scale(0, ks); scale(1, ks)
    gemv(wpost)
    a("ds_write2_b32 v247, v8, v9 offset0:0 offset1:16")
    for t in (2, 3):
        for r in range(4): scale(t, r)
    a("ds_write2_b32 v247, v10, v11 offset0:32 offset1:48\ns_waitcnt lgkmcnt(0)\ns_barrier")
    a("s_cmp_lg_u32 s31, 3\ns_cbranch_scc1 L_exit")
    for k in range(4): a(f"ds_read_b128 v[{32+4*k}:{35+4*k}], v58 offset:{1280*k}")
    lgkm(2)
    a("v_pk_add_f32 v[32:33], v[32:33], v[36:37]\nv_pk_add_f32 v[34:35], v[34:35], v[38:39]")
    lgkm(0)
    a("v_pk_add_f32 v[40:41], v[40:41], v[44:45]\nv_pk_add_f32 v[42:43], v[42:43], v[46:47]")
    a("v_pk_add_f32 v[32:33], v[32:33], v[40:41]\nv_pk_add_f32 v[34:35], v[34:35], v[42:43]")
    for v in range(4): dpp("v_add_f32", 32 + v, 32 + v, 32 + v, "quad_perm:[1,0,3,2]")
    a("v_pk_add_f32 v[32:33], v[32:33], v[52:53]\nv_pk_add_f32 v[34:35], v[34:35], v[54:55]")
    a("v_cvt_pk_bf16_f32 v36, v32, v33\nv_cvt_pk_bf16_f32 v37, v34, v35\nv_min_u32 v36, -2, v36\nv_min_u32 v37, -2, v37")
    dpp("v_mov_b32", 38, 36, None, "quad_perm:[2,3,2,3]"); dpp("v_mov_b32", 39, 37, None, "quad_perm:[2,3,2,3]")
    a("s_mov_b32 exec_lo, 0x11111111\ns_mov_b32 exec_hi, 0x11111111")
    a("buffer_store_dwordx4 v[36:39], v59, s[36:39], s51 offen sc1")
    stamp(9)
    a("s_branch L_exit")

    a("L_F:")
    a("s_add_u32 s30, s97, s28\ns_add_u32 s30, s30, 5\ns_mul_i32 s49, s30, 37\ns_lshr_b32 s49, s49, 8\ns_mul_i32 s49, s49, 7\ns_sub_u32 s30, s30, s49")
    dp_addr("s30")
    a("v_mul_u32_u24 v10, 3584, v9\nv_and_b32 v11, 3, v8\nv_lshl_add_u32 v10, v11, 4, v10")
    a(f"s_mul_i32 s49, s31, {128*3584}\ns_lshl_b32 s50, s61, 6\ns_add_u32 s49, s49, s50\nv_add_u32 v10, s49, v10\nv_mov_b32 v11, 0")
    a("v_lshl_add_u64 v[224:225], v[10:11], 0, s[16:17]\nv_lshl_add_u64 v[226:227], v[10:11], 0, s[18:19]")
    a("s_mov_b32 exec_lo, 0xf0f0f0f0\ns_mov_b32 exec_hi, 0xf0f0f0f0")
    a("v_lshl_add_u64 v[224:225], v[10:11], 0, s[18:19]\nv_lshl_add_u64 v[226:227], v[10:11], 0, s[16:17]\ns_mov_b64 exec, -1")
    a(f"s_mov_b32 s98, {8*3584}\ns_mov_b32 s99, 0\nv_lshl_add_u64 v[226:227], v[226:227], 0, s[98:99]\ns_mov_b32 s98, {16*3584}")
    srd(40, 20, 1792 * 1024); srd(44, 22, 4096)
    a("v_lshlrev_b32 v228, 12, v12\nv_lshl_add_u32 v228, v13, 4, v228")
    a("s_lshl_b32 s49, s61, 15\ns_add_u32 s49, s49, s53\ns_add_u32 s48, s49, 16384")
    a(f"s_mul_i32 s50, s31, 320\ns_add_u32 s50, s50, {L_CS}\nv_lshl_add_u32 v247, v13, 4, s50")
    for k in range(4): a(f"v_mov_b32 v{240+k}, 0x3f803f80")
    a(f"v_lshrrev_b32 v229, 5, v0\nv_mul_u32_u24 v229, {2*RS}, v229\nv_bfe_u32 v1, v0, 2, 3\nv_lshl_add_u32 v229, v1, 8, v229")
    a(f"s_lshl_b32 s58, s31, 2\ns_lshr_b32 s50, s29, 1\ns_add_u32 s58, s58, s50\ns_mul_i32 s58, s58, {RS}\ns_add_u32 s58, s58, {ST + 4}")
    a(f"v_bfe_u32 v1, v0, 2, 1\nv_mul_u32_u24 v1, {RS}, v1\nv_and_b32 v3, 3, v0\nv_lshl_add_u32 v1, v3, 10, v1\nv_bfe_u32 v3, v0, 3, 1\nv_lshl_add_u32 v1, v3, 12, v1\nv_lshl_add_u32 v1, v12, 4, v1")
    a(f"s_add_u32 s60, s55, {RS}\ns_add_u32 s63, s55, 4096\ns_add_u32 s51, s55, {RS + 4096}")
    a(f"v_mul_u32_u24 v2, 320, v12\nv_lshl_add_u32 v2, v13, 4, v2\ns_mul_i32 s50, s31, 1280\ns_add_u32 s50, s50, {L_RED}\nv_add_u32 v2, s50, v2")
    a("v_and_b32 v8, 3, v0\nv_lshl_add_u32 v8, v12, 2, v8\nv_lshlrev_b32 v8, 4, v8\nv_bfe_u32 v9, v0, 3, 1\nv_bfe_u32 v10, v0, 2, 1")
    a(f"v_mul_u32_u24 v230, 640, v9\nv_add3_u32 v230, v230, v8, v14\nv_add_u32 v230, {L_CS - L_FLAG}, v230")
    a(f"v_lshl_add_u32 v231, v10, 1, v9\nv_mul_u32_u24 v231, 320, v231\nv_add_u32 v231, v231, v8\nv_add_u32 v231, {L_RED}, v231")
    a(f"v_lshlrev_b32 v3, 5, v10\nv_add_u32 v3, {L_STAT}, v3")
    a(f"s_lshl_b32 s50, s31, 2\ns_add_u32 s50, s50, {L_STAT}\nv_lshl_add_u32 v59, v12, 4, s50")
    a(f"v_lshrrev_b32 v244, 2, v0\nv_mul_u32_u24 v244, {RS}, v244\nv_and_b32 v245, 3, v0\nv_lshl_add_u32 v244, v245, 10, v244\nv_lshlrev_b32 v245, 1, v0")
    a("s_lshl_b32 s50, s97, 1\ns_and_b32 s100, s31, 1\ns_add_u32 s50, s50, s100\ns_lshl_b32 s50, s50, 4\ns_lshl_b32 s100, s28, 7\ns_add_u32 s100, s100, s50")
    a("s_lshr_b32 s50, s31, 1\ns_add_u32 s101, s62, s50\ns_lshl_b32 s101, s101, 10\ns_add_u32 s101, s101, s100")
    a("s_lshl_b32 s50, s50, 12\ns_add_u32 s100, s100, s50\ns_add_u32 s100, s100, s52")
    a("v_lshrrev_b32 v8, 1, v13\nv_and_b32 v9, 1, v0\nv_lshlrev_b32 v9, 4, v9\ns_mov_b32 s50, 0x3f80\nv_lshlrev_b32 v9, v9, s50")
    for k in range(4): a(f"v_cmp_eq_u32 vcc, {k}, v8\nv_cndmask_b32 v{248+k}, 0, v9, vcc")
    def dnl():
        for jj in range(8):
            r = 192 + 4 * jj
            a(f"buffer_load_dwordx4 v[{r}:{r+3}], v228, s[40:43], s{48 if jj & 1 else 49} offen offset:{(jj>>1)*1024}{P['ntw']}")
    def gul(n):
        r = 224 + 2 * (n & 1)
        if n % 2 == 0: a(f"s_mov_b32 s98, {(n>>1)*16*3584}")
        a(f"v_lshl_add_u64 v[10:11], v[{r}:{r+1}], 0, s[98:99]\ns_add_u32 m0, s57, {1024*n}")
        a(f"global_load_lds_dwordx4 v[10:11], off{P['ntg']}")
    done = []
    def csum(ks):
        for t in range(4): mfma(32 + 4 * t, 240, 64 + 16 * ks + 4 * t, 32 + 4 * t if done else None)
        done.append(ks)
    if P["ord"] == 4:
        if P["gDn"]: wait_flag(F_TURN, P["gDn"], sl=2)
        dnl(); vm(0); transpose(128, 192)
    nl = 4 - P["eG"]
    if P["eG"]:
        if P["gE"]: wait_flag(F_TURN, P["gE"], sl=2)
        for n in range(4 * nl, 16):
            if n - 4 * nl >= P["capE"]: vm(P["capE"] - 1)
            gul(n)
        vm(0)
        for ks in range(nl, 4):
            wreads(ks); a("s_waitcnt lgkmcnt(0)"); csum(ks)
    cm = hex(P["can"])
    canl = "buffer_load_dword v57, v1, s[36:39], s50 offen sc1"
    a(f"s_sub_u32 s50, s55, s53\ns_add_u32 s50, s50, {128*P['canc']}")
    stamp(7)
    wait_flag(F_TURN, P["gF"], sl=1)
    a("buffer_load_dword v58, v229, s[36:39], s58 offen sc1")
    ex = 8 if P["ord"] == 1 else 0
    if P["ord"] == 6: dnl()
    for n in range(4 * nl):
        if n == P["nF6"]: wait_flag(F_TURN, 6, sl=1)
        gul(n)
    if ex: dnl()
    stamp(1)
    vm(4 * nl + ex)
    a("L_Fcp:")
    a("v_cmp_ne_u32 vcc, s96, v58\ns_cbranch_vccz L_Fcq")
    nap(P["sl_st"])
    budget()
    a("buffer_load_dword v58, v229, s[36:39], s58 offen sc1")
    vm(0)
    a("s_branch L_Fcp\nL_Fcq:")
    if P["ord"] == 6: transpose(128, 192)
    fo = ["s55", "s60", "s63", "s51"]
    def first():
        a("s_barrier")
        if P["can"]: a(f"s_mov_b64 exec, {cm}\n{canl}\ns_mov_b64 exec, -1")
        else: gather_dma(fo)
    nf = 1 if P["can"] else 4
    if P["bi"]: first()
    ex2 = ex + (nf if P["bi"] else 0)
    for ks in range(nl):
        vm(4 * (nl - 1 - ks) + ex2)
        if ks == nl - 1 and not ex and not P["bi"]: first()
        a("s_waitcnt lgkmcnt(0)")
        wreads(ks)
        if ks: csum(ks - 1)
    a("s_waitcnt lgkmcnt(0)")
    csum(nl - 1)
    stamp(2)
    for t in range(4): a(f"v_mov_b32 v{8+t}, v{32+4*t}")
    a("s_mov_b64 exec, 0xffff\nds_write_b128 v247, v[8:11]\ns_mov_b64 exec, -1")
    if ex:
        vm(nf if P["bi"] else 0)
        if not P["bi"]: first()
        transpose(128, 192)
    stamp(6)
    if P["can"]:
        a(f"s_mov_b64 exec, {cm}\nL_Fn:")
        vm(0)
        a("v_cmp_eq_u32 vcc, -1, v57\ns_cbranch_vccz L_Fp\ns_mov_b64 exec, vcc")
        nap(P["sdc"])
        budget()
        a(f"{canl}\ns_branch L_Fn\nL_Fp:\ns_mov_b64 exec, -1")
        gather_dma(fo)
    gather_finish(fo, P["sl_h2"], P["th2"], P["sd2"])
    stamp(10)
    for ks in range(4): mfma(232, 16 + 4 * ks, 16 + 4 * ks, None if ks == 0 else 232)
    for ks in range(4): mfma(236, 16 + 4 * ks, 240, None if ks == 0 else 236)
    def rsum(t): a(f"v_add_f32 v{8+t}, v{32+4*t}, v{33+4*t}\nv_add_f32 v{34+4*t}, v{34+4*t}, v{35+4*t}\nv_add_f32 v{8+t}, v{8+t}, v{34+4*t}")
    def fpost(t, ks):
        n = 4 * t + ks
        if n == 3: a("v_add_f32 v232, v232, v233\nv_add_f32 v234, v234, v235")
        if n == 4: a("v_add_f32 v232, v232, v234")
        if n == 6: dpp("v_add_f32", 232, 232, 232, "quad_perm:[1,0,3,2]"); a("v_add_f32 v236, v236, v237")
        if n == 7: dpp("v_add_f32", 232, 232, 232, "quad_perm:[2,3,0,1]"); a("v_add_f32 v238, v238, v239")
        if n == 8: dpp("v_add_f32", 232, 232, 232, "row_half_mirror"); a("v_add_f32 v236, v236, v238")
        if n == 10: a("v_permlane16_swap_b32 v232, v236\nv_add_f32 v232, v232, v236")
        if n == 12: rsum(0)
        if n == 14: rsum(1)
    gemv(fpost)
    a("s_mov_b32 exec_lo, 0x00010001\ns_mov_b32 exec_hi, 0x01000100\nds_write_b32 v59, v232\ns_mov_b64 exec, -1")
    rsum(2); rsum(3)
    a("ds_write_b128 v2, v[8:11]\ns_waitcnt lgkmcnt(0)\ns_barrier")
    stamp(11)
    a("ds_read_b128 v[48:51], v3\nds_read_b128 v[52:55], v3 offset:16")
    a("ds_read_b128 v[16:19], v230\nds_read_b128 v[20:23], v230 offset:320")
    for k in range(4): a(f"ds_read_b128 v[{32+4*k}:{35+4*k}], v231 offset:{1280*k}")
    lgkm(6)
    a("v_pk_add_f32 v[48:49], v[48:49], v[50:51]\nv_pk_add_f32 v[52:53], v[52:53], v[54:55]")
    a("v_add_f32 v48, v48, v49\nv_add_f32 v52, v52, v53")
    a("v_mul_f32 v52, 0x3b000000, v52\nv_mul_f32 v48, 0x3b000000, v48")
    a("v_fma_f32 v48, -v52, v52, v48\nv_max_f32 v48, 0, v48\nv_add_f32 v48, 0x3727c5ac, v48\nv_rsq_f32 v48, v48")
    lgkm(4)
    a("v_pk_add_f32 v[16:17], v[16:17], v[20:21]\nv_pk_add_f32 v[18:19], v[18:19], v[22:23]")
    lgkm(2)
    a("v_pk_add_f32 v[32:33], v[32:33], v[36:37]\nv_pk_add_f32 v[34:35], v[34:35], v[38:39]")
    for v in range(4): a(f"v_fma_f32 v{32+v}, -v52, v{16+v}, v{32+v}")
    a("v_mul_f32 v49, 0xbfb8aa3b, v48\nv_mul_f32 v48, v48, v48")
    lgkm(0)
    a("v_pk_add_f32 v[40:41], v[40:41], v[44:45]\nv_pk_add_f32 v[42:43], v[42:43], v[46:47]")
    a("v_pk_add_f32 v[32:33], v[32:33], v[40:41]\nv_pk_add_f32 v[34:35], v[34:35], v[42:43]")
    for v in range(4): dpp("v_add_f32", 32 + v, 32 + v, 32 + v, "row_ror:8")
    a("v_mul_f32 v36, v49, v32\nv_mul_f32 v37, v49, v33\nv_exp_f32 v36, v36\nv_exp_f32 v37, v37")
    a("v_mul_f32 v32, v32, v48\nv_mul_f32 v33, v33, v48\nv_add_f32 v36, 1.0, v36\nv_add_f32 v37, 1.0, v37")
    a("v_rcp_f32 v36, v36\nv_rcp_f32 v37, v37\nv_mul_f32 v32, v32, v34\nv_mul_f32 v33, v33, v35")
    a("v_mul_f32 v32, v32, v36\nv_mul_f32 v33, v33, v37\nv_cvt_pk_bf16_f32 v20, v32, v33")
    for p in range(4): dpp("v_mov_b32", 16 + p, 20, None, f"quad_perm:[{p},{p},{p},{p}]")
    if P["ord"] == 3:
        vm(0)
        for t in range(8):
            d, e = t >> 1, t & 1
            for p in range(4): a(f"v_perm_b32 v{128+4*t+p}, v{192+4*(2*p+1)+d}, v{192+8*p+d}, s{34+e}")
            if t: mfma(64 + 4 * (t - 1), 16, 128 + 4 * (t - 1), None)
        mfma(92, 16, 156, None)
    else:
        for t in range(8): mfma(64 + 4 * t, 16, (160 if P["ord"] == 5 else 128) + 4 * t, None)
    for k in range(4): a(f"v_cvt_pk_bf16_f32 v{8+k}, v{64+8*k}, v{68+8*k}\nv_min_u32 v{8+k}, -2, v{8+k}")
    a("s_mov_b32 exec_hi, 0")
    if P["loc3"]:
        a("s_lshr_b32 s50, s28, 1\ns_cmp_eq_u32 s50, s31\ns_cbranch_scc1 L_Fl")
    a("buffer_store_dwordx4 v[8:11], v246, s[36:39], s54 offen sc1")
    if P["loc3"]:
        a("s_branch L_Fm\nL_Fl:\nbuffer_store_dwordx4 v[8:11], v246, s[36:39], s54 offen\nL_Fm:")
    a("s_mov_b64 exec, -1")
    stamp(12)

    a("s_cmp_ge_u32 s97, 4\ns_cbranch_scc1 L_exit")
    nap(P["pre3"])
    poll(["buffer_load_dwordx4 v[16:19], v244, s[36:39], s100 offen sc1"], range(16, 20), P["sl_h3"])
    stamp(13)
    mfma(24, 16, 248, None)
    a("v_pk_add_f32 v[24:25], v[24:25], v[26:27]\nv_add_f32 v24, v24, v25")
    xrow("v_add_f32", 24, 25)
    a("v_cvt_pk_bf16_f32 v24, v24, v24")
    a(f"s_mov_b64 exec, 0xff\nbuffer_store_short v24, v245, s[44:47], s101 offen{P['sto']}")
    a(f"s_or_b32 s48, s28, s62\ns_or_b32 s48, s48, s97\ns_or_b32 s48, s48, s31\ns_cbranch_scc1 L_Tend")
    a(f"s_mov_b64 exec, 1\nv_mov_b32 v25, s96\ns_mov_b32 s48, {hex(EP)}\nbuffer_store_dword v25, v245, s[36:39], s48 offen sc1")
    a("L_Tend:")
    stamp(14)

    a("L_exit:")
    if "enc" in P:
        a("s_cmp_lt_u32 s3, 4\ns_cbranch_scc1 L_padd")
        lo, hi = P.get("wgs", (0, 256))
        a(f"s_cmp_lt_u32 s2, {lo}\ns_cbranch_scc1 L_padd\ns_cmp_ge_u32 s2, {hi}\ns_cbranch_scc1 L_padd\ns_add_u32 s68, s68, 3000")
        a(f"L_pad:\ns_memrealtime s[66:67]\ns_waitcnt lgkmcnt(0)\ns_sub_u32 s66, s66, s64\ns_cmp_lt_u32 s66, s68\ns_cbranch_scc1 L_pad\nL_padd:")
    if dbg:
        stamp(15)
        a("s_mov_b64 exec, -1\ns_waitcnt lgkmcnt(0)")
        for k in range(16): a(f"v_mov_b32 v{16+k}, s{64+2*k}")
        a(f"s_and_b32 s48, s3, 3\ns_lshl_b32 s48, s48, 6\ns_add_u32 s49, s48, {L_FLAG + 256}\nv_mov_b32 v2, s49\nv_mov_b32 v1, 0\ns_mov_b64 exec, 1")
        a("s_cmp_ge_u32 s3, 4\ns_cbranch_scc1 L_dT")
        for k in range(4): a(f"ds_write_b128 v2, v[{16+4*k}:{19+4*k}] offset:{16*k}")
        a("s_waitcnt lgkmcnt(0)\ns_endpgm\nL_dT:\ns_barrier")
        for k in range(4): a(f"ds_read_b128 v[{32+4*k}:{35+4*k}], v2 offset:{16*k}")
        a(f"s_lshl_b32 s49, s2, 9\ns_add_u32 s48, s48, s49\ns_add_u32 s48, s48, {STAMP}\ns_add_u32 s26, s26, s48\ns_addc_u32 s27, s27, 0")
        a("s_sleep 100\ns_sleep 100\ns_waitcnt lgkmcnt(0)")
        for k in range(4): a(f"global_store_dwordx4 v1, v[{32+4*k}:{35+4*k}], s[26:27] offset:{16*k}")
        for k in range(4): a(f"global_store_dwordx4 v1, v[{16+4*k}:{19+4*k}], s[26:27] offset:{256+16*k}")
    a("L_end:\ns_endpgm\nL_fin:")

    if P["now"]:
        a.lines = [l for l in a.lines if not l.endswith("; w")]
    if P["noclr"] & 1: a.lines = [l for l in a.lines if "v[16:19], v246, s[36:39], s50" not in l]
    if P["noclr"] & 2: a.lines = [l for l in a.lines if "v[16:19], v246, s[36:39], s54" not in l and "v[16:19], v246, s[36:39], s51" not in l]
    head = open("sequential_preLN__sliding_block_cached__swiglu_ffn__decode.s.ref").read().split("; Override launch")[0]
    return head + f"""; @launch grid=(256,1,1) block=(512,1,1) lds={LDS_BYTES}
.amdgcn_target "amdgcn-amd-amdhsa--gfx950"
.text
.globl {KNAME}
.p2align 8
.type {KNAME},@function
""" + a.padded() + f""".section .rodata,"a"
.p2align 6
.amdhsa_kernel {KNAME}
  .amdhsa_next_free_vgpr 256
  .amdhsa_next_free_sgpr 102
  .amdhsa_accum_offset 256
  .amdhsa_group_segment_fixed_size 0
  .amdhsa_kernarg_size 96
  .amdhsa_user_sgpr_count 2
  .amdhsa_user_sgpr_kernarg_segment_ptr 1
  .amdhsa_system_sgpr_workgroup_id_x 1
  .amdhsa_float_denorm_mode_32 3
.end_amdhsa_kernel
"""

if __name__ == "__main__":
    out = sys.argv[1]
    kw = {}
    for x in sys.argv[2:]:
        k, v = x.split("=", 1)
        try: kw[k] = tuple(int(y) for y in v.split(",")) if "," in v else int(v, 0)
        except ValueError: kw[k] = (" " + v.replace("+", " ")) if v else ""
    open(out, "w").write(gen(**kw))
```

```python
import sys
from asmlib import Asm
KNAME = "sequential_preLN__sliding_block_cached__swiglu_ffn__decode_kernel"

OP, QP, ST, EP, TK, DP = 0x0000, 0x4000, 0x8000, 0x9000, 0x9080, 0xC000
STAMP = 0x10000000
L_Q, L_P, L_DEP, L_RED, L_CS, L_STAT, L_M, L_L, L_FLAG = 131072, 132096, 136192, 142336, 147456, 148736, 148864, 148928, 148992
LDS_BYTES = L_FLAG + 512
F_TURN, F_K, F_Q, F_DEP, F_R, F_M, F_L, F_P = 0, 4, 8, 12, 16, 20, 24, 32

DEF = dict(dbg=0, thrK=20, thrV=20, burst=6, q_gate=18, capW=8, nF6=3, kW=4, kG=1, rW=5, rF=5, RS=0x44000,
           pl=1, budget=0x80000)

HEADER = """;
;
;
; d_ws holds 16 regions of RS bytes, region 2g + pair: o partials +0x0000, q partials +0x4000, softmax records +0x8000,
"""

def gen(**kw):
    P = dict(DEF); P.update(kw)
    dbg = P["dbg"]; RS = P["RS"]; WS_BYTES = 16 * RS
    a = Asm()
    uid = [0]
    def L(s):
        uid[0] += 1
        return f"L_{s}_{uid[0]}"
    def note(t): a("; " + t)
    def stamp(k):
        if dbg: a(f"s_memrealtime s[{64+2*k}:{65+2*k}]")
    def lgkm(n=0): a(f"s_waitcnt lgkmcnt({0 if dbg else n})")
    def vm(n): a(f"s_waitcnt vmcnt({n})")
    def srd(d, p, nbytes):
        a(f"s_mov_b32 s{d}, s{p}\ns_mov_b32 s{d+1}, s{p+1}\ns_mov_b32 s{d+2}, {hex(nbytes)}\ns_mov_b32 s{d+3}, 0x20000")
    def backoff(n):
        if n: a(f"s_sleep {n}")
        a("s_sub_u32 s32, s32, 1\ns_cbranch_scc1 L_exit")
    def wait_flag(off, val, addr="v14", sl=1):
        l, d = L("wf"), L("wfd")
        a(f"{l}:\nds_read_b32 v15, {addr} offset:{off}")
        a("s_waitcnt lgkmcnt(0)\nv_readfirstlane_b32 s33, v15")
        a(f"s_cmp_ge_u32 s33, {val}\ns_cbranch_scc1 {d}")
        backoff(sl)
        a(f"s_branch {l}\n{d}:")
    def set_flag(off, val, addr="v14"):
        a(f"v_mov_b32 v15, {val}\nds_write_b32 {addr}, v15 offset:{off}")
    def transpose(dst, src, ps=range(4)):
        for p in ps:
            for d in range(4):
                for e in range(2):
                    a(f"v_perm_b32 v{dst+4*(2*d+e)+p}, v{src+4*(2*p+1)+d}, v{src+8*p+d}, s{34+e}")
    def mfma(d, A, B, c):
        cc = "0" if c is None else f"v[{c}:{c+3}]"
        a(f"v_mfma_f32_16x16x32_bf16 v[{d}:{d+3}], v[{A}:{A+3}], v[{B}:{B+3}], {cc}")
    def dpp(op, d, s0, s1, ctl, bank="0xf"):
        a(f"{op}_dpp v{d}, v{s0}" + (f", v{s1}" if s1 is not None else "") + f" {ctl} row_mask:0xf bank_mask:{bank}")
    def x16(op, v, t): a(f"v_mov_b32 v{t}, v{v}\nv_permlane16_swap_b32 v{v}, v{t}\n{op} v{v}, v{v}, v{t}")
    def x32(op, v, t): a(f"v_mov_b32 v{t}, v{v}\nv_permlane32_swap_b32 v{v}, v{t}\n{op} v{v}, v{v}, v{t}")
    def rbf(v): a(f"v_cvt_pk_bf16_f32 v{v}, v{v}, v{v}\nv_and_b32 v{v}, 0xffff0000, v{v}")
    def red_head(op, v):
        dpp(op, v, v, v, "row_ror:4"); dpp(op, v, v, v, "row_ror:8"); x16(op, v, 10); x32(op, v, 10)
    def red_batch(v):
        dpp("v_add_f32", v, v, v, "quad_perm:[1,0,3,2]"); dpp("v_add_f32", v, v, v, "quad_perm:[2,3,0,1]")
        x16("v_add_f32", v, 9); x32("v_add_f32", v, 9)
    def epoch(): a(f"s_load_dword s96, s[26:27], {hex(EP)}")
    def epoch_wait(): a("s_waitcnt lgkmcnt(0)\ns_add_u32 s96, s96, 0x01010101")
    first = "" if P["pl"] else " sc1"

    a(f"{KNAME}:")
    if dbg:
        for k in range(66, 98, 2): a(f"s_mov_b64 s[{k}:{k+1}], 0")
    stamp(0)
    a("s_load_dwordx16 s[4:19], s[0:1], 0\ns_load_dwordx8 s[20:27], s[0:1], 64")
    a("s_cmp_ge_u32 s2, 256\ns_cbranch_scc1 L_end")
    a("v_lshrrev_b32 v1, 6, v0\nv_and_b32 v0, 63, v0\nv_readfirstlane_b32 s3, v1")
    a("s_and_b32 s28, s2, 7\ns_bfe_u32 s29, s2, 0x20003\ns_lshr_b32 s30, s2, 5")
    a(f"s_mov_b32 s32, {hex(P['budget'])}\ns_mov_b32 s34, 0x05040100\ns_mov_b32 s35, 0x07060302")
    a(f"v_mov_b32 v14, {L_FLAG}\nv_lshrrev_b32 v12, 4, v0\nv_and_b32 v13, 15, v0\ns_and_b32 s31, s3, 3")
    a("s_lshl_b32 s60, s29, 3\ns_add_u32 s60, s60, s28\ns_lshl_b32 s60, s60, 22")
    a("s_lshl_b32 s61, s30, 15\ns_add_u32 s60, s60, s61\ns_add_u32 s60, s60, 0x300000")
    a(f"s_lshl_b32 s63, s28, 1\ns_lshr_b32 s61, s29, 1\ns_add_u32 s63, s63, s61\ns_mul_i32 s63, s63, {RS}\ns_and_b32 s101, s29, 1")
    a("s_add_u32 s100, s28, 1\ns_and_b32 s100, s100, 7")
    a("s_cmp_eq_u32 s3, 1\ns_cbranch_scc1 L_W1\ns_cmp_eq_u32 s3, 2\ns_cbranch_scc1 L_W2")
    a("s_cmp_eq_u32 s3, 3\ns_cbranch_scc1 L_W3\ns_cmp_ge_u32 s3, 4\ns_cbranch_scc1 L_T")

    a("s_mov_b32 s31, 3")
    for ii in range(4):
        a(f"v_lshl_add_u32 v1, v12, 2, {ii}\nv_xor_b32 v1, v1, v13\nv_lshlrev_b32 v1, 4, v1\nv_lshl_add_u32 v{4+ii}, v12, 8, v1")
    a("s_mov_b32 s48, 0\ns_waitcnt lgkmcnt(0)")
    srd(40, 6, 0x8000000)
    def ktile():
        a("s_add_u32 s49, s48, s28\ns_and_b32 s49, s49, 7\ns_lshl_b32 s49, s49, 12")
        a("s_lshr_b32 s50, s48, 3\ns_lshl_b32 s50, s50, 18\ns_add_u32 s49, s49, s50\ns_add_u32 s49, s49, s60")
        a("s_lshl_b32 m0, s48, 12\ns_add_u32 s48, s48, 1")
        for ii in range(4):
            a(f"buffer_load_dwordx4 v{4+ii}, s[40:43], s49 offen offset:{ii*1024} nt lds")
    a("L_kA:"); ktile()
    a(f"s_cmp_lt_u32 s48, {P['burst']}\ns_cbranch_scc1 L_kA")
    stamp(9)
    a("s_barrier")
    stamp(8)
    a("L_kB:")
    vm(P["thrK"])
    a(f"s_sub_u32 s51, s48, {(P['thrK']+3)//4}\ns_max_i32 s51, s51, 0")
    set_flag(F_K, "s51")
    ktile()
    a("s_cmp_lt_u32 s48, 32\ns_cbranch_scc1 L_kB")
    set_flag(F_TURN, 1)
    stamp(6)
    vm(0)
    set_flag(F_K, 32)
    stamp(7)
    wait_flag(F_Q, 1, sl=2)
    a(f"s_add_u32 s48, s63, {TK}\ns_add_u32 s50, s26, s48\ns_addc_u32 s51, s27, 0\ns_mov_b32 s48, 1\ns_atomic_add s48, s[50:51], 0 glc\ns_waitcnt lgkmcnt(0)")
    a("s_and_b32 s48, s48, 15\ns_add_u32 s48, s48, 1")
    set_flag(F_R, "s48")
    a("s_branch L_S")

    a("L_W1:")
    a("v_bfe_u32 v1, v0, 2, 2\nv_lshlrev_b32 v1, 10, v1\nv_lshl_add_u32 v1, v12, 6, v1\nv_and_b32 v2, 3, v0\nv_lshl_add_u32 v2, v2, 4, v1")
    a("v_bfe_u32 v4, v0, 3, 1\nv_lshl_add_u32 v4, v12, 2, v4\nv_lshlrev_b32 v4, 16, v4\nv_and_b32 v5, 7, v0\nv_lshl_add_u32 v4, v5, 4, v4")
    a("s_lshl_b32 s48, s29, 20\ns_lshl_b32 s49, s100, 10\ns_add_u32 s48, s48, s49\ns_lshl_b32 s49, s30, 7\ns_add_u32 s48, s48, s49")
    for k in range(4): a(f"s_xor_b32 s{52+k}, s29, {k}\ns_lshl_b32 s{52+k}, s{52+k}, 8")
    a("s_waitcnt lgkmcnt(0)")
    epoch()
    srd(40, 4, 4096); srd(44, 10, 0x400000); srd(36, 26, WS_BYTES)
    a("s_or_b32 s49, s30, s101\ns_cbranch_scc1 L_W1t")
    a(f"s_lshl_b32 s49, s100, 1\ns_lshr_b32 s51, s29, 1\ns_add_u32 s49, s49, s51\ns_mul_i32 s49, s49, {RS}\ns_add_u32 s49, s49, {TK}")
    a("s_mov_b64 exec, 1\nv_mov_b32 v6, 0\nbuffer_store_dword v6, v6, s[36:39], s49 offen sc1\ns_mov_b64 exec, -1\nL_W1t:")
    for k in range(4): a(f"buffer_load_dwordx4 v[{16+4*k}:{19+4*k}], v2, s[40:43], s{52+k} offen")
    for n in range(16):
        a(f"buffer_load_dwordx4 v[{96+4*n}:{99+4*n}], v4, s[44:47], s48 offen nt")
        if n < 15: a(f"s_add_u32 s48, s48, {8192 if n != 7 else 9*8192}")
    epoch_wait()
    a("s_barrier")
    vm(16)
    for k in range(16):
        a(f"v_lshlrev_b32 v{160+2*k}, 16, v{16+k}\nv_and_b32 v{161+2*k}, 0xffff0000, v{16+k}")
    a("v_pk_add_f32 v[6:7], v[160:161], v[162:163]")
    for k in range(2, 16): a(f"v_pk_add_f32 v[6:7], v[6:7], v[{160+2*k}:{161+2*k}]")
    a("v_add_f32 v6, v6, v7")
    red_batch(6)
    a("v_mul_f32 v6, 0x3b000000, v6\nv_mov_b32 v7, 0")
    for k in range(32): a(f"v_sub_f32 v{160+k}, v{160+k}, v6")
    for k in range(32): a(f"v_fmac_f32 v7, v{160+k}, v{160+k}")
    red_batch(7)
    a("v_mul_f32 v7, 0x3b000000, v7")
    rbf(6); rbf(7)
    a("v_add_f32 v7, 0x3727c5ac, v7"); rbf(7)
    a("v_sqrt_f32 v7, v7"); rbf(7)
    a("v_rcp_f32 v7, v7")
    for k in range(4):
        a(f"v_lshlrev_b32 v8, 16, v{16+k}\nv_and_b32 v9, 0xffff0000, v{16+k}\nv_sub_f32 v8, v8, v6\nv_sub_f32 v9, v9, v6")
        a(f"v_cvt_pk_bf16_f32 v9, v8, v9\nv_lshlrev_b32 v8, 16, v9\nv_and_b32 v9, 0xffff0000, v9")
        a(f"v_mul_f32 v8, v8, v7\nv_mul_f32 v9, v9, v7\nv_cvt_pk_bf16_f32 v{16+k}, v8, v9")
    for u in range(2):
        for k in range(4): dpp("v_mov_b32", 32 + 4 * u + k, 16 + k, None, f"quad_perm:[{2*u},{2*u+1},{2*u},{2*u+1}]")
    stamp(6)
    vm(8); transpose(64, 96)
    for t in range(8): mfma(192 + 4 * t, 32, 64 + 4 * t, None)
    vm(0); transpose(96, 128)
    for t in range(8): mfma(192 + 4 * t, 36, 96 + 4 * t, 192 + 4 * t)
    a(f"v_lshrrev_b32 v1, 5, v0\nv_mul_u32_u24 v1, {RS}, v1\nv_and_b32 v2, 1, v12\nv_lshl_add_u32 v1, v2, 13, v1")
    a("v_lshl_add_u32 v1, v5, 5, v1\nv_bfe_u32 v2, v0, 3, 1\nv_lshl_add_u32 v1, v2, 4, v1")
    a(f"s_mul_i32 s48, s100, {2*RS}\ns_lshl_b32 s49, s29, 11\ns_add_u32 s48, s48, s49\ns_lshl_b32 s49, s30, 8\ns_add_u32 s48, s48, s49\ns_add_u32 s48, s48, {QP}")
    for t in range(8):
        if t < 4: dpp("v_add_f32", 16 + t, 193 + 4 * t, 192 + 4 * t, "row_ror:8", "0x3")
        else: dpp("v_add_f32", 12 + t, 192 + 4 * t, 193 + 4 * t, "row_ror:8", "0xc")
    a("v_mov_b32 v6, s96")
    for v in range(4): a(f"s_mov_b32 s49, {hex(0x07060500 + v)}\nv_perm_b32 v{16+v}, v{16+v}, v6, s49")
    a("buffer_store_dwordx4 v[16:19], v1, s[36:39], s48 offen sc1")
    stamp(8)
    a("s_branch L_S")

    a("L_W2:")
    a("v_lshlrev_b32 v2, 4, v0")
    a(f"s_lshl_b32 s48, s101, 13\ns_add_u32 s48, s48, s63\ns_add_u32 s48, s48, {QP}\ns_add_u32 s49, s48, 4096")
    a("s_waitcnt lgkmcnt(0)")
    epoch()
    srd(36, 26, WS_BYTES)
    epoch_wait()
    a("s_barrier")
    for k in range(4): a(f"s_bfe_u32 s{52+k}, s96, {hex(0x80000 + 8 * k)}")
    wait_flag(F_K, P["q_gate"], sl=4)
    stamp(7)
    a("L_W2p:")
    for k in range(8): a(f"buffer_load_dwordx4 v[{16+4*k}:{19+4*k}], v2, s[36:39], s{48+(k>>2)} offen offset:{(k&3)*1024} sc1")
    vm(0)
    for r in range(16, 48): a(f"v_xor_b32 v{r}, s{52+(r&3)}, v{r}")
    a("v_or_b32 v15, v16, v17")
    for r in range(18, 48, 2): a(f"v_or3_b32 v15, v15, v{r}, v{r+1}")
    a("v_and_b32 v15, 0xff, v15\nv_cmp_ne_u32 vcc, 0, v15\ns_cbranch_vccz L_W2q")
    backoff(4)
    a("s_branch L_W2p\nL_W2q:")
    for h in range(2):
        for ks in range(1, 4):
            for z in range(2):
                r = 16 + 4 * h + 2 * z
                a(f"v_pk_add_f32 v[{r}:{r+1}], v[{r}:{r+1}], v[{r+8*ks}:{r+8*ks+1}]")
        a(f"v_cvt_pk_bf16_f32 v{6+2*h}, v{16+4*h}, v{17+4*h}\nv_cvt_pk_bf16_f32 v{7+2*h}, v{18+4*h}, v{19+4*h}")
    a(f"v_lshlrev_b32 v1, 3, v0\nv_add_u32 v1, {L_Q}, v1")
    a("ds_write_b64 v1, v[6:7]\nds_write_b64 v1, v[8:9] offset:512")
    set_flag(F_Q, 1)
    stamp(8)
    a("s_branch L_S")

    a("L_W3:")
    a("s_mov_b32 s31, 0\ns_lshr_b32 s55, s2, 3")
    a(f"s_getpc_b64 s[48:49]\nL_pc:\ns_sub_u32 s48, s48, L_pc-{KNAME}\ns_subb_u32 s49, s49, 0\ns_mov_b32 s50, L_fin-{KNAME}-4")
    a("s_lshl_b32 s51, s55, 9\nv_lshl_add_u32 v2, v0, 7, s51\nv_min_u32 v2, s50, v2\ns_mov_b64 exec, 15\nglobal_load_dword v16, v2, s[48:49]\ns_mov_b64 exec, -1")
    a("v_lshl_add_u32 v1, v0, 2, v14\nv_mov_b32 v2, 0\nds_write_b32 v1, v2")
    a("s_waitcnt lgkmcnt(0)\ns_barrier")
    def touch(p): a(f"global_load_dword v18, v1, s[{p}:{p+1}] sc1 nt\nglobal_load_dword v18, v1, s[{p}:{p+1}] sc1")
    def pf_rows(k):
        per = 4 * k
        a(f"v_and_b32 v1, {per-1}, v0\ns_mul_i32 s49, s55, {per}\nv_add_u32 v1, s49, v1")
        if k < 4:
            a(f"v_lshrrev_b32 v2, {(32*k).bit_length()-1}, v1\nv_and_b32 v1, {32*k-1}, v1\nv_lshl_add_u32 v1, v2, 7, v1\nv_add_u32 v1, {128-32*k}, v1")
        return hex((1 << per) - 1)
    if P["kW"]:
        m = pf_rows(P["kW"])
        a(f"s_lshl_b32 s49, s100, 19\ns_add_u32 s49, s49, 384\nv_lshl_add_u32 v1, v1, 10, s49\ns_mov_b64 exec, {m}")
        touch(12); a("s_mov_b64 exec, -1")
    if P["kG"]:
        m = pf_rows(P["kG"])
        a(f"s_mul_i32 s49, s28, 448\ns_lshr_b32 s49, s49, 7\ns_or_b32 s49, s49, 3\ns_lshl_b32 s49, s49, 7\nv_mul_u32_u24 v1, 3584, v1\nv_add_u32 v1, s49, v1\ns_mov_b64 exec, {m}")
        touch(16); touch(18); a("s_mov_b64 exec, -1")

    a("L_S:")
    srd(40, 8, 0x8000000); srd(36, 26, WS_BYTES)
    a("v_lshlrev_b32 v1, 4, v0\ns_lshl_b32 s48, s31, 18\ns_add_u32 s48, s48, s60")
    for tau in range(8):
        a(f"s_add_u32 s49, s28, {tau}\ns_and_b32 s49, s49, 7\ns_lshl_b32 s49, s49, 12\ns_add_u32 s{52+tau}, s49, s48")
    a(f"v_lshrrev_b32 v2, 2, v13\nv_lshl_add_u32 v2, v12, 4, v2\nv_lshlrev_b32 v2, 4, v2\ns_lshl_b32 s49, s31, 10\ns_add_u32 s49, s49, {L_P}\nv_add_u32 v2, s49, v2")
    a(f"s_lshl_b32 s49, s31, 11\ns_add_u32 s49, s49, {L_DEP - 2048}\nv_lshl_add_u32 v3, v0, 2, s49")
    a("s_lshl_b32 s49, s31, 2\nv_add_u32 v5, s49, v14")
    a("s_lshl_b32 s48, s101, 13\ns_lshl_b32 s49, s30, 10\ns_add_u32 s48, s48, s49\ns_add_u32 s48, s48, s63")
    for t in range(8): a(f"v_mov_b32 v{32+4*t}, 0")
    a("s_add_u32 s50, s31, 1")
    wait_flag(F_TURN, "s50")
    stamp(1)
    for tau in range(8):
        if 4 * tau > P["thrV"]: vm(P["thrV"])
        for q in range(4):
            r = 96 + 16 * tau + 4 * q
            a(f"buffer_load_dwordx4 v[{r}:{r+3}], v1, s[40:43], s{52+tau} offen offset:{q*1024} nt")
    a("s_add_u32 s51, s31, 2")
    set_flag(F_TURN, "s51")
    a("s_setprio 3")
    stamp(2)
    vm(24); transpose(64, 96)
    wait_flag(F_P, 1, addr="v5")
    for q in range(4): a(f"ds_read_b128 v[{16+4*q}:{19+4*q}], v2 offset:{64*q}")
    a("s_cmp_eq_u32 s31, 0\ns_cbranch_scc1 L_Sc")
    wait_flag(F_DEP, "s31")
    for t in range(8): a(f"ds_read_b32 v{32+4*t}, v3 offset:{256*t}")
    a("L_Sc:")
    lgkm(0)
    stamp(3)
    for q in range(4):
        if q in (1, 2): vm(24 - 8 * q); transpose(64 + 32 * q, 96 + 32 * q)
        if q == 3:
            for p in range(4):
                vm(6 - 2 * p); transpose(160, 192, [p])
            stamp(4)
        for t in range(8): mfma(32 + 4 * t, 16 + 4 * q, 64 + 32 * q + 4 * t, 32 + 4 * t)
    a("s_cmp_eq_u32 s31, 3\ns_cbranch_scc1 L_S3")
    for k in range(4): a(f"ds_write2st64_b32 v3, v{32+8*k}, v{36+8*k} offset0:{8+2*k} offset1:{9+2*k}")
    set_flag(F_DEP, "s50")
    a("s_branch L_exit")
    a("L_S3:")
    for k in range(4): a(f"v_cvt_pk_bf16_f32 v{8+k}, v{32+8*k}, v{36+8*k}\nv_min_u32 v{8+k}, -2, v{8+k}")
    a("buffer_store_dwordx4 v[8:11], v1, s[36:39], s48 offen sc1")
    set_flag(F_TURN, 6)
    stamp(5)
    a("s_branch L_exit")

    a("L_T:")
    def hp_addr(g, cs):
        a(f"s_lshr_b32 s51, {g}, 2\ns_add_u32 s51, s51, 14\ns_mul_i32 s51, s51, {RS}\ns_and_b32 s49, {g}, 3\ns_lshl_b32 s49, s49, 10\ns_add_u32 s51, s51, s49")
        a(f"s_add_u32 s51, s51, s52\ns_lshl_b32 s49, {cs}, 7\ns_add_u32 s51, s51, s49")
    def dp_addr(sp):
        a(f"s_mul_i32 s61, s28, 7\ns_add_u32 s61, s61, {sp}")
        a(f"s_add_u32 s55, s52, s53\ns_lshr_b32 s54, s61, 2\ns_mul_i32 s54, s54, {RS}\ns_and_b32 s49, s61, 3\ns_lshl_b32 s49, s49, 10\ns_add_u32 s54, s54, s49")
        a(f"s_add_u32 s54, s54, s55\ns_add_u32 s55, s55, {14*RS}")
    a(f"s_lshl_b32 s53, s31, 8\ns_and_b32 s62, s29, 2\ns_lshl_b32 s52, s62, 12\ns_add_u32 s52, s52, {DP}")
    hp_addr("s28", "s30"); dp_addr("s30")
    a("s_lshl_b32 s50, s101, 13\ns_add_u32 s50, s50, s53\ns_add_u32 s50, s50, s63\ns_lshl_b32 s49, s30, 10\ns_add_u32 s50, s50, s49")
    a("v_lshlrev_b32 v246, 12, v12\nv_lshl_add_u32 v246, v13, 4, v246")
    a("v_mov_b32 v248, -1\nv_mov_b32 v249, -1\nv_mov_b32 v250, -1\nv_mov_b32 v251, -1")
    a("s_waitcnt lgkmcnt(0)")
    epoch()
    srd(36, 26, WS_BYTES)
    a("s_mov_b64 exec, 0xffff\nbuffer_store_dwordx4 v[248:251], v246, s[36:39], s50 offen sc1")
    a("s_cmp_eq_u32 s101, 1\ns_cbranch_scc1 L_Tc1\ns_cmp_lg_u32 s31, 3\ns_cbranch_scc1 L_Tc2")
    a("s_mov_b64 exec, 0x00ff00ff\nbuffer_store_dwordx4 v[248:251], v246, s[36:39], s51 offen sc1\ns_branch L_Tc2")
    a("L_Tc1:\ns_cmp_eq_u32 s30, 7\ns_cbranch_scc1 L_Tc2")
    a("s_mov_b32 exec_lo, -1\nbuffer_store_dwordx4 v[248:251], v246, s[36:39], s54 offen sc1")
    a("L_Tc2:\ns_mov_b64 exec, -1")
    epoch_wait()
    a("s_barrier")

    a(f"v_and_b32 v1, 3, v0\nv_lshlrev_b32 v1, 8, v1\nv_lshl_add_u32 v1, v12, 4, v1\nv_add_u32 v1, {L_Q}, v1")
    a("v_and_b32 v8, 3, v0\nv_lshlrev_b32 v8, 2, v8\nv_lshrrev_b32 v9, 2, v13\nv_add_u32 v8, v8, v9\nv_lshlrev_b32 v8, 8, v8")
    a("s_lshl_b32 s57, s31, 15\nv_add_u32 v8, s57, v8")
    for m in range(4):
        a(f"v_add_u32 v9, {4*m}, v12\nv_xor_b32 v9, v9, v13\nv_lshl_add_u32 v{4+m}, v9, 4, v8")
    wait_flag(F_Q, 1, sl=2)
    stamp(3)
    for m in range(4): a(f"ds_read_b128 v[{16+4*m}:{19+4*m}], v1 offset:{64*m}")
    a("s_add_u32 s48, s31, 1\ns_lshl_b32 s48, s48, 3")
    wait_flag(F_K, "s48", sl=2)
    stamp(4)
    def kread(tau):
        for m in range(4):
            r = 64 + 16 * tau + 4 * m
            a(f"ds_read_b128 v[{r}:{r+3}], v{4+m} offset:{4096*tau}")
    kread(0); kread(1)
    for tau in range(8):
        if tau + 2 < 8: kread(tau + 2)
        lgkm(8 if tau < 6 else 4 if tau == 6 else 0)
        for m in range(4): mfma(32 + 4 * tau, 64 + 16 * tau + 4 * m, 16 + 4 * m, None if m == 0 else 32 + 4 * tau)
    for q in range(1, 4):
        for k in range(8): dpp("v_mov_b32", 32 + k, 32 + 8 * q + k, None, "quad_perm:[0,1,2,3]", hex(1 << q))
    a("s_mov_b32 s50, 0x3db504f3\ns_mov_b32 s59, 0x3fb8aa3b")
    for k in range(0, 8, 2):
        x, y = 32 + k, 33 + k
        a(f"v_cvt_pk_bf16_f32 v{y}, v{x}, v{y}\nv_lshlrev_b32 v{x}, 16, v{y}\nv_and_b32 v{y}, 0xffff0000, v{y}")
        a(f"v_mul_f32 v{x}, s50, v{x}\nv_mul_f32 v{y}, s50, v{y}")
        a(f"v_cvt_pk_bf16_f32 v{y}, v{x}, v{y}\nv_lshlrev_b32 v{x}, 16, v{y}\nv_and_b32 v{y}, 0xffff0000, v{y}")
    a("v_max3_f32 v8, v32, v33, v34\nv_max3_f32 v8, v8, v35, v36\nv_max3_f32 v8, v8, v37, v38\nv_max_f32 v8, v8, v39")
    red_head("v_max_f32", 8)
    a(f"v_and_b32 v5, 3, v0\nv_lshlrev_b32 v5, 4, v5\nv_add_u32 v5, {L_M}, v5\ns_lshl_b32 s48, s31, 2\nv_add_u32 v6, s48, v5")
    vm(0)
    a(f"s_mov_b64 exec, 15\nds_write_b32 v6, v8\ns_mov_b64 exec, 1\nv_mov_b32 v15, 1\nds_add_u32 v14, v15 offset:{F_M}\ns_mov_b64 exec, -1")
    wait_flag(F_M, 4)
    a("ds_read_b128 v[16:19], v5")
    lgkm(0)
    a("v_max3_f32 v8, v16, v17, v18\nv_max_f32 v8, v8, v19")
    for k in range(8): a(f"v_sub_f32 v{40+k}, v{32+k}, v8")
    for k in range(8): a(f"v_mul_f32 v{40+k}, s59, v{40+k}")
    for k in range(8): a(f"v_exp_f32 v{40+k}, v{40+k}")
    a("v_lshlrev_b32 v4, 4, v0")
    for k in range(4): a(f"v_cvt_pk_bf16_f32 v{16+k}, v{40+2*k}, v{41+2*k}")
    a(f"s_lshl_b32 s49, s31, 10\ns_add_u32 s49, s49, {L_P}\nv_add_u32 v7, s49, v4\nds_write_b128 v7, v[16:19]")
    a("v_add_u32 v7, s48, v14")
    set_flag(F_P, 1, addr="v7")
    stamp(5)
    a("v_add_f32 v9, v40, v41")
    for k in range(2, 8): a(f"v_add_f32 v9, v9, v{40+k}")
    red_head("v_add_f32", 9)
    a(f"s_mov_b64 exec, 15\nds_write_b32 v6, v9 offset:{L_L-L_M}\ns_mov_b64 exec, 1\nv_mov_b32 v15, 1\nds_add_rtn_u32 v15, v14, v15 offset:{F_L}\ns_mov_b64 exec, -1")
    a("s_waitcnt lgkmcnt(0)\nv_readfirstlane_b32 s33, v15\ns_cmp_lg_u32 s33, 3\ns_cbranch_scc1 L_Tst")
    a(f"ds_read_b128 v[16:19], v5 offset:{L_L-L_M}")
    a(f"s_lshl_b32 s49, s101, 3\ns_add_u32 s49, s49, s30\ns_lshl_b32 s49, s49, 6\ns_add_u32 s49, s49, s63\ns_add_u32 s49, s49, {ST}")
    a("v_mov_b32 v20, v8\nv_mov_b32 v21, s96\nv_mov_b32 v23, s96\ns_waitcnt lgkmcnt(0)")
    a("v_add_f32 v16, v16, v17\nv_add_f32 v18, v18, v19\nv_add_f32 v22, v16, v18")
    a("s_mov_b64 exec, 15\nbuffer_store_dwordx4 v[20:23], v4, s[36:39], s49 offen sc1\ns_mov_b64 exec, -1")
    a("L_Tst:")

    a("v_bfe_u32 v8, v0, 3, 1\nv_and_b32 v9, 1, v12\nv_lshl_add_u32 v8, v9, 1, v8")
    a("v_lshlrev_b32 v9, 10, v12\nv_bfe_u32 v10, v0, 2, 2\nv_lshl_add_u32 v9, v10, 7, v9\nv_and_b32 v10, 3, v0\nv_lshl_add_u32 v9, v10, 3, v9\nv_add_u32 v9, s57, v9")
    for t in range(4): a(f"v_xor_b32 v10, {t}, v8\nv_lshl_add_u32 v{4+t}, v10, 5, v9")
    a("s_add_u32 s56, s57, 16384\nv_lshl_add_u32 v9, v13, 8, s56")
    for k in range(4):
        a(f"v_add_u32 v10, {4*k}, v12\nv_xor_b32 v10, v10, v13\nv_lshl_add_u32 v{60+k}, v10, 4, v9\nv_lshlrev_b32 v10, 4, v10\nv_lshl_add_u32 v{252+k}, v12, 10, v10")
    a("v_bfe_u32 v8, v0, 4, 1\nv_lshlrev_b32 v8, 1, v8\nv_and_b32 v9, 7, v0\nv_xor_b32 v8, v8, v9\nv_lshrrev_b32 v9, 3, v0")
    wait_flag(F_R, 1, sl=2)
    a("s_sub_u32 s97, s33, 1\ns_cmp_eq_u32 s97, 15\ns_cbranch_scc1 L_exit\ns_cmp_lt_u32 s97, 7\ns_cbranch_scc1 L_F")

    def wreads(ks):
        for t in range(4):
            for hh in range(2):
                r = 64 + 16 * ks + 4 * t + 2 * hh
                a(f"ds_read_b64_tr_b16 v[{r}:{r+1}], v{4+t} offset:{4096*ks + 512*hh}")
    def gather_dma(soffs):
        for k in range(4):
            a(f"s_add_u32 m0, s56, {1024*k}\nbuffer_load_dwordx4 v{252+k}, s[36:39], {soffs[k]} offen sc1 lds")
    def gather_finish(soff, sleep, head, defer=None):
        p, c, d = L("gp"), L("gc"), L("gd")
        vm(0)
        for k in range(4): a(f"ds_read_b128 v[{16+4*k}:{19+4*k}], v{60+k}")
        a(f"s_waitcnt lgkmcnt(0)\ns_branch {c}\n{p}:")
        for ks in range(4):
            a(f"buffer_load_dwordx4 v[{16+4*ks}:{19+4*ks}], v1, s[36:39], {soff} offen offset:{64*ks} sc1")
        a("s_mov_b64 exec, -1")
        vm(0)
        a(f"{c}:")
        for k in range(4):
            r = 16 + 4 * k
            head(k)
            a(f"v_max_u32 v15, v{r}, v{r+1}" if k == 0 else f"v_max3_u32 v15, v15, v{r}, v{r+1}")
            a(f"v_max3_u32 v15, v15, v{r+2}, v{r+3}")
        a("v_cmp_eq_u32 vcc, -1, v15")
        head(4)
        a(f"s_cbranch_vccz {d}")
        backoff(sleep)
        if defer: a(f"s_andn2_b64 exec, vcc, {defer}\ns_cbranch_scc1 {p}")
        a(f"s_mov_b64 exec, vcc\ns_branch {p}\n{d}:")
    def gm(n):
        t, ks = n >> 2, n & 3
        mfma(32 + 4 * t, 16 + 4 * ks, 64 + 16 * ks + 4 * t, None if ks == 0 else 32 + 4 * t)

    a(f"s_add_u32 s30, s97, {P['rW']}\ns_and_b32 s30, s30, 7")
    hp_addr("s100", "s30")
    srd(40, 12, 0x400000)
    a("v_lshlrev_b32 v2, 10, v9\nv_lshl_add_u32 v2, v8, 4, v2\nv_xor_b32 v3, 64, v2")
    a(f"s_lshl_b32 s63, s100, 1\ns_lshr_b32 s49, s29, 1\ns_add_u32 s63, s63, s49\ns_mul_i32 s63, s63, {RS}\ns_add_u32 s60, s63, s53\ns_add_u32 s58, s63, {ST}")
    a("s_add_u32 s61, s60, 4096\ns_add_u32 s54, s60, 8192\ns_add_u32 s55, s60, 12288")
    a("s_lshl_b32 s48, s100, 19\ns_lshl_b32 s49, s31, 17\ns_add_u32 s48, s48, s49\ns_lshl_b32 s49, s30, 7\ns_add_u32 s48, s48, s49")
    a("s_mov_b32 s44, s4\ns_mov_b32 s45, s5\ns_cmp_eq_u32 s100, 0\ns_cselect_b32 s46, 4096, 0\ns_mov_b32 s47, 0x20000")
    a("s_lshl_b32 s50, s62, 10\ns_add_u32 s50, s50, s49")
    a("v_lshrrev_b32 v8, 5, v0\nv_bfe_u32 v9, v0, 1, 4\nv_lshlrev_b32 v10, 3, v9\nv_lshl_add_u32 v11, v8, 10, v10\nv_lshl_add_u32 v59, v8, 12, v10")
    a("buffer_load_dwordx2 v[56:57], v11, s[44:47], s50 offen")
    a(f"v_and_b32 v10, 1, v0\nv_lshl_add_u32 v58, v8, 1, v10\nv_mul_u32_u24 v58, 320, v58\nv_lshl_add_u32 v58, v9, 4, v58\nv_add_u32 v58, {L_RED}, v58")
    a(f"v_mul_u32_u24 v247, 320, v12\nv_lshl_add_u32 v247, v13, 2, v247\ns_mul_i32 s49, s31, 1280\ns_add_u32 s49, s49, {L_RED}\nv_add_u32 v247, s49, v247")
    a("v_lshrrev_b32 v11, 2, v0\nv_lshlrev_b32 v11, 6, v11\ns_lshl_b32 s49, s31, 4\ns_add_u32 s58, s58, s49")
    a("v_lshlrev_b32 v1, 10, v13\nv_lshl_add_u32 v1, v12, 4, v1")
    stl = "buffer_load_dwordx4 v[32:35], v11, s[36:39], s58 offen"
    wait_flag(F_TURN, 5)
    a(stl + first)
    cap = P["capW"]
    for n in range(16):
        if n >= cap and n % 2 == 0: vm(cap - 2)
        a(f"s_add_u32 m0, s57, {1024*n}\ns_add_u32 s49, s48, {8192*n}\nbuffer_load_dwordx4 v{2+(n&1)}, s[40:43], s49 offen nt lds")
    stamp(1)
    vm(16)
    a("L_Tsp:")
    a("v_xor_b32 v33, s96, v33\nv_xor_b32 v35, s96, v35\nv_or_b32 v15, v33, v35\nv_cmp_ne_u32 vcc, 0, v15\ns_cbranch_vccz L_Tsq")
    backoff(4)
    a(stl + " sc1")
    vm(0)
    a("s_branch L_Tsp\nL_Tsq:")
    a("v_mov_b32 v8, v32")
    dpp("v_max_f32", 8, 8, 8, "row_ror:4"); dpp("v_max_f32", 8, 8, 8, "row_ror:8"); x16("v_max_f32", 8, 10)
    a("v_sub_f32 v32, v32, v8\nv_mul_f32 v32, s59, v32\nv_exp_f32 v32, v32\nv_mul_f32 v9, v32, v34")
    dpp("v_add_f32", 9, 9, 9, "row_ror:4"); dpp("v_add_f32", 9, 9, 9, "row_ror:8"); x16("v_add_f32", 9, 10)
    a("v_rcp_f32 v9, v9\nv_mul_f32 v32, v32, v9")
    for r in range(4): dpp("v_mov_b32", 48 + r, 32, None, f"row_newbcast:{4*r}")
    a("v_lshlrev_b32 v52, 16, v56\nv_and_b32 v53, 0xffff0000, v56\nv_lshlrev_b32 v54, 16, v57\nv_and_b32 v55, 0xffff0000, v57")
    stamp(7)
    for ks in range(4):
        vm(4 * (3 - ks))
        if ks == 3: gather_dma(["s60", "s61", "s54", "s55"])
        if ks: a("s_waitcnt lgkmcnt(0)")
        wreads(ks)
    stamp(6)
    gather_finish("s60", 0, gm)
    stamp(8)
    def scale(t, r): a(f"v_mul_f32 v{8+t}, v{32+4*t}, v48" if r == 0 else f"v_fmac_f32 v{8+t}, v{32+4*t+r}, v{48+r}")
    for n in range(5, 16):
        gm(n)
        if n >= 12: scale(0, n & 3); scale(1, n & 3)
    a("ds_write2_b32 v247, v8, v9 offset0:0 offset1:16")
    for t in (2, 3):
        for r in range(4): scale(t, r)
    a("ds_write2_b32 v247, v10, v11 offset0:32 offset1:48\ns_waitcnt lgkmcnt(0)\ns_barrier")
    a("s_cmp_lg_u32 s31, 3\ns_cbranch_scc1 L_exit")
    for k in range(4): a(f"ds_read_b128 v[{32+4*k}:{35+4*k}], v58 offset:{1280*k}")
    lgkm(2)
    a("v_pk_add_f32 v[32:33], v[32:33], v[36:37]\nv_pk_add_f32 v[34:35], v[34:35], v[38:39]")
    lgkm(0)
    a("v_pk_add_f32 v[40:41], v[40:41], v[44:45]\nv_pk_add_f32 v[42:43], v[42:43], v[46:47]")
    a("v_pk_add_f32 v[32:33], v[32:33], v[40:41]\nv_pk_add_f32 v[34:35], v[34:35], v[42:43]")
    for v in range(4): dpp("v_add_f32", 32 + v, 32 + v, 32 + v, "quad_perm:[1,0,3,2]")
    a("v_pk_add_f32 v[32:33], v[32:33], v[52:53]\nv_pk_add_f32 v[34:35], v[34:35], v[54:55]")
    a("v_cvt_pk_bf16_f32 v36, v32, v33\nv_cvt_pk_bf16_f32 v37, v34, v35\nv_min_u32 v36, -2, v36\nv_min_u32 v37, -2, v37")
    dpp("v_mov_b32", 38, 36, None, "quad_perm:[2,3,2,3]"); dpp("v_mov_b32", 39, 37, None, "quad_perm:[2,3,2,3]")
    a("s_mov_b32 exec_lo, 0x11111111\ns_mov_b32 exec_hi, 0x11111111")
    a("buffer_store_dwordx4 v[36:39], v59, s[36:39], s51 offen sc1")
    stamp(9)
    a("s_branch L_exit")

    a("L_F:")
    a(f"s_add_u32 s30, s97, s28\ns_add_u32 s30, s30, {P['rF']}\ns_mul_i32 s49, s30, 37\ns_lshr_b32 s49, s49, 8\ns_mul_i32 s49, s49, 7\ns_sub_u32 s30, s30, s49")
    dp_addr("s30")
    srd(40, 20, 1792 * 1024); srd(44, 22, 4096)
    a("s_lshl_b32 s49, s61, 15\ns_add_u32 s49, s49, s53\ns_add_u32 s48, s49, 16384")
    for jj in range(8):
        a(f"buffer_load_dwordx4 v[{192+4*jj}:{195+4*jj}], v246, s[40:43], s{48 if jj & 1 else 49} offen offset:{(jj>>1)*1024} nt")
    a("s_lshl_b32 s6, 0x01010101, s100\ns_mov_b32 s7, s6")
    a("v_mul_u32_u24 v10, 3584, v9\nv_and_b32 v11, 3, v8\nv_lshl_add_u32 v10, v11, 4, v10")
    a(f"s_mul_i32 s49, s31, {128*3584}\ns_lshl_b32 s50, s61, 6\ns_add_u32 s49, s49, s50\nv_add_u32 v10, s49, v10\nv_mov_b32 v11, 0")
    a("v_lshl_add_u64 v[224:225], v[10:11], 0, s[16:17]\nv_lshl_add_u64 v[226:227], v[10:11], 0, s[18:19]")
    a("s_mov_b32 exec_lo, 0xf0f0f0f0\ns_mov_b32 exec_hi, 0xf0f0f0f0")
    a("v_lshl_add_u64 v[224:225], v[10:11], 0, s[18:19]\nv_lshl_add_u64 v[226:227], v[10:11], 0, s[16:17]\ns_mov_b64 exec, -1")
    a(f"s_mov_b32 s98, {8*3584}\ns_mov_b32 s99, 0\nv_lshl_add_u64 v[226:227], v[226:227], 0, s[98:99]\ns_mov_b32 s98, {16*3584}")
    a(f"s_mul_i32 s50, s31, 320\ns_add_u32 s50, s50, {L_CS}\nv_lshl_add_u32 v247, v13, 4, s50")
    for k in range(4): a(f"v_mov_b32 v{240+k}, 0x3f803f80")
    a(f"v_lshrrev_b32 v229, 5, v0\nv_mul_u32_u24 v229, {2*RS}, v229\nv_bfe_u32 v1, v0, 2, 3\nv_lshl_add_u32 v229, v1, 6, v229")
    a(f"s_lshl_b32 s58, s31, 2\ns_lshr_b32 s50, s29, 1\ns_add_u32 s58, s58, s50\ns_mul_i32 s58, s58, {RS}\ns_add_u32 s58, s58, {ST + 4}")
    a(f"v_bfe_u32 v1, v0, 2, 1\nv_mul_u32_u24 v1, {RS}, v1\nv_and_b32 v3, 3, v0\nv_lshl_add_u32 v1, v3, 10, v1\nv_bfe_u32 v3, v0, 3, 1\nv_lshl_add_u32 v1, v3, 12, v1\nv_lshl_add_u32 v1, v12, 4, v1")
    a(f"s_add_u32 s60, s55, {RS}\ns_add_u32 s63, s55, 4096\ns_add_u32 s51, s55, {RS + 4096}")
    a(f"s_mul_i32 s50, s31, 1280\ns_add_u32 s50, s50, {L_RED}")
    a("v_lshrrev_b32 v2, 1, v12\nv_mul_u32_u24 v2, 320, v2\nv_lshl_add_u32 v2, v13, 4, v2\nv_and_b32 v3, 1, v12\nv_lshl_add_u32 v2, v3, 3, v2\nv_add_u32 v2, s50, v2")
    a("v_and_b32 v8, 3, v0\nv_lshl_add_u32 v8, v12, 2, v8\nv_lshlrev_b32 v8, 4, v8\nv_bfe_u32 v9, v0, 3, 1\nv_bfe_u32 v10, v0, 2, 1")
    a(f"v_mul_u32_u24 v230, 640, v9\nv_add_u32 v230, v230, v8\nv_add_u32 v230, {L_CS}, v230")
    a(f"v_mul_u32_u24 v231, 2560, v9\nv_mul_u32_u24 v3, 320, v10\nv_add3_u32 v231, v231, v3, v8\nv_add_u32 v231, {L_RED}, v231")
    a(f"v_lshlrev_b32 v3, 5, v10\nv_add_u32 v3, {L_STAT}, v3")
    a(f"s_lshl_b32 s50, s31, 2\ns_add_u32 s50, s50, {L_STAT}\nv_lshl_add_u32 v59, v12, 4, s50")
    a("s_lshl_b32 s50, s97, 5\ns_lshl_b32 s100, s28, 7\ns_add_u32 s100, s100, s50")
    a("s_lshr_b32 s50, s31, 1\ns_add_u32 s101, s62, s50\ns_lshl_b32 s101, s101, 10\ns_add_u32 s101, s101, s100")
    a(f"s_lshl_b32 s50, s50, 12\ns_add_u32 s100, s100, s50\ns_add_u32 s100, s100, s52\ns_add_u32 s10, s100, {8*RS}")
    a(f"v_lshrrev_b32 v244, 3, v0\nv_mul_u32_u24 v244, {RS}, v244\nv_bfe_u32 v8, v0, 1, 2\nv_lshl_add_u32 v244, v8, 10, v244\nv_and_b32 v8, 1, v0\nv_lshl_add_u32 v244, v8, 4, v244")
    a("v_and_b32 v245, 7, v0\nv_lshlrev_b32 v245, 1, v245\nv_lshrrev_b32 v8, 5, v0\nv_lshl_add_u32 v245, v8, 4, v245")
    a("v_lshrrev_b32 v8, 1, v13\nv_and_b32 v9, 1, v0\nv_lshlrev_b32 v9, 4, v9\ns_mov_b32 s50, 0x3f80\nv_lshlrev_b32 v9, v9, s50")
    for k in range(4): a(f"v_cmp_eq_u32 vcc, {k}, v8\nv_cndmask_b32 v{248+k}, 0, v9, vcc")
    vm(0); transpose(128, 192)
    stamp(7)
    certl = "buffer_load_dword v58, v229, s[36:39], s58 offen"
    wait_flag(F_TURN, 5)
    a(certl + first)
    for n in range(16):
        if n == P["nF6"]: wait_flag(F_TURN, 6)
        r = 224 + 2 * (n & 1)
        a(f"s_add_u32 m0, s57, {1024*n}\nglobal_load_lds_dwordx4 v[{r}:{r+1}], off nt")
        if n < 14: a(f"v_lshl_add_u64 v[{r}:{r+1}], v[{r}:{r+1}], 0, s[98:99]")
    stamp(1)
    vm(16)
    a("L_Fcp:\nv_cmp_ne_u32 vcc, s96, v58\ns_cbranch_vccz L_Fcq")
    backoff(4)
    a(certl + " sc1")
    vm(0)
    a("s_branch L_Fcp\nL_Fcq:")
    def csum(ks):
        for t in range(4): mfma(32 + 4 * t, 240, 64 + 16 * ks + 4 * t, 32 + 4 * t if ks else None)
    for ks in range(4):
        vm(4 * (3 - ks))
        if ks == 3:
            a("s_barrier"); gather_dma(["s55", "s60", "s63", "s51"])
        a("s_waitcnt lgkmcnt(0)")
        wreads(ks)
        if ks: csum(ks - 1)
    a("s_waitcnt lgkmcnt(0)")
    csum(3)
    stamp(2)
    for t in range(4): a(f"v_mov_b32 v{8+t}, v{32+4*t}")
    a("s_mov_b64 exec, 0xffff\nds_write_b128 v247, v[8:11]\ns_mov_b64 exec, -1")
    stamp(6)
    a("s_waitcnt lgkmcnt(0)\ns_barrier")
    a("ds_read_b128 v[224:227], v230\nds_read_b128 v[8:11], v230 offset:320\ns_waitcnt lgkmcnt(0)")
    a("v_pk_add_f32 v[224:225], v[224:225], v[8:9]\nv_pk_add_f32 v[226:227], v[226:227], v[10:11]")
    def sm(n):
        ks = n & 3
        if n < 4: mfma(232, 16 + 4 * ks, 16 + 4 * ks, None if ks == 0 else 232)
        else: mfma(236, 16 + 4 * ks, 240, None if ks == 0 else 236)
    gather_finish("s55", 1, sm, "s[6:7]")
    stamp(10)
    for n in range(5, 8): sm(n)
    def rsum(t): a(f"v_add_f32 v{8+t}, v{32+4*t}, v{33+4*t}\nv_add_f32 v{34+4*t}, v{34+4*t}, v{35+4*t}\nv_add_f32 v{8+t}, v{8+t}, v{34+4*t}")
    for n in range(16):
        gm(n)
        if n == 3: a("v_add_f32 v232, v232, v233\nv_add_f32 v234, v234, v235")
        if n == 4: a("v_add_f32 v232, v232, v234")
        if n == 6: dpp("v_add_f32", 232, 232, 232, "quad_perm:[1,0,3,2]"); a("v_add_f32 v236, v236, v237")
        if n == 7: dpp("v_add_f32", 232, 232, 232, "quad_perm:[2,3,0,1]"); a("v_add_f32 v238, v238, v239")
        if n == 8: dpp("v_add_f32", 232, 232, 232, "row_half_mirror"); a("v_add_f32 v236, v236, v238")
        if n == 10: a("v_permlane16_swap_b32 v232, v236\nv_add_f32 v232, v232, v236")
        if n == 12: rsum(0)
        if n == 14: rsum(1)
    a("s_mov_b32 exec_lo, 0x00010001\ns_mov_b32 exec_hi, 0x01000100\nds_write_b32 v59, v232\ns_mov_b64 exec, -1")
    rsum(2)
    a("v_permlane16_swap_b32 v8, v10\nv_add_f32 v8, v8, v10")
    rsum(3)
    a("v_permlane16_swap_b32 v9, v11\nv_add_f32 v9, v9, v11")
    a("ds_write_b64 v2, v[8:9]\ns_waitcnt lgkmcnt(0)\ns_barrier")
    stamp(11)
    a("ds_read_b128 v[48:51], v3\nds_read_b128 v[52:55], v3 offset:16")
    for k in range(2): a(f"ds_read_b128 v[{32+4*k}:{35+4*k}], v231 offset:{1280*k}")
    lgkm(2)
    a("v_pk_add_f32 v[48:49], v[48:49], v[50:51]\nv_pk_add_f32 v[52:53], v[52:53], v[54:55]")
    a("v_add_f32 v48, v48, v49\nv_add_f32 v52, v52, v53\nv_mul_f32 v52, 0x3b000000, v52\nv_mul_f32 v48, 0x3b000000, v48")
    a("v_fma_f32 v48, -v52, v52, v48\nv_max_f32 v48, 0, v48\nv_add_f32 v48, 0x3727c5ac, v48\nv_rsq_f32 v48, v48")
    lgkm(0)
    a("v_pk_add_f32 v[32:33], v[32:33], v[36:37]\nv_pk_add_f32 v[34:35], v[34:35], v[38:39]")
    for v in range(4): a(f"v_fma_f32 v{32+v}, -v52, v{224+v}, v{32+v}")
    a("v_mul_f32 v49, 0xbfb8aa3b, v48\nv_mul_f32 v48, v48, v48")
    for v in range(4): dpp("v_add_f32", 32 + v, 32 + v, 32 + v, "row_ror:8")
    a("v_mul_f32 v36, v49, v32\nv_mul_f32 v37, v49, v33\nv_exp_f32 v36, v36\nv_exp_f32 v37, v37")
    a("v_mul_f32 v32, v32, v48\nv_mul_f32 v33, v33, v48\nv_add_f32 v36, 1.0, v36\nv_add_f32 v37, 1.0, v37")
    a("v_rcp_f32 v36, v36\nv_rcp_f32 v37, v37\nv_mul_f32 v32, v32, v34\nv_mul_f32 v33, v33, v35")
    a("v_mul_f32 v32, v32, v36\nv_mul_f32 v33, v33, v37\nv_cvt_pk_bf16_f32 v20, v32, v33")
    for p in range(4): dpp("v_mov_b32", 16 + p, 20, None, f"quad_perm:[{p},{p},{p},{p}]")
    for t in range(8): mfma(64 + 4 * t, 16, 128 + 4 * t, None)
    for k in range(4): a(f"v_cvt_pk_bf16_f32 v{8+k}, v{64+8*k}, v{68+8*k}\nv_min_u32 v{8+k}, -2, v{8+k}")
    a("s_mov_b32 exec_hi, 0\nbuffer_store_dwordx4 v[8:11], v246, s[36:39], s54 offen sc1\ns_mov_b64 exec, -1")
    stamp(12)

    a("s_cmp_ge_u32 s97, 4\ns_cbranch_scc1 L_exit\ns_bitcmp1_b32 s31, 0\ns_cbranch_scc1 L_Eu")
    vm(0)
    a("L_Gp:\nbuffer_load_dwordx4 v[16:19], v244, s[36:39], s100 offen sc1\nbuffer_load_dwordx4 v[20:23], v244, s[36:39], s10 offen sc1\ns_mov_b64 exec, -1")
    vm(0)
    mfma(24, 16, 248, None); mfma(24, 20, 248, 24)
    a("v_max_u32 v15, v16, v17\nv_max3_u32 v15, v15, v18, v19\nv_max3_u32 v15, v15, v20, v21\nv_max3_u32 v15, v15, v22, v23")
    a("v_cmp_eq_u32 vcc, -1, v15\ns_cbranch_vccz L_Gd")
    backoff(0)
    a("s_mov_b64 exec, vcc\ns_branch L_Gp\nL_Gd:")
    stamp(13)
    a("v_pk_add_f32 v[24:25], v[24:25], v[26:27]\nv_permlane32_swap_b32 v24, v25\nv_add_f32 v24, v24, v25")
    x16("v_add_f32", 24, 25)
    a("v_cvt_pk_bf16_f32 v24, v24, v24")
    a("s_mov_b32 exec_lo, 0xff\ns_mov_b32 exec_hi, 0xff\nbuffer_store_short v24, v245, s[44:47], s101 offen\ns_branch L_exit")
    a("L_Eu:\ns_xor_b32 s48, s31, 1\ns_or_b32 s48, s48, s28\ns_or_b32 s48, s48, s62\ns_or_b32 s48, s48, s97\ns_cbranch_scc1 L_exit")
    a(f"s_mov_b64 exec, 1\nv_mov_b32 v25, s96\ns_mov_b32 s48, {hex(EP)}\nbuffer_store_dword v25, v245, s[36:39], s48 offen sc1")

    a("L_exit:")
    if dbg:
        stamp(15)
        a("s_mov_b64 exec, -1\ns_waitcnt lgkmcnt(0)\ns_add_u32 s92, s97, 1")
        for k in range(16): a(f"v_mov_b32 v{16+k}, s{64+2*k}")
        a(f"s_and_b32 s48, s3, 3\ns_lshl_b32 s48, s48, 6\ns_add_u32 s49, s48, {L_FLAG + 256}\nv_mov_b32 v2, s49\nv_mov_b32 v1, 0\ns_mov_b64 exec, 1")
        a("s_cmp_ge_u32 s3, 4\ns_cbranch_scc1 L_dT")
        for k in range(4): a(f"ds_write_b128 v2, v[{16+4*k}:{19+4*k}] offset:{16*k}")
        a("s_waitcnt lgkmcnt(0)\ns_endpgm\nL_dT:\ns_barrier")
        for k in range(4): a(f"ds_read_b128 v[{32+4*k}:{35+4*k}], v2 offset:{16*k}")
        a(f"s_lshl_b32 s49, s2, 9\ns_add_u32 s48, s48, s49\ns_add_u32 s48, s48, {STAMP}\ns_add_u32 s26, s26, s48\ns_addc_u32 s27, s27, 0")
        a("s_sleep 100\ns_sleep 100\ns_waitcnt lgkmcnt(0)")
        for k in range(4): a(f"global_store_dwordx4 v1, v[{32+4*k}:{35+4*k}], s[26:27] offset:{16*k}")
        for k in range(4): a(f"global_store_dwordx4 v1, v[{16+4*k}:{19+4*k}], s[26:27] offset:{256+16*k}")
    a("L_end:\ns_endpgm\nL_fin:")

    head = open("sequential_preLN__sliding_block_cached__swiglu_ffn__decode.s.ref").read().split("; Override launch")[0]
    return head + f"; @launch grid=(256,1,1) block=(512,1,1) lds={LDS_BYTES}\n" + HEADER.replace("RS bytes", f"{hex(RS)} bytes") + f""".amdgcn_target "amdgcn-amd-amdhsa--gfx950"
.text
.globl {KNAME}
.p2align 8
.type {KNAME},@function
""" + a.padded() + f""".section .rodata,"a"
.p2align 6
.amdhsa_kernel {KNAME}
  .amdhsa_next_free_vgpr 256
  .amdhsa_next_free_sgpr 102
  .amdhsa_accum_offset 256
  .amdhsa_group_segment_fixed_size 0
  .amdhsa_kernarg_size 96
  .amdhsa_user_sgpr_count 2
  .amdhsa_user_sgpr_kernarg_segment_ptr 1
  .amdhsa_system_sgpr_workgroup_id_x 1
  .amdhsa_float_denorm_mode_32 3
.end_amdhsa_kernel
"""

if __name__ == "__main__":
    kw = {}
    for x in sys.argv[2:]:
        k, v = x.split("=", 1)
        kw[k] = int(v, 0)
    open(sys.argv[1], "w").write(gen(**kw))
```

```python
import sys
from asmlib import Asm
KNAME = "sequential_preLN__sliding_block_cached__swiglu_ffn__decode_kernel"

OP, QP, ST, EP, TK, DP = 0x0000, 0x4000, 0x8000, 0x9000, 0x9080, 0xC000
STAMP = 0x10000000
L_Q, L_P, L_DEP, L_RED, L_CS, L_STAT, L_M, L_L, L_FLAG = 131072, 132096, 136192, 142336, 147456, 148736, 148864, 148928, 148992
LDS_BYTES = L_FLAG + 512
F_TURN, F_K, F_Q, F_DEP, F_R, F_M, F_L, F_P = 0, 4, 8, 12, 16, 20, 24, 32

DEF = dict(dbg=0, thrK=20, thrV=20, burst=6, q_gate=18, capW=8, nF6=3, kW=4, kG=1, rW=5, rF=5, RS=0x44000,
           pl=1, budget=0x80000)

HEADER = """;
;
;
; d_ws holds 16 regions of RS bytes, region 2g + pair: o partials +0x0000, q partials +0x4000, softmax records +0x8000,
"""

def gen(**kw):
    P = dict(DEF); P.update(kw)
    dbg = P["dbg"]; RS = P["RS"]; WS_BYTES = 16 * RS
    a = Asm()
    uid = [0]
    def L(s):
        uid[0] += 1
        return f"L_{s}_{uid[0]}"
    def note(t): a("; " + t)
    def stamp(k):
        if dbg: a(f"s_memrealtime s[{64+2*k}:{65+2*k}]")
        elif "e2" in P:
            if k == 0: a("s_memrealtime s[64:65]\ns_mov_b32 s68, 0")
            if k == P["e1"] and k: a("s_memrealtime s[70:71]\ns_waitcnt lgkmcnt(0)")
            if k == P["e2"]: a(f"s_memrealtime s[66:67]\ns_waitcnt lgkmcnt(0)\ns_sub_u32 s68, s66, s{70 if P['e1'] else 64}\ns_lshl_b32 s68, s68, 2\ns_min_u32 s68, s68, 20000")
    def lgkm(n=0): a(f"s_waitcnt lgkmcnt({0 if dbg else n})")
    def vm(n): a(f"s_waitcnt vmcnt({n})")
    def srd(d, p, nbytes):
        a(f"s_mov_b32 s{d}, s{p}\ns_mov_b32 s{d+1}, s{p+1}\ns_mov_b32 s{d+2}, {hex(nbytes)}\ns_mov_b32 s{d+3}, 0x20000")
    def backoff(n):
        if n: a(f"s_sleep {n}")
        a("s_sub_u32 s32, s32, 1\ns_cbranch_scc1 L_exit")
    def wait_flag(off, val, addr="v14", sl=1):
        l, d = L("wf"), L("wfd")
        a(f"{l}:\nds_read_b32 v15, {addr} offset:{off}")
        a("s_waitcnt lgkmcnt(0)\nv_readfirstlane_b32 s33, v15")
        a(f"s_cmp_ge_u32 s33, {val}\ns_cbranch_scc1 {d}")
        backoff(sl)
        a(f"s_branch {l}\n{d}:")
    def set_flag(off, val, addr="v14"):
        a(f"v_mov_b32 v15, {val}\nds_write_b32 {addr}, v15 offset:{off}")
    def transpose(dst, src, ps=range(4)):
        for p in ps:
            for d in range(4):
                for e in range(2):
                    a(f"v_perm_b32 v{dst+4*(2*d+e)+p}, v{src+4*(2*p+1)+d}, v{src+8*p+d}, s{34+e}")
    def mfma(d, A, B, c):
        cc = "0" if c is None else f"v[{c}:{c+3}]"
        a(f"v_mfma_f32_16x16x32_bf16 v[{d}:{d+3}], v[{A}:{A+3}], v[{B}:{B+3}], {cc}")
    def dpp(op, d, s0, s1, ctl, bank="0xf"):
        a(f"{op}_dpp v{d}, v{s0}" + (f", v{s1}" if s1 is not None else "") + f" {ctl} row_mask:0xf bank_mask:{bank}")
    def x16(op, v, t): a(f"v_mov_b32 v{t}, v{v}\nv_permlane16_swap_b32 v{v}, v{t}\n{op} v{v}, v{v}, v{t}")
    def x32(op, v, t): a(f"v_mov_b32 v{t}, v{v}\nv_permlane32_swap_b32 v{v}, v{t}\n{op} v{v}, v{v}, v{t}")
    def rbf(v): a(f"v_cvt_pk_bf16_f32 v{v}, v{v}, v{v}\nv_and_b32 v{v}, 0xffff0000, v{v}")
    def red_head(op, v):
        dpp(op, v, v, v, "row_ror:4"); dpp(op, v, v, v, "row_ror:8"); x16(op, v, 10); x32(op, v, 10)
    def red_batch(v):
        dpp("v_add_f32", v, v, v, "quad_perm:[1,0,3,2]"); dpp("v_add_f32", v, v, v, "quad_perm:[2,3,0,1]")
        x16("v_add_f32", v, 9); x32("v_add_f32", v, 9)
    def epoch(): a(f"s_load_dword s96, s[26:27], {hex(EP)}")
    def epoch_wait(): a("s_waitcnt lgkmcnt(0)\ns_add_u32 s96, s96, 0x01010101")
    first = "" if P["pl"] else " sc1"

    a(f"{KNAME}:")
    if dbg:
        for k in range(66, 98, 2): a(f"s_mov_b64 s[{k}:{k+1}], 0")
    stamp(0)
    a("s_load_dwordx16 s[4:19], s[0:1], 0\ns_load_dwordx8 s[20:27], s[0:1], 64")
    a("s_cmp_ge_u32 s2, 256\ns_cbranch_scc1 L_end")
    a("v_lshrrev_b32 v1, 6, v0\nv_and_b32 v0, 63, v0\nv_readfirstlane_b32 s3, v1")
    a("s_and_b32 s28, s2, 7\ns_bfe_u32 s29, s2, 0x20003\ns_lshr_b32 s30, s2, 5")
    a(f"s_mov_b32 s32, {hex(P['budget'])}\ns_mov_b32 s34, 0x05040100\ns_mov_b32 s35, 0x07060302")
    a(f"v_mov_b32 v14, {L_FLAG}\nv_lshrrev_b32 v12, 4, v0\nv_and_b32 v13, 15, v0\ns_and_b32 s31, s3, 3")
    a("s_lshl_b32 s60, s29, 3\ns_add_u32 s60, s60, s28\ns_lshl_b32 s60, s60, 22")
    a("s_lshl_b32 s61, s30, 15\ns_add_u32 s60, s60, s61\ns_add_u32 s60, s60, 0x300000")
    a(f"s_lshl_b32 s63, s28, 1\ns_lshr_b32 s61, s29, 1\ns_add_u32 s63, s63, s61\ns_mul_i32 s63, s63, {RS}\ns_and_b32 s101, s29, 1")
    a("s_add_u32 s100, s28, 1\ns_and_b32 s100, s100, 7")
    a("s_cmp_eq_u32 s3, 1\ns_cbranch_scc1 L_W1\ns_cmp_eq_u32 s3, 2\ns_cbranch_scc1 L_W2")
    a("s_cmp_eq_u32 s3, 3\ns_cbranch_scc1 L_W3\ns_cmp_ge_u32 s3, 4\ns_cbranch_scc1 L_T")

    a("s_mov_b32 s31, 3")
    for ii in range(4):
        a(f"v_lshl_add_u32 v1, v12, 2, {ii}\nv_xor_b32 v1, v1, v13\nv_lshlrev_b32 v1, 4, v1\nv_lshl_add_u32 v{4+ii}, v12, 8, v1")
    a("s_mov_b32 s48, 0\ns_waitcnt lgkmcnt(0)")
    srd(40, 6, 0x8000000)
    def ktile():
        a("s_add_u32 s49, s48, s28\ns_and_b32 s49, s49, 7\ns_lshl_b32 s49, s49, 12")
        a("s_lshr_b32 s50, s48, 3\ns_lshl_b32 s50, s50, 18\ns_add_u32 s49, s49, s50\ns_add_u32 s49, s49, s60")
        a("s_lshl_b32 m0, s48, 12\ns_add_u32 s48, s48, 1")
        for ii in range(4):
            a(f"buffer_load_dwordx4 v{4+ii}, s[40:43], s49 offen offset:{ii*1024} nt lds")
    a("L_kA:"); ktile()
    a(f"s_cmp_lt_u32 s48, {P['burst']}\ns_cbranch_scc1 L_kA")
    stamp(9)
    a("s_barrier")
    stamp(8)
    a("L_kB:")
    vm(P["thrK"])
    a(f"s_sub_u32 s51, s48, {(P['thrK']+3)//4}\ns_max_i32 s51, s51, 0")
    set_flag(F_K, "s51")
    ktile()
    a("s_cmp_lt_u32 s48, 32\ns_cbranch_scc1 L_kB")
    set_flag(F_TURN, 1)
    stamp(6)
    vm(0)
    set_flag(F_K, 32)
    stamp(7)
    wait_flag(F_Q, 1, sl=2)
    a(f"s_add_u32 s48, s63, {TK}\ns_add_u32 s50, s26, s48\ns_addc_u32 s51, s27, 0\ns_mov_b32 s48, 1\ns_atomic_add s48, s[50:51], 0 glc\ns_waitcnt lgkmcnt(0)")
    a("s_and_b32 s48, s48, 15\ns_add_u32 s48, s48, 1")
    set_flag(F_R, "s48")
    a("s_branch L_S")

    a("L_W1:")
    a("v_bfe_u32 v1, v0, 2, 2\nv_lshlrev_b32 v1, 10, v1\nv_lshl_add_u32 v1, v12, 6, v1\nv_and_b32 v2, 3, v0\nv_lshl_add_u32 v2, v2, 4, v1")
    a("v_bfe_u32 v4, v0, 3, 1\nv_lshl_add_u32 v4, v12, 2, v4\nv_lshlrev_b32 v4, 16, v4\nv_and_b32 v5, 7, v0\nv_lshl_add_u32 v4, v5, 4, v4")
    a("s_lshl_b32 s48, s29, 20\ns_lshl_b32 s49, s100, 10\ns_add_u32 s48, s48, s49\ns_lshl_b32 s49, s30, 7\ns_add_u32 s48, s48, s49")
    for k in range(4): a(f"s_xor_b32 s{52+k}, s29, {k}\ns_lshl_b32 s{52+k}, s{52+k}, 8")
    a("s_waitcnt lgkmcnt(0)")
    epoch()
    srd(40, 4, 4096); srd(44, 10, 0x400000); srd(36, 26, WS_BYTES)
    a("s_or_b32 s49, s30, s101\ns_cbranch_scc1 L_W1t")
    a(f"s_lshl_b32 s49, s100, 1\ns_lshr_b32 s51, s29, 1\ns_add_u32 s49, s49, s51\ns_mul_i32 s49, s49, {RS}\ns_add_u32 s49, s49, {TK}")
    a("s_mov_b64 exec, 1\nv_mov_b32 v6, 0\nbuffer_store_dword v6, v6, s[36:39], s49 offen sc1\ns_mov_b64 exec, -1\nL_W1t:")
    for k in range(4): a(f"buffer_load_dwordx4 v[{16+4*k}:{19+4*k}], v2, s[40:43], s{52+k} offen")
    for n in range(16):
        a(f"buffer_load_dwordx4 v[{96+4*n}:{99+4*n}], v4, s[44:47], s48 offen nt")
        if n < 15: a(f"s_add_u32 s48, s48, {8192 if n != 7 else 9*8192}")
    epoch_wait()
    a("s_barrier")
    vm(16)
    for k in range(16):
        a(f"v_lshlrev_b32 v{160+2*k}, 16, v{16+k}\nv_and_b32 v{161+2*k}, 0xffff0000, v{16+k}")
    a("v_pk_add_f32 v[6:7], v[160:161], v[162:163]")
    for k in range(2, 16): a(f"v_pk_add_f32 v[6:7], v[6:7], v[{160+2*k}:{161+2*k}]")
    a("v_add_f32 v6, v6, v7")
    red_batch(6)
    a("v_mul_f32 v6, 0x3b000000, v6\nv_mov_b32 v7, 0")
    for k in range(32): a(f"v_sub_f32 v{160+k}, v{160+k}, v6")
    for k in range(32): a(f"v_fmac_f32 v7, v{160+k}, v{160+k}")
    red_batch(7)
    a("v_mul_f32 v7, 0x3b000000, v7")
    rbf(6); rbf(7)
    a("v_add_f32 v7, 0x3727c5ac, v7"); rbf(7)
    a("v_sqrt_f32 v7, v7"); rbf(7)
    a("v_rcp_f32 v7, v7")
    for k in range(4):
        a(f"v_lshlrev_b32 v8, 16, v{16+k}\nv_and_b32 v9, 0xffff0000, v{16+k}\nv_sub_f32 v8, v8, v6\nv_sub_f32 v9, v9, v6")
        a(f"v_cvt_pk_bf16_f32 v9, v8, v9\nv_lshlrev_b32 v8, 16, v9\nv_and_b32 v9, 0xffff0000, v9")
        a(f"v_mul_f32 v8, v8, v7\nv_mul_f32 v9, v9, v7\nv_cvt_pk_bf16_f32 v{16+k}, v8, v9")
    for u in range(2):
        for k in range(4): dpp("v_mov_b32", 32 + 4 * u + k, 16 + k, None, f"quad_perm:[{2*u},{2*u+1},{2*u},{2*u+1}]")
    stamp(6)
    vm(8); transpose(64, 96)
    for t in range(8): mfma(192 + 4 * t, 32, 64 + 4 * t, None)
    vm(0); transpose(96, 128)
    for t in range(8): mfma(192 + 4 * t, 36, 96 + 4 * t, 192 + 4 * t)
    a(f"v_lshrrev_b32 v1, 5, v0\nv_mul_u32_u24 v1, {RS}, v1\nv_and_b32 v2, 1, v12\nv_lshl_add_u32 v1, v2, 13, v1")
    a("v_lshl_add_u32 v1, v5, 5, v1\nv_bfe_u32 v2, v0, 3, 1\nv_lshl_add_u32 v1, v2, 4, v1")
    a(f"s_mul_i32 s48, s100, {2*RS}\ns_lshl_b32 s49, s29, 11\ns_add_u32 s48, s48, s49\ns_lshl_b32 s49, s30, 8\ns_add_u32 s48, s48, s49\ns_add_u32 s48, s48, {QP}")
    for t in range(8):
        if t < 4: dpp("v_add_f32", 16 + t, 193 + 4 * t, 192 + 4 * t, "row_ror:8", "0x3")
        else: dpp("v_add_f32", 12 + t, 192 + 4 * t, 193 + 4 * t, "row_ror:8", "0xc")
    a("v_mov_b32 v6, s96")
    for v in range(4): a(f"s_mov_b32 s49, {hex(0x07060500 + v)}\nv_perm_b32 v{16+v}, v{16+v}, v6, s49")
    a("buffer_store_dwordx4 v[16:19], v1, s[36:39], s48 offen sc1")
    stamp(8)
    a("s_branch L_S")

    a("L_W2:")
    a("v_lshlrev_b32 v2, 4, v0")
    a(f"s_lshl_b32 s48, s101, 13\ns_add_u32 s48, s48, s63\ns_add_u32 s48, s48, {QP}\ns_add_u32 s49, s48, 4096")
    a("s_waitcnt lgkmcnt(0)")
    epoch()
    srd(36, 26, WS_BYTES)
    epoch_wait()
    a("s_barrier")
    for k in range(4): a(f"s_bfe_u32 s{52+k}, s96, {hex(0x80000 + 8 * k)}")
    wait_flag(F_K, P["q_gate"], sl=4)
    stamp(7)
    a("L_W2p:")
    for k in range(8): a(f"buffer_load_dwordx4 v[{16+4*k}:{19+4*k}], v2, s[36:39], s{48+(k>>2)} offen offset:{(k&3)*1024} sc1")
    vm(0)
    for r in range(16, 48): a(f"v_xor_b32 v{r}, s{52+(r&3)}, v{r}")
    a("v_or_b32 v15, v16, v17")
    for r in range(18, 48, 2): a(f"v_or3_b32 v15, v15, v{r}, v{r+1}")
    a("v_and_b32 v15, 0xff, v15\nv_cmp_ne_u32 vcc, 0, v15\ns_cbranch_vccz L_W2q")
    backoff(4)
    a("s_branch L_W2p\nL_W2q:")
    for h in range(2):
        for ks in range(1, 4):
            for z in range(2):
                r = 16 + 4 * h + 2 * z
                a(f"v_pk_add_f32 v[{r}:{r+1}], v[{r}:{r+1}], v[{r+8*ks}:{r+8*ks+1}]")
        a(f"v_cvt_pk_bf16_f32 v{6+2*h}, v{16+4*h}, v{17+4*h}\nv_cvt_pk_bf16_f32 v{7+2*h}, v{18+4*h}, v{19+4*h}")
    a(f"v_lshlrev_b32 v1, 3, v0\nv_add_u32 v1, {L_Q}, v1")
    a("ds_write_b64 v1, v[6:7]\nds_write_b64 v1, v[8:9] offset:512")
    set_flag(F_Q, 1)
    stamp(8)
    a("s_branch L_S")

    a("L_W3:")
    a("s_mov_b32 s31, 0\ns_lshr_b32 s55, s2, 3")
    a(f"s_getpc_b64 s[48:49]\nL_pc:\ns_sub_u32 s48, s48, L_pc-{KNAME}\ns_subb_u32 s49, s49, 0\ns_mov_b32 s50, L_fin-{KNAME}-4")
    a("s_lshl_b32 s51, s55, 9\nv_lshl_add_u32 v2, v0, 7, s51\nv_min_u32 v2, s50, v2\ns_mov_b64 exec, 15\nglobal_load_dword v16, v2, s[48:49]\ns_mov_b64 exec, -1")
    a("v_lshl_add_u32 v1, v0, 2, v14\nv_mov_b32 v2, 0\nds_write_b32 v1, v2")
    a("s_waitcnt lgkmcnt(0)\ns_barrier")
    def touch(p): a(f"global_load_dword v18, v1, s[{p}:{p+1}] sc1 nt\nglobal_load_dword v18, v1, s[{p}:{p+1}] sc1")
    def pf_rows(k):
        per = 4 * k
        a(f"v_and_b32 v1, {per-1}, v0\ns_mul_i32 s49, s55, {per}\nv_add_u32 v1, s49, v1")
        if k < 4:
            a(f"v_lshrrev_b32 v2, {(32*k).bit_length()-1}, v1\nv_and_b32 v1, {32*k-1}, v1\nv_lshl_add_u32 v1, v2, 7, v1\nv_add_u32 v1, {128-32*k}, v1")
        return hex((1 << per) - 1)
    if P["kW"]:
        m = pf_rows(P["kW"])
        a(f"s_lshl_b32 s49, s100, 19\ns_add_u32 s49, s49, 384\nv_lshl_add_u32 v1, v1, 10, s49\ns_mov_b64 exec, {m}")
        touch(12); a("s_mov_b64 exec, -1")
    if P["kG"]:
        m = pf_rows(P["kG"])
        a(f"s_mul_i32 s49, s28, 448\ns_lshr_b32 s49, s49, 7\ns_or_b32 s49, s49, 3\ns_lshl_b32 s49, s49, 7\nv_mul_u32_u24 v1, 3584, v1\nv_add_u32 v1, s49, v1\ns_mov_b64 exec, {m}")
        touch(16); touch(18); a("s_mov_b64 exec, -1")

    a("L_S:")
    srd(40, 8, 0x8000000); srd(36, 26, WS_BYTES)
    a("v_lshlrev_b32 v1, 4, v0\ns_lshl_b32 s48, s31, 18\ns_add_u32 s48, s48, s60")
    for tau in range(8):
        a(f"s_add_u32 s49, s28, {tau}\ns_and_b32 s49, s49, 7\ns_lshl_b32 s49, s49, 12\ns_add_u32 s{52+tau}, s49, s48")
    a(f"v_lshrrev_b32 v2, 2, v13\nv_lshl_add_u32 v2, v12, 4, v2\nv_lshlrev_b32 v2, 4, v2\ns_lshl_b32 s49, s31, 10\ns_add_u32 s49, s49, {L_P}\nv_add_u32 v2, s49, v2")
    a(f"s_lshl_b32 s49, s31, 11\ns_add_u32 s49, s49, {L_DEP - 2048}\nv_lshl_add_u32 v3, v0, 2, s49")
    a("s_lshl_b32 s49, s31, 2\nv_add_u32 v5, s49, v14")
    a("s_lshl_b32 s48, s101, 13\ns_lshl_b32 s49, s30, 10\ns_add_u32 s48, s48, s49\ns_add_u32 s48, s48, s63")
    for t in range(8): a(f"v_mov_b32 v{32+4*t}, 0")
    a("s_add_u32 s50, s31, 1")
    wait_flag(F_TURN, "s50")
    stamp(1)
    for tau in range(8):
        if 4 * tau > P["thrV"]: vm(P["thrV"])
        for q in range(4):
            r = 96 + 16 * tau + 4 * q
            a(f"buffer_load_dwordx4 v[{r}:{r+3}], v1, s[40:43], s{52+tau} offen offset:{q*1024} nt")
    a("s_add_u32 s51, s31, 2")
    set_flag(F_TURN, "s51")
    a("s_setprio 3")
    stamp(2)
    vm(24); transpose(64, 96)
    wait_flag(F_P, 1, addr="v5")
    for q in range(4): a(f"ds_read_b128 v[{16+4*q}:{19+4*q}], v2 offset:{64*q}")
    a("s_cmp_eq_u32 s31, 0\ns_cbranch_scc1 L_Sc")
    wait_flag(F_DEP, "s31")
    for t in range(8): a(f"ds_read_b32 v{32+4*t}, v3 offset:{256*t}")
    a("L_Sc:")
    lgkm(0)
    stamp(3)
    for q in range(4):
        if q in (1, 2): vm(24 - 8 * q); transpose(64 + 32 * q, 96 + 32 * q)
        if q == 3:
            for p in range(4):
                vm(6 - 2 * p); transpose(160, 192, [p])
            stamp(4)
        for t in range(8): mfma(32 + 4 * t, 16 + 4 * q, 64 + 32 * q + 4 * t, 32 + 4 * t)
    a("s_cmp_eq_u32 s31, 3\ns_cbranch_scc1 L_S3")
    for k in range(4): a(f"ds_write2st64_b32 v3, v{32+8*k}, v{36+8*k} offset0:{8+2*k} offset1:{9+2*k}")
    set_flag(F_DEP, "s50")
    a("s_branch L_exit")
    a("L_S3:")
    for k in range(4): a(f"v_cvt_pk_bf16_f32 v{8+k}, v{32+8*k}, v{36+8*k}\nv_min_u32 v{8+k}, -2, v{8+k}")
    a("buffer_store_dwordx4 v[8:11], v1, s[36:39], s48 offen sc1")
    set_flag(F_TURN, 6)
    stamp(5)
    a("s_branch L_exit")

    a("L_T:")
    def hp_addr(g, cs):
        a(f"s_lshr_b32 s51, {g}, 2\ns_add_u32 s51, s51, 14\ns_mul_i32 s51, s51, {RS}\ns_and_b32 s49, {g}, 3\ns_lshl_b32 s49, s49, 10\ns_add_u32 s51, s51, s49")
        a(f"s_add_u32 s51, s51, s52\ns_lshl_b32 s49, {cs}, 7\ns_add_u32 s51, s51, s49")
    def dp_addr(sp):
        a(f"s_mul_i32 s61, s28, 7\ns_add_u32 s61, s61, {sp}")
        a(f"s_add_u32 s55, s52, s53\ns_lshr_b32 s54, s61, 2\ns_mul_i32 s54, s54, {RS}\ns_and_b32 s49, s61, 3\ns_lshl_b32 s49, s49, 10\ns_add_u32 s54, s54, s49")
        a(f"s_add_u32 s54, s54, s55\ns_add_u32 s55, s55, {14*RS}")
    a(f"s_lshl_b32 s53, s31, 8\ns_and_b32 s62, s29, 2\ns_lshl_b32 s52, s62, 12\ns_add_u32 s52, s52, {DP}")
    hp_addr("s28", "s30"); dp_addr("s30")
    a("s_lshl_b32 s50, s101, 13\ns_add_u32 s50, s50, s53\ns_add_u32 s50, s50, s63\ns_lshl_b32 s49, s30, 10\ns_add_u32 s50, s50, s49")
    a("v_lshlrev_b32 v246, 12, v12\nv_lshl_add_u32 v246, v13, 4, v246")
    a("v_mov_b32 v248, -1\nv_mov_b32 v249, -1\nv_mov_b32 v250, -1\nv_mov_b32 v251, -1")
    a("s_waitcnt lgkmcnt(0)")
    epoch()
    srd(36, 26, WS_BYTES)
    a("s_mov_b64 exec, 0xffff\nbuffer_store_dwordx4 v[248:251], v246, s[36:39], s50 offen sc1")
    a("s_cmp_eq_u32 s101, 1\ns_cbranch_scc1 L_Tc1\ns_cmp_lg_u32 s31, 3\ns_cbranch_scc1 L_Tc2")
    a("s_mov_b64 exec, 0x00ff00ff\nbuffer_store_dwordx4 v[248:251], v246, s[36:39], s51 offen sc1\ns_branch L_Tc2")
    a("L_Tc1:\ns_cmp_eq_u32 s30, 7\ns_cbranch_scc1 L_Tc2")
    a("s_mov_b32 exec_lo, -1\nbuffer_store_dwordx4 v[248:251], v246, s[36:39], s54 offen sc1")
    a("L_Tc2:\ns_mov_b64 exec, -1")
    epoch_wait()
    a("s_barrier")

    a(f"v_and_b32 v1, 3, v0\nv_lshlrev_b32 v1, 8, v1\nv_lshl_add_u32 v1, v12, 4, v1\nv_add_u32 v1, {L_Q}, v1")
    a("v_and_b32 v8, 3, v0\nv_lshlrev_b32 v8, 2, v8\nv_lshrrev_b32 v9, 2, v13\nv_add_u32 v8, v8, v9\nv_lshlrev_b32 v8, 8, v8")
    a("s_lshl_b32 s57, s31, 15\nv_add_u32 v8, s57, v8")
    for m in range(4):
        a(f"v_add_u32 v9, {4*m}, v12\nv_xor_b32 v9, v9, v13\nv_lshl_add_u32 v{4+m}, v9, 4, v8")
    wait_flag(F_Q, 1, sl=2)
    stamp(3)
    for m in range(4): a(f"ds_read_b128 v[{16+4*m}:{19+4*m}], v1 offset:{64*m}")
    a("s_add_u32 s48, s31, 1\ns_lshl_b32 s48, s48, 3")
    wait_flag(F_K, "s48", sl=2)
    stamp(4)
    def kread(tau):
        for m in range(4):
            r = 64 + 16 * tau + 4 * m
            a(f"ds_read_b128 v[{r}:{r+3}], v{4+m} offset:{4096*tau}")
    kread(0); kread(1)
    for tau in range(8):
        if tau + 2 < 8: kread(tau + 2)
        lgkm(8 if tau < 6 else 4 if tau == 6 else 0)
        for m in range(4): mfma(32 + 4 * tau, 64 + 16 * tau + 4 * m, 16 + 4 * m, None if m == 0 else 32 + 4 * tau)
    for q in range(1, 4):
        for k in range(8): dpp("v_mov_b32", 32 + k, 32 + 8 * q + k, None, "quad_perm:[0,1,2,3]", hex(1 << q))
    a("s_mov_b32 s50, 0x3db504f3\ns_mov_b32 s59, 0x3fb8aa3b")
    for k in range(0, 8, 2):
        x, y = 32 + k, 33 + k
        a(f"v_cvt_pk_bf16_f32 v{y}, v{x}, v{y}\nv_lshlrev_b32 v{x}, 16, v{y}\nv_and_b32 v{y}, 0xffff0000, v{y}")
        a(f"v_mul_f32 v{x}, s50, v{x}\nv_mul_f32 v{y}, s50, v{y}")
        a(f"v_cvt_pk_bf16_f32 v{y}, v{x}, v{y}\nv_lshlrev_b32 v{x}, 16, v{y}\nv_and_b32 v{y}, 0xffff0000, v{y}")
    a("v_max3_f32 v8, v32, v33, v34\nv_max3_f32 v8, v8, v35, v36\nv_max3_f32 v8, v8, v37, v38\nv_max_f32 v8, v8, v39")
    red_head("v_max_f32", 8)
    a(f"v_and_b32 v5, 3, v0\nv_lshlrev_b32 v5, 4, v5\nv_add_u32 v5, {L_M}, v5\ns_lshl_b32 s48, s31, 2\nv_add_u32 v6, s48, v5")
    vm(0)
    a(f"s_mov_b64 exec, 15\nds_write_b32 v6, v8\ns_mov_b64 exec, 1\nv_mov_b32 v15, 1\nds_add_u32 v14, v15 offset:{F_M}\ns_mov_b64 exec, -1")
    wait_flag(F_M, 4)
    a("ds_read_b128 v[16:19], v5")
    lgkm(0)
    a("v_max3_f32 v8, v16, v17, v18\nv_max_f32 v8, v8, v19")
    for k in range(8): a(f"v_sub_f32 v{40+k}, v{32+k}, v8")
    for k in range(8): a(f"v_mul_f32 v{40+k}, s59, v{40+k}")
    for k in range(8): a(f"v_exp_f32 v{40+k}, v{40+k}")
    a("v_lshlrev_b32 v4, 4, v0")
    for k in range(4): a(f"v_cvt_pk_bf16_f32 v{16+k}, v{40+2*k}, v{41+2*k}")
    a(f"s_lshl_b32 s49, s31, 10\ns_add_u32 s49, s49, {L_P}\nv_add_u32 v7, s49, v4\nds_write_b128 v7, v[16:19]")
    a("v_add_u32 v7, s48, v14")
    set_flag(F_P, 1, addr="v7")
    stamp(5)
    a("v_add_f32 v9, v40, v41")
    for k in range(2, 8): a(f"v_add_f32 v9, v9, v{40+k}")
    red_head("v_add_f32", 9)
    a(f"s_mov_b64 exec, 15\nds_write_b32 v6, v9 offset:{L_L-L_M}\ns_mov_b64 exec, 1\nv_mov_b32 v15, 1\nds_add_rtn_u32 v15, v14, v15 offset:{F_L}\ns_mov_b64 exec, -1")
    a("s_waitcnt lgkmcnt(0)\nv_readfirstlane_b32 s33, v15\ns_cmp_lg_u32 s33, 3\ns_cbranch_scc1 L_Tst")
    a(f"ds_read_b128 v[16:19], v5 offset:{L_L-L_M}")
    a(f"s_lshl_b32 s49, s101, 3\ns_add_u32 s49, s49, s30\ns_lshl_b32 s49, s49, 6\ns_add_u32 s49, s49, s63\ns_add_u32 s49, s49, {ST}")
    a("v_mov_b32 v20, v8\nv_mov_b32 v21, s96\nv_mov_b32 v23, s96\ns_waitcnt lgkmcnt(0)")
    a("v_add_f32 v16, v16, v17\nv_add_f32 v18, v18, v19\nv_add_f32 v22, v16, v18")
    a("s_mov_b64 exec, 15\nbuffer_store_dwordx4 v[20:23], v4, s[36:39], s49 offen sc1\ns_mov_b64 exec, -1")
    a("L_Tst:")

    a("v_bfe_u32 v8, v0, 3, 1\nv_and_b32 v9, 1, v12\nv_lshl_add_u32 v8, v9, 1, v8")
    a("v_lshlrev_b32 v9, 10, v12\nv_bfe_u32 v10, v0, 2, 2\nv_lshl_add_u32 v9, v10, 7, v9\nv_and_b32 v10, 3, v0\nv_lshl_add_u32 v9, v10, 3, v9\nv_add_u32 v9, s57, v9")
    for t in range(4): a(f"v_xor_b32 v10, {t}, v8\nv_lshl_add_u32 v{4+t}, v10, 5, v9")
    a("s_add_u32 s56, s57, 16384\nv_lshl_add_u32 v9, v13, 8, s56")
    for k in range(4):
        a(f"v_add_u32 v10, {4*k}, v12\nv_xor_b32 v10, v10, v13\nv_lshl_add_u32 v{60+k}, v10, 4, v9\nv_lshlrev_b32 v10, 4, v10\nv_lshl_add_u32 v{252+k}, v12, 10, v10")
    a("v_bfe_u32 v8, v0, 4, 1\nv_lshlrev_b32 v8, 1, v8\nv_and_b32 v9, 7, v0\nv_xor_b32 v8, v8, v9\nv_lshrrev_b32 v9, 3, v0")
    wait_flag(F_R, 1, sl=2)
    a("s_sub_u32 s97, s33, 1\ns_cmp_eq_u32 s97, 15\ns_cbranch_scc1 L_exit\ns_cmp_lt_u32 s97, 7\ns_cbranch_scc1 L_F")

    def wreads(ks):
        for t in range(4):
            for hh in range(2):
                r = 64 + 16 * ks + 4 * t + 2 * hh
                a(f"ds_read_b64_tr_b16 v[{r}:{r+1}], v{4+t} offset:{4096*ks + 512*hh}")
    def gather_dma(soffs):
        for k in range(4):
            a(f"s_add_u32 m0, s56, {1024*k}\nbuffer_load_dwordx4 v{252+k}, s[36:39], {soffs[k]} offen sc1 lds")
    def gather_finish(soff, sleep, head, defer=None):
        p, c, d = L("gp"), L("gc"), L("gd")
        vm(0)
        for k in range(4): a(f"ds_read_b128 v[{16+4*k}:{19+4*k}], v{60+k}")
        a(f"s_waitcnt lgkmcnt(0)\ns_branch {c}\n{p}:")
        for ks in range(4):
            a(f"buffer_load_dwordx4 v[{16+4*ks}:{19+4*ks}], v1, s[36:39], {soff} offen offset:{64*ks} sc1")
        a("s_mov_b64 exec, -1")
        vm(0)
        a(f"{c}:")
        for k in range(4):
            r = 16 + 4 * k
            head(k)
            a(f"v_max_u32 v15, v{r}, v{r+1}" if k == 0 else f"v_max3_u32 v15, v15, v{r}, v{r+1}")
            a(f"v_max3_u32 v15, v15, v{r+2}, v{r+3}")
        a("v_cmp_eq_u32 vcc, -1, v15")
        head(4)
        a(f"s_cbranch_vccz {d}")
        backoff(sleep)
        if defer: a(f"s_andn2_b64 exec, vcc, {defer}\ns_cbranch_scc1 {p}")
        a(f"s_mov_b64 exec, vcc\ns_branch {p}\n{d}:")
    def gm(n):
        t, ks = n >> 2, n & 3
        mfma(32 + 4 * t, 16 + 4 * ks, 64 + 16 * ks + 4 * t, None if ks == 0 else 32 + 4 * t)

    a(f"s_add_u32 s30, s97, {P['rW']}\ns_and_b32 s30, s30, 7")
    hp_addr("s100", "s30")
    srd(40, 12, 0x400000)
    a("v_lshlrev_b32 v2, 10, v9\nv_lshl_add_u32 v2, v8, 4, v2\nv_xor_b32 v3, 64, v2")
    a(f"s_lshl_b32 s63, s100, 1\ns_lshr_b32 s49, s29, 1\ns_add_u32 s63, s63, s49\ns_mul_i32 s63, s63, {RS}\ns_add_u32 s60, s63, s53\ns_add_u32 s58, s63, {ST}")
    a("s_add_u32 s61, s60, 4096\ns_add_u32 s54, s60, 8192\ns_add_u32 s55, s60, 12288")
    a("s_lshl_b32 s48, s100, 19\ns_lshl_b32 s49, s31, 17\ns_add_u32 s48, s48, s49\ns_lshl_b32 s49, s30, 7\ns_add_u32 s48, s48, s49")
    a("s_mov_b32 s44, s4\ns_mov_b32 s45, s5\ns_cmp_eq_u32 s100, 0\ns_cselect_b32 s46, 4096, 0\ns_mov_b32 s47, 0x20000")
    a("s_lshl_b32 s50, s62, 10\ns_add_u32 s50, s50, s49")
    a("v_lshrrev_b32 v8, 5, v0\nv_bfe_u32 v9, v0, 1, 4\nv_lshlrev_b32 v10, 3, v9\nv_lshl_add_u32 v11, v8, 10, v10\nv_lshl_add_u32 v59, v8, 12, v10")
    a("buffer_load_dwordx2 v[56:57], v11, s[44:47], s50 offen")
    a(f"v_and_b32 v10, 1, v0\nv_lshl_add_u32 v58, v8, 1, v10\nv_mul_u32_u24 v58, 320, v58\nv_lshl_add_u32 v58, v9, 4, v58\nv_add_u32 v58, {L_RED}, v58")
    a(f"v_mul_u32_u24 v247, 320, v12\nv_lshl_add_u32 v247, v13, 2, v247\ns_mul_i32 s49, s31, 1280\ns_add_u32 s49, s49, {L_RED}\nv_add_u32 v247, s49, v247")
    a("v_lshrrev_b32 v11, 2, v0\nv_lshlrev_b32 v11, 6, v11\ns_lshl_b32 s49, s31, 4\ns_add_u32 s58, s58, s49")
    a("v_lshlrev_b32 v1, 10, v13\nv_lshl_add_u32 v1, v12, 4, v1")
    stl = "buffer_load_dwordx4 v[32:35], v11, s[36:39], s58 offen"
    wait_flag(F_TURN, 5)
    a(stl + first)
    cap = P["capW"]
    for n in range(16):
        if n >= cap and n % 2 == 0: vm(cap - 2)
        a(f"s_add_u32 m0, s57, {1024*n}\ns_add_u32 s49, s48, {8192*n}\nbuffer_load_dwordx4 v{2+(n&1)}, s[40:43], s49 offen nt lds")
    stamp(1)
    vm(16)
    a("L_Tsp:")
    a("v_xor_b32 v33, s96, v33\nv_xor_b32 v35, s96, v35\nv_or_b32 v15, v33, v35\nv_cmp_ne_u32 vcc, 0, v15\ns_cbranch_vccz L_Tsq")
    backoff(4)
    a(stl + " sc1")
    vm(0)
    a("s_branch L_Tsp\nL_Tsq:")
    a("v_mov_b32 v8, v32")
    dpp("v_max_f32", 8, 8, 8, "row_ror:4"); dpp("v_max_f32", 8, 8, 8, "row_ror:8"); x16("v_max_f32", 8, 10)
    a("v_sub_f32 v32, v32, v8\nv_mul_f32 v32, s59, v32\nv_exp_f32 v32, v32\nv_mul_f32 v9, v32, v34")
    dpp("v_add_f32", 9, 9, 9, "row_ror:4"); dpp("v_add_f32", 9, 9, 9, "row_ror:8"); x16("v_add_f32", 9, 10)
    a("v_rcp_f32 v9, v9\nv_mul_f32 v32, v32, v9")
    for r in range(4): dpp("v_mov_b32", 48 + r, 32, None, f"row_newbcast:{4*r}")
    a("v_lshlrev_b32 v52, 16, v56\nv_and_b32 v53, 0xffff0000, v56\nv_lshlrev_b32 v54, 16, v57\nv_and_b32 v55, 0xffff0000, v57")
    stamp(7)
    for ks in range(4):
        vm(4 * (3 - ks))
        if ks == 3: gather_dma(["s60", "s61", "s54", "s55"])
        if ks: a("s_waitcnt lgkmcnt(0)")
        wreads(ks)
    stamp(6)
    gather_finish("s60", 0, gm)
    stamp(8)
    def scale(t, r): a(f"v_mul_f32 v{8+t}, v{32+4*t}, v48" if r == 0 else f"v_fmac_f32 v{8+t}, v{32+4*t+r}, v{48+r}")
    for n in range(5, 16):
        gm(n)
        if n >= 12: scale(0, n & 3); scale(1, n & 3)
    a("ds_write2_b32 v247, v8, v9 offset0:0 offset1:16")
    for t in (2, 3):
        for r in range(4): scale(t, r)
    a("ds_write2_b32 v247, v10, v11 offset0:32 offset1:48\ns_waitcnt lgkmcnt(0)\ns_barrier")
    a("s_cmp_lg_u32 s31, 3\ns_cbranch_scc1 L_exit")
    for k in range(4): a(f"ds_read_b128 v[{32+4*k}:{35+4*k}], v58 offset:{1280*k}")
    lgkm(2)
    a("v_pk_add_f32 v[32:33], v[32:33], v[36:37]\nv_pk_add_f32 v[34:35], v[34:35], v[38:39]")
    lgkm(0)
    a("v_pk_add_f32 v[40:41], v[40:41], v[44:45]\nv_pk_add_f32 v[42:43], v[42:43], v[46:47]")
    a("v_pk_add_f32 v[32:33], v[32:33], v[40:41]\nv_pk_add_f32 v[34:35], v[34:35], v[42:43]")
    for v in range(4): dpp("v_add_f32", 32 + v, 32 + v, 32 + v, "quad_perm:[1,0,3,2]")
    a("v_pk_add_f32 v[32:33], v[32:33], v[52:53]\nv_pk_add_f32 v[34:35], v[34:35], v[54:55]")
    a("v_cvt_pk_bf16_f32 v36, v32, v33\nv_cvt_pk_bf16_f32 v37, v34, v35\nv_min_u32 v36, -2, v36\nv_min_u32 v37, -2, v37")
    dpp("v_mov_b32", 38, 36, None, "quad_perm:[2,3,2,3]"); dpp("v_mov_b32", 39, 37, None, "quad_perm:[2,3,2,3]")
    a("s_mov_b32 exec_lo, 0x11111111\ns_mov_b32 exec_hi, 0x11111111")
    a("buffer_store_dwordx4 v[36:39], v59, s[36:39], s51 offen sc1")
    stamp(9)
    a("s_branch L_exit")

    a("L_F:")
    a(f"s_add_u32 s30, s97, s28\ns_add_u32 s30, s30, {P['rF']}\ns_mul_i32 s49, s30, 37\ns_lshr_b32 s49, s49, 8\ns_mul_i32 s49, s49, 7\ns_sub_u32 s30, s30, s49")
    dp_addr("s30")
    srd(40, 20, 1792 * 1024); srd(44, 22, 4096)
    a("s_lshl_b32 s49, s61, 15\ns_add_u32 s49, s49, s53\ns_add_u32 s48, s49, 16384")
    for jj in range(8):
        a(f"buffer_load_dwordx4 v[{192+4*jj}:{195+4*jj}], v246, s[40:43], s{48 if jj & 1 else 49} offen offset:{(jj>>1)*1024} nt")
    a("s_lshl_b32 s6, 0x01010101, s100\ns_mov_b32 s7, s6")
    a("v_mul_u32_u24 v10, 3584, v9\nv_and_b32 v11, 3, v8\nv_lshl_add_u32 v10, v11, 4, v10")
    a(f"s_mul_i32 s49, s31, {128*3584}\ns_lshl_b32 s50, s61, 6\ns_add_u32 s49, s49, s50\nv_add_u32 v10, s49, v10\nv_mov_b32 v11, 0")
    a("v_lshl_add_u64 v[224:225], v[10:11], 0, s[16:17]\nv_lshl_add_u64 v[226:227], v[10:11], 0, s[18:19]")
    a("s_mov_b32 exec_lo, 0xf0f0f0f0\ns_mov_b32 exec_hi, 0xf0f0f0f0")
    a("v_lshl_add_u64 v[224:225], v[10:11], 0, s[18:19]\nv_lshl_add_u64 v[226:227], v[10:11], 0, s[16:17]\ns_mov_b64 exec, -1")
    a(f"s_mov_b32 s98, {8*3584}\ns_mov_b32 s99, 0\nv_lshl_add_u64 v[226:227], v[226:227], 0, s[98:99]\ns_mov_b32 s98, {16*3584}")
    a(f"s_mul_i32 s50, s31, 320\ns_add_u32 s50, s50, {L_CS}\nv_lshl_add_u32 v247, v13, 4, s50")
    for k in range(4): a(f"v_mov_b32 v{240+k}, 0x3f803f80")
    a(f"v_lshrrev_b32 v229, 5, v0\nv_mul_u32_u24 v229, {2*RS}, v229\nv_bfe_u32 v1, v0, 2, 3\nv_lshl_add_u32 v229, v1, 6, v229")
    a(f"s_lshl_b32 s58, s31, 2\ns_lshr_b32 s50, s29, 1\ns_add_u32 s58, s58, s50\ns_mul_i32 s58, s58, {RS}\ns_add_u32 s58, s58, {ST + 4}")
    a(f"v_bfe_u32 v1, v0, 2, 1\nv_mul_u32_u24 v1, {RS}, v1\nv_and_b32 v3, 3, v0\nv_lshl_add_u32 v1, v3, 10, v1\nv_bfe_u32 v3, v0, 3, 1\nv_lshl_add_u32 v1, v3, 12, v1\nv_lshl_add_u32 v1, v12, 4, v1")
    a(f"s_add_u32 s60, s55, {RS}\ns_add_u32 s63, s55, 4096\ns_add_u32 s51, s55, {RS + 4096}")
    a(f"s_mul_i32 s50, s31, 1280\ns_add_u32 s50, s50, {L_RED}")
    a("v_lshrrev_b32 v2, 1, v12\nv_mul_u32_u24 v2, 320, v2\nv_lshl_add_u32 v2, v13, 4, v2\nv_and_b32 v3, 1, v12\nv_lshl_add_u32 v2, v3, 3, v2\nv_add_u32 v2, s50, v2")
    a("v_and_b32 v8, 3, v0\nv_lshl_add_u32 v8, v12, 2, v8\nv_lshlrev_b32 v8, 4, v8\nv_bfe_u32 v9, v0, 3, 1\nv_bfe_u32 v10, v0, 2, 1")
    a(f"v_mul_u32_u24 v230, 640, v9\nv_add_u32 v230, v230, v8\nv_add_u32 v230, {L_CS}, v230")
    a(f"v_mul_u32_u24 v231, 2560, v9\nv_mul_u32_u24 v3, 320, v10\nv_add3_u32 v231, v231, v3, v8\nv_add_u32 v231, {L_RED}, v231")
    a(f"v_lshlrev_b32 v3, 5, v10\nv_add_u32 v3, {L_STAT}, v3")
    a(f"s_lshl_b32 s50, s31, 2\ns_add_u32 s50, s50, {L_STAT}\nv_lshl_add_u32 v59, v12, 4, s50")
    a("s_lshl_b32 s50, s97, 5\ns_lshl_b32 s100, s28, 7\ns_add_u32 s100, s100, s50")
    a("s_lshr_b32 s50, s31, 1\ns_add_u32 s101, s62, s50\ns_lshl_b32 s101, s101, 10\ns_add_u32 s101, s101, s100")
    a(f"s_lshl_b32 s50, s50, 12\ns_add_u32 s100, s100, s50\ns_add_u32 s100, s100, s52\ns_add_u32 s10, s100, {8*RS}")
    a(f"v_lshrrev_b32 v244, 3, v0\nv_mul_u32_u24 v244, {RS}, v244\nv_bfe_u32 v8, v0, 1, 2\nv_lshl_add_u32 v244, v8, 10, v244\nv_and_b32 v8, 1, v0\nv_lshl_add_u32 v244, v8, 4, v244")
    a("v_and_b32 v245, 7, v0\nv_lshlrev_b32 v245, 1, v245\nv_lshrrev_b32 v8, 5, v0\nv_lshl_add_u32 v245, v8, 4, v245")
    a("v_lshrrev_b32 v8, 1, v13\nv_and_b32 v9, 1, v0\nv_lshlrev_b32 v9, 4, v9\ns_mov_b32 s50, 0x3f80\nv_lshlrev_b32 v9, v9, s50")
    for k in range(4): a(f"v_cmp_eq_u32 vcc, {k}, v8\nv_cndmask_b32 v{248+k}, 0, v9, vcc")
    vm(0); transpose(128, 192)
    stamp(7)
    certl = "buffer_load_dword v58, v229, s[36:39], s58 offen"
    wait_flag(F_TURN, 5)
    a(certl + first)
    for n in range(16):
        if n == P["nF6"]:
            wait_flag(F_TURN, 6)
            if not dbg: stamp(14)
        r = 224 + 2 * (n & 1)
        a(f"s_add_u32 m0, s57, {1024*n}\nglobal_load_lds_dwordx4 v[{r}:{r+1}], off nt")
        if n < 14: a(f"v_lshl_add_u64 v[{r}:{r+1}], v[{r}:{r+1}], 0, s[98:99]")
    stamp(1)
    vm(16)
    a("L_Fcp:\nv_cmp_ne_u32 vcc, s96, v58\ns_cbranch_vccz L_Fcq")
    backoff(4)
    a(certl + " sc1")
    vm(0)
    a("s_branch L_Fcp\nL_Fcq:")
    def csum(ks):
        for t in range(4): mfma(32 + 4 * t, 240, 64 + 16 * ks + 4 * t, 32 + 4 * t if ks else None)
    for ks in range(4):
        vm(4 * (3 - ks))
        if ks == 3:
            a("s_barrier"); gather_dma(["s55", "s60", "s63", "s51"])
        a("s_waitcnt lgkmcnt(0)")
        wreads(ks)
        if ks: csum(ks - 1)
    a("s_waitcnt lgkmcnt(0)")
    csum(3)
    stamp(2)
    for t in range(4): a(f"v_mov_b32 v{8+t}, v{32+4*t}")
    a("s_mov_b64 exec, 0xffff\nds_write_b128 v247, v[8:11]\ns_mov_b64 exec, -1")
    stamp(6)
    a("s_waitcnt lgkmcnt(0)\ns_barrier")
    a("ds_read_b128 v[224:227], v230\nds_read_b128 v[8:11], v230 offset:320\ns_waitcnt lgkmcnt(0)")
    a("v_pk_add_f32 v[224:225], v[224:225], v[8:9]\nv_pk_add_f32 v[226:227], v[226:227], v[10:11]")
    def sm(n):
        ks = n & 3
        if n < 4: mfma(232, 16 + 4 * ks, 16 + 4 * ks, None if ks == 0 else 232)
        else: mfma(236, 16 + 4 * ks, 240, None if ks == 0 else 236)
    gather_finish("s55", 1, sm, "s[6:7]")
    stamp(10)
    for n in range(5, 8): sm(n)
    def rsum(t): a(f"v_add_f32 v{8+t}, v{32+4*t}, v{33+4*t}\nv_add_f32 v{34+4*t}, v{34+4*t}, v{35+4*t}\nv_add_f32 v{8+t}, v{8+t}, v{34+4*t}")
    for n in range(16):
        gm(n)
        if n == 3: a("v_add_f32 v232, v232, v233\nv_add_f32 v234, v234, v235")
        if n == 4: a("v_add_f32 v232, v232, v234")
        if n == 6: dpp("v_add_f32", 232, 232, 232, "quad_perm:[1,0,3,2]"); a("v_add_f32 v236, v236, v237")
        if n == 7: dpp("v_add_f32", 232, 232, 232, "quad_perm:[2,3,0,1]"); a("v_add_f32 v238, v238, v239")
        if n == 8: dpp("v_add_f32", 232, 232, 232, "row_half_mirror"); a("v_add_f32 v236, v236, v238")
        if n == 10: a("v_permlane16_swap_b32 v232, v236\nv_add_f32 v232, v232, v236")
        if n == 12: rsum(0)
        if n == 14: rsum(1)
    a("s_mov_b32 exec_lo, 0x00010001\ns_mov_b32 exec_hi, 0x01000100\nds_write_b32 v59, v232\ns_mov_b64 exec, -1")
    rsum(2)
    a("v_permlane16_swap_b32 v8, v10\nv_add_f32 v8, v8, v10")
    rsum(3)
    a("v_permlane16_swap_b32 v9, v11\nv_add_f32 v9, v9, v11")
    a("ds_write_b64 v2, v[8:9]\ns_waitcnt lgkmcnt(0)\ns_barrier")
    stamp(11)
    a("ds_read_b128 v[48:51], v3\nds_read_b128 v[52:55], v3 offset:16")
    for k in range(2): a(f"ds_read_b128 v[{32+4*k}:{35+4*k}], v231 offset:{1280*k}")
    lgkm(2)
    a("v_pk_add_f32 v[48:49], v[48:49], v[50:51]\nv_pk_add_f32 v[52:53], v[52:53], v[54:55]")
    a("v_add_f32 v48, v48, v49\nv_add_f32 v52, v52, v53\nv_mul_f32 v52, 0x3b000000, v52\nv_mul_f32 v48, 0x3b000000, v48")
    a("v_fma_f32 v48, -v52, v52, v48\nv_max_f32 v48, 0, v48\nv_add_f32 v48, 0x3727c5ac, v48\nv_rsq_f32 v48, v48")
    lgkm(0)
    a("v_pk_add_f32 v[32:33], v[32:33], v[36:37]\nv_pk_add_f32 v[34:35], v[34:35], v[38:39]")
    for v in range(4): a(f"v_fma_f32 v{32+v}, -v52, v{224+v}, v{32+v}")
    a("v_mul_f32 v49, 0xbfb8aa3b, v48\nv_mul_f32 v48, v48, v48")
    for v in range(4): dpp("v_add_f32", 32 + v, 32 + v, 32 + v, "row_ror:8")
    a("v_mul_f32 v36, v49, v32\nv_mul_f32 v37, v49, v33\nv_exp_f32 v36, v36\nv_exp_f32 v37, v37")
    a("v_mul_f32 v32, v32, v48\nv_mul_f32 v33, v33, v48\nv_add_f32 v36, 1.0, v36\nv_add_f32 v37, 1.0, v37")
    a("v_rcp_f32 v36, v36\nv_rcp_f32 v37, v37\nv_mul_f32 v32, v32, v34\nv_mul_f32 v33, v33, v35")
    a("v_mul_f32 v32, v32, v36\nv_mul_f32 v33, v33, v37\nv_cvt_pk_bf16_f32 v20, v32, v33")
    for p in range(4): dpp("v_mov_b32", 16 + p, 20, None, f"quad_perm:[{p},{p},{p},{p}]")
    for t in range(8): mfma(64 + 4 * t, 16, 128 + 4 * t, None)
    for k in range(4): a(f"v_cvt_pk_bf16_f32 v{8+k}, v{64+8*k}, v{68+8*k}\nv_min_u32 v{8+k}, -2, v{8+k}")
    a("s_mov_b32 exec_hi, 0\nbuffer_store_dwordx4 v[8:11], v246, s[36:39], s54 offen sc1\ns_mov_b64 exec, -1")
    stamp(12)

    a("s_cmp_ge_u32 s97, 4\ns_cbranch_scc1 L_exit\ns_bitcmp1_b32 s31, 0\ns_cbranch_scc1 L_Eu")
    vm(0)
    a("L_Gp:\nbuffer_load_dwordx4 v[16:19], v244, s[36:39], s100 offen sc1\nbuffer_load_dwordx4 v[20:23], v244, s[36:39], s10 offen sc1\ns_mov_b64 exec, -1")
    vm(0)
    mfma(24, 16, 248, None); mfma(24, 20, 248, 24)
    a("v_max_u32 v15, v16, v17\nv_max3_u32 v15, v15, v18, v19\nv_max3_u32 v15, v15, v20, v21\nv_max3_u32 v15, v15, v22, v23")
    a("v_cmp_eq_u32 vcc, -1, v15\ns_cbranch_vccz L_Gd")
    backoff(0)
    a("s_mov_b64 exec, vcc\ns_branch L_Gp\nL_Gd:")
    stamp(13)
    a("v_pk_add_f32 v[24:25], v[24:25], v[26:27]\nv_permlane32_swap_b32 v24, v25\nv_add_f32 v24, v24, v25")
    x16("v_add_f32", 24, 25)
    a("v_cvt_pk_bf16_f32 v24, v24, v24")
    a("s_mov_b32 exec_lo, 0xff\ns_mov_b32 exec_hi, 0xff\nbuffer_store_short v24, v245, s[44:47], s101 offen\ns_branch L_exit")
    a("L_Eu:\ns_xor_b32 s48, s31, 1\ns_or_b32 s48, s48, s28\ns_or_b32 s48, s48, s62\ns_or_b32 s48, s48, s97\ns_cbranch_scc1 L_exit")
    a(f"s_mov_b64 exec, 1\nv_mov_b32 v25, s96\ns_mov_b32 s48, {hex(EP)}\nbuffer_store_dword v25, v245, s[36:39], s48 offen sc1")

    a("L_exit:")
    if "e2" in P:
        a("s_cmp_lt_u32 s3, 4\ns_cbranch_scc1 L_padd\ns_add_u32 s68, s68, 3000")
        a("L_pad:\ns_memrealtime s[66:67]\ns_waitcnt lgkmcnt(0)\ns_sub_u32 s66, s66, s64\ns_cmp_lt_u32 s66, s68\ns_cbranch_scc1 L_pad\nL_padd:")
    if dbg:
        stamp(15)
        a("s_mov_b64 exec, -1\ns_waitcnt lgkmcnt(0)\ns_add_u32 s92, s97, 1")
        for k in range(16): a(f"v_mov_b32 v{16+k}, s{64+2*k}")
        a(f"s_and_b32 s48, s3, 3\ns_lshl_b32 s48, s48, 6\ns_add_u32 s49, s48, {L_FLAG + 256}\nv_mov_b32 v2, s49\nv_mov_b32 v1, 0\ns_mov_b64 exec, 1")
        a("s_cmp_ge_u32 s3, 4\ns_cbranch_scc1 L_dT")
        for k in range(4): a(f"ds_write_b128 v2, v[{16+4*k}:{19+4*k}] offset:{16*k}")
        a("s_waitcnt lgkmcnt(0)\ns_endpgm\nL_dT:\ns_barrier")
        for k in range(4): a(f"ds_read_b128 v[{32+4*k}:{35+4*k}], v2 offset:{16*k}")
        a(f"s_lshl_b32 s49, s2, 9\ns_add_u32 s48, s48, s49\ns_add_u32 s48, s48, {STAMP}\ns_add_u32 s26, s26, s48\ns_addc_u32 s27, s27, 0")
        a("s_sleep 100\ns_sleep 100\ns_waitcnt lgkmcnt(0)")
        for k in range(4): a(f"global_store_dwordx4 v1, v[{32+4*k}:{35+4*k}], s[26:27] offset:{16*k}")
        for k in range(4): a(f"global_store_dwordx4 v1, v[{16+4*k}:{19+4*k}], s[26:27] offset:{256+16*k}")
    a("L_end:\ns_endpgm\nL_fin:")

    head = open("sequential_preLN__sliding_block_cached__swiglu_ffn__decode.s.ref").read().split("; Override launch")[0]
    return head + f"; @launch grid=(256,1,1) block=(512,1,1) lds={LDS_BYTES}\n" + HEADER.replace("RS bytes", f"{hex(RS)} bytes") + f""".amdgcn_target "amdgcn-amd-amdhsa--gfx950"
.text
.globl {KNAME}
.p2align 8
.type {KNAME},@function
""" + a.padded() + f""".section .rodata,"a"
.p2align 6
.amdhsa_kernel {KNAME}
  .amdhsa_next_free_vgpr 256
  .amdhsa_next_free_sgpr 102
  .amdhsa_accum_offset 256
  .amdhsa_group_segment_fixed_size 0
  .amdhsa_kernarg_size 96
  .amdhsa_user_sgpr_count 2
  .amdhsa_user_sgpr_kernarg_segment_ptr 1
  .amdhsa_system_sgpr_workgroup_id_x 1
  .amdhsa_float_denorm_mode_32 3
.end_amdhsa_kernel
"""

if __name__ == "__main__":
    kw = {}
    for x in sys.argv[2:]:
        k, v = x.split("=", 1)
        kw[k] = int(v, 0)
    open(sys.argv[1], "w").write(gen(**kw))
```

```python
import sys
from asmlib import Asm
KNAME = "sequential_preLN__sliding_block_cached__swiglu_ffn__decode_kernel"

OP, QP, ST, EP, TK, DP = 0x0000, 0x4000, 0x8000, 0x9000, 0x9080, 0xC000
STAMP = 0x10000000
L_Q, L_P, L_DEP, L_RED, L_CS, L_STAT, L_M, L_L, L_FLAG = 131072, 132096, 136192, 142336, 147456, 148736, 148864, 148928, 148992
LDS_BYTES = L_FLAG + 512
F_TURN, F_K, F_Q, F_DEP, F_R, F_M, F_L, F_X, F_P = 0, 4, 8, 12, 16, 20, 24, 28, 32

DEF = dict(dbg=0, thrK=20, thrV=20, burst=7, hl=1, loc3=1, dl=1, dpf=3, dbar=0, gpf=2, aft=1, sl2=1, l1=1, gx=4, hc=1, pg=0, sl1=0, bi=0, wf=0, q_gate=18, capW=8, nF6=3, kW=4, kG=1, rW=5, rF=5, RS=0x44000,
           pl=1, budget=0x80000)

HEADER = """;
;
;
; d_ws holds 16 regions of RS bytes, region 2g + pair: o partials +0x0000, q partials +0x4000, softmax records +0x8000,
"""

def gen(**kw):
    P = dict(DEF); P.update(kw)
    dbg = P["dbg"]; RS = P["RS"]; HL = 16 * RS; WS_BYTES = 16 * RS + 16 * 8192
    a = Asm()
    uid = [0]
    def L(s):
        uid[0] += 1
        return f"L_{s}_{uid[0]}"
    def note(t): a("; " + t)
    def stamp(k):
        if dbg: a(f"s_memrealtime s[{64+2*k}:{65+2*k}]")
        elif "e2" in P:
            if k == 0: a("s_memrealtime s[64:65]\ns_mov_b32 s68, 0")
            if k == P["e1"] and k: a("s_memrealtime s[70:71]\ns_waitcnt lgkmcnt(0)")
            if k == P["e2"]: a(f"s_memrealtime s[66:67]\ns_waitcnt lgkmcnt(0)\ns_sub_u32 s68, s66, s{70 if P['e1'] else 64}\ns_lshl_b32 s68, s68, 2\ns_min_u32 s68, s68, 20000")
    def lgkm(n=0): a(f"s_waitcnt lgkmcnt({0 if dbg else n})")
    def vm(n): a(f"s_waitcnt vmcnt({n})")
    def srd(d, p, nbytes):
        a(f"s_mov_b32 s{d}, s{p}\ns_mov_b32 s{d+1}, s{p+1}\ns_mov_b32 s{d+2}, {hex(nbytes)}\ns_mov_b32 s{d+3}, 0x20000")
    def backoff(n):
        if n: a(f"s_sleep {n}")
        a("s_sub_u32 s32, s32, 1\ns_cbranch_scc1 L_exit")
    def wait_flag(off, val, addr="v14", sl=1):
        l, d = L("wf"), L("wfd")
        a(f"{l}:\nds_read_b32 v15, {addr} offset:{off}")
        a("s_waitcnt lgkmcnt(0)\nv_readfirstlane_b32 s33, v15")
        a(f"s_cmp_ge_u32 s33, {val}\ns_cbranch_scc1 {d}")
        backoff(sl)
        a(f"s_branch {l}\n{d}:")
    def set_flag(off, val, addr="v14"):
        a(f"v_mov_b32 v15, {val}\nds_write_b32 {addr}, v15 offset:{off}")
    def transpose(dst, src, ps=range(4)):
        for p in ps:
            for d in range(4):
                for e in range(2):
                    a(f"v_perm_b32 v{dst+4*(2*d+e)+p}, v{src+4*(2*p+1)+d}, v{src+8*p+d}, s{34+e}")
    def mfma(d, A, B, c):
        cc = "0" if c is None else f"v[{c}:{c+3}]"
        a(f"v_mfma_f32_16x16x32_bf16 v[{d}:{d+3}], v[{A}:{A+3}], v[{B}:{B+3}], {cc}")
    def dpp(op, d, s0, s1, ctl, bank="0xf"):
        a(f"{op}_dpp v{d}, v{s0}" + (f", v{s1}" if s1 is not None else "") + f" {ctl} row_mask:0xf bank_mask:{bank}")
    def x16(op, v, t): a(f"v_mov_b32 v{t}, v{v}\nv_permlane16_swap_b32 v{v}, v{t}\n{op} v{v}, v{v}, v{t}")
    def x32(op, v, t): a(f"v_mov_b32 v{t}, v{v}\nv_permlane32_swap_b32 v{v}, v{t}\n{op} v{v}, v{v}, v{t}")
    def rbf(v): a(f"v_cvt_pk_bf16_f32 v{v}, v{v}, v{v}\nv_and_b32 v{v}, 0xffff0000, v{v}")
    def red_head(op, v):
        dpp(op, v, v, v, "row_ror:4"); dpp(op, v, v, v, "row_ror:8"); x16(op, v, 10); x32(op, v, 10)
    def red_batch(v):
        dpp("v_add_f32", v, v, v, "quad_perm:[1,0,3,2]"); dpp("v_add_f32", v, v, v, "quad_perm:[2,3,0,1]")
        x16("v_add_f32", v, 9); x32("v_add_f32", v, 9)
    def epoch(): a(f"s_load_dword s96, s[26:27], {hex(EP)}")
    def epoch_wait(): a("s_waitcnt lgkmcnt(0)\ns_add_u32 s96, s96, 0x01010101")
    first = "" if P["pl"] else " sc1"

    a(f"{KNAME}:")
    stamp(0)
    a("s_load_dwordx16 s[4:19], s[0:1], 0\ns_load_dwordx8 s[20:27], s[0:1], 64")
    a("s_cmp_ge_u32 s2, 256\ns_cbranch_scc1 L_end")
    a("v_readfirstlane_b32 s3, v0\nv_and_b32 v0, 63, v0\nv_lshrrev_b32 v12, 4, v0\nv_and_b32 v13, 15, v0")
    a("s_and_b32 s28, s2, 7\ns_lshr_b32 s30, s2, 5\ns_and_b32 s60, s2, 31\ns_lshl_b32 s60, s60, 7\ns_add_u32 s60, s60, s30\ns_add_u32 s60, s60, 96\ns_lshl_b32 s60, s60, 15")
    a("s_lshr_b32 s3, s3, 6\ns_cbranch_scc1 L_rest")
    def common():
        if dbg:
            for k in range(66, 98, 2): a(f"s_mov_b64 s[{k}:{k+1}], 0")
        a(f"s_bfe_u32 s29, s2, 0x20003\ns_mov_b32 s32, {hex(P['budget'])}\ns_mov_b32 s34, 0x05040100\ns_mov_b32 s35, 0x07060302\nv_mov_b32 v14, {L_FLAG}")
        a(f"s_lshl_b32 s63, s28, 1\ns_lshr_b32 s61, s29, 1\ns_add_u32 s63, s63, s61\ns_mul_i32 s63, s63, {RS}\ns_and_b32 s101, s29, 1")

    a("v_lshlrev_b32 v1, 2, v12\nv_xor_b32 v1, v1, v13\nv_lshlrev_b32 v1, 4, v1\nv_lshl_add_u32 v4, v12, 8, v1")
    for ii in range(1, 4): a(f"v_xor_b32 v{4+ii}, {16*ii}, v4")
    a("s_mov_b32 s48, 0\ns_mov_b32 s42, 0x8000000\ns_mov_b32 s43, 0x20000\ns_waitcnt lgkmcnt(0)\ns_mov_b64 s[40:41], s[6:7]")
    def ktile(head=False):
        a("s_add_u32 s49, s48, s28\ns_and_b32 s49, s49, 7\ns_lshl_b32 s49, s49, 12")
        if not head: a("s_lshr_b32 s50, s48, 3\ns_lshl_b32 s50, s50, 18\ns_add_u32 s49, s49, s50")
        a("s_add_u32 s49, s49, s60\ns_lshl_b32 m0, s48, 12\ns_add_u32 s48, s48, 1")
        for ii in range(4):
            a(f"buffer_load_dwordx4 v{4+ii}, s[40:43], s49 offen offset:{ii*1024} nt lds")
    assert P["burst"] <= 8
    a("L_kA:"); ktile(True)
    a(f"s_cmp_lt_u32 s48, {P['burst']}\ns_cbranch_scc1 L_kA")
    common()
    a("s_mov_b32 s31, 3")
    stamp(9)
    a("s_barrier")
    stamp(8)
    a("L_kB:")
    vm(P["thrK"])
    a(f"s_sub_u32 s51, s48, {(P['thrK']+3)//4}\ns_max_i32 s51, s51, 0")
    set_flag(F_K, "s51")
    ktile()
    a("s_cmp_lt_u32 s48, 32\ns_cbranch_scc1 L_kB")
    set_flag(F_TURN, 1)
    stamp(6)
    vm(0)
    set_flag(F_K, 32)
    stamp(7)
    wait_flag(F_Q, 1, sl=2)
    a(f"s_add_u32 s48, s63, {TK}\ns_add_u32 s50, s26, s48\ns_addc_u32 s51, s27, 0\ns_mov_b32 s48, 1\ns_atomic_add s48, s[50:51], 0 glc\ns_waitcnt lgkmcnt(0)")
    a("s_and_b32 s48, s48, 15\ns_add_u32 s48, s48, 1")
    set_flag(F_R, "s48")
    a("s_branch L_S")

    a("L_rest:")
    common()
    a("s_and_b32 s31, s3, 3\ns_add_u32 s100, s28, 1\ns_and_b32 s100, s100, 7")
    a("s_cmp_ge_u32 s3, 4\ns_cbranch_scc1 L_T\ns_cmp_eq_u32 s3, 2\ns_cbranch_scc1 L_W2\ns_cmp_eq_u32 s3, 3\ns_cbranch_scc1 L_W3")

    a("L_W1:")
    a("v_bfe_u32 v1, v0, 2, 2\nv_lshlrev_b32 v1, 10, v1\nv_lshl_add_u32 v1, v12, 6, v1\nv_and_b32 v2, 3, v0\nv_lshl_add_u32 v2, v2, 4, v1")
    a("v_bfe_u32 v4, v0, 3, 1\nv_lshl_add_u32 v4, v12, 2, v4\nv_lshlrev_b32 v4, 16, v4\nv_and_b32 v5, 7, v0\nv_lshl_add_u32 v4, v5, 4, v4")
    a("s_lshl_b32 s48, s29, 20\ns_lshl_b32 s49, s100, 10\ns_add_u32 s48, s48, s49\ns_lshl_b32 s49, s30, 7\ns_add_u32 s48, s48, s49")
    for k in range(4): a(f"s_xor_b32 s{52+k}, s29, {k}\ns_lshl_b32 s{52+k}, s{52+k}, 8")
    a("s_waitcnt lgkmcnt(0)")
    epoch()
    srd(40, 4, 4096); srd(44, 10, 0x400000); srd(36, 26, WS_BYTES)
    a("s_or_b32 s49, s30, s101\ns_cbranch_scc1 L_W1t")
    a(f"s_lshl_b32 s49, s100, 1\ns_lshr_b32 s51, s29, 1\ns_add_u32 s49, s49, s51\ns_mul_i32 s49, s49, {RS}\ns_add_u32 s49, s49, {TK}")
    a("s_mov_b64 exec, 1\nv_mov_b32 v6, 0\nbuffer_store_dword v6, v6, s[36:39], s49 offen sc1\ns_mov_b64 exec, -1\nL_W1t:")
    for k in range(4): a(f"buffer_load_dwordx4 v[{16+4*k}:{19+4*k}], v2, s[40:43], s{52+k} offen")
    for n in range(16):
        a(f"buffer_load_dwordx4 v[{96+4*n}:{99+4*n}], v4, s[44:47], s48 offen nt")
        if n < 15: a(f"s_add_u32 s48, s48, {8192 if n != 7 else 9*8192}")
    epoch_wait()
    a("s_barrier")
    vm(16)
    for k in range(16):
        a(f"v_lshlrev_b32 v{160+2*k}, 16, v{16+k}\nv_and_b32 v{161+2*k}, 0xffff0000, v{16+k}")
    a("v_pk_add_f32 v[6:7], v[160:161], v[162:163]")
    for k in range(2, 16): a(f"v_pk_add_f32 v[6:7], v[6:7], v[{160+2*k}:{161+2*k}]")
    a("v_add_f32 v6, v6, v7")
    red_batch(6)
    a("v_mul_f32 v6, 0x3b000000, v6\nv_mov_b32 v7, 0")
    for k in range(32): a(f"v_sub_f32 v{160+k}, v{160+k}, v6")
    for k in range(32): a(f"v_fmac_f32 v7, v{160+k}, v{160+k}")
    red_batch(7)
    a("v_mul_f32 v7, 0x3b000000, v7")
    rbf(6); rbf(7)
    a("v_add_f32 v7, 0x3727c5ac, v7"); rbf(7)
    a("v_sqrt_f32 v7, v7"); rbf(7)
    a("v_rcp_f32 v7, v7")
    for k in range(4):
        a(f"v_lshlrev_b32 v8, 16, v{16+k}\nv_and_b32 v9, 0xffff0000, v{16+k}\nv_sub_f32 v8, v8, v6\nv_sub_f32 v9, v9, v6")
        a(f"v_cvt_pk_bf16_f32 v9, v8, v9\nv_lshlrev_b32 v8, 16, v9\nv_and_b32 v9, 0xffff0000, v9")
        a(f"v_mul_f32 v8, v8, v7\nv_mul_f32 v9, v9, v7\nv_cvt_pk_bf16_f32 v{16+k}, v8, v9")
    for u in range(2):
        for k in range(4): dpp("v_mov_b32", 32 + 4 * u + k, 16 + k, None, f"quad_perm:[{2*u},{2*u+1},{2*u},{2*u+1}]")
    stamp(6)
    vm(8); transpose(64, 96)
    for t in range(8): mfma(192 + 4 * t, 32, 64 + 4 * t, None)
    vm(0); transpose(96, 128)
    for t in range(8): mfma(192 + 4 * t, 36, 96 + 4 * t, 192 + 4 * t)
    a(f"v_lshrrev_b32 v1, 5, v0\nv_mul_u32_u24 v1, {RS}, v1\nv_and_b32 v2, 1, v12\nv_lshl_add_u32 v1, v2, 13, v1")
    a("v_lshl_add_u32 v1, v5, 5, v1\nv_bfe_u32 v2, v0, 3, 1\nv_lshl_add_u32 v1, v2, 4, v1")
    a(f"s_mul_i32 s48, s100, {2*RS}\ns_lshl_b32 s49, s29, 11\ns_add_u32 s48, s48, s49\ns_lshl_b32 s49, s30, 8\ns_add_u32 s48, s48, s49\ns_add_u32 s48, s48, {QP}")
    for t in range(8):
        if t < 4: dpp("v_add_f32", 16 + t, 193 + 4 * t, 192 + 4 * t, "row_ror:8", "0x3")
        else: dpp("v_add_f32", 12 + t, 192 + 4 * t, 193 + 4 * t, "row_ror:8", "0xc")
    a("v_mov_b32 v6, s96")
    for v in range(4): a(f"s_mov_b32 s49, {hex(0x07060500 + v)}\nv_perm_b32 v{16+v}, v{16+v}, v6, s49")
    a("buffer_store_dwordx4 v[16:19], v1, s[36:39], s48 offen sc1")
    stamp(8)
    a("s_branch L_S")

    a("L_W2:")
    a("v_lshlrev_b32 v2, 4, v0")
    a(f"s_lshl_b32 s48, s101, 13\ns_add_u32 s48, s48, s63\ns_add_u32 s48, s48, {QP}\ns_add_u32 s49, s48, 4096")
    a("s_waitcnt lgkmcnt(0)")
    epoch()
    srd(36, 26, WS_BYTES)
    epoch_wait()
    a("s_barrier")
    for k in range(4): a(f"s_bfe_u32 s{52+k}, s96, {hex(0x80000 + 8 * k)}")
    wait_flag(F_K, P["q_gate"], sl=4)
    stamp(7)
    a("L_W2p:")
    for k in range(8): a(f"buffer_load_dwordx4 v[{16+4*k}:{19+4*k}], v2, s[36:39], s{48+(k>>2)} offen offset:{(k&3)*1024} sc1")
    vm(0)
    for r in range(16, 48): a(f"v_xor_b32 v{r}, s{52+(r&3)}, v{r}")
    a("v_or_b32 v15, v16, v17")
    for r in range(18, 48, 2): a(f"v_or3_b32 v15, v15, v{r}, v{r+1}")
    a("v_and_b32 v15, 0xff, v15\nv_cmp_ne_u32 vcc, 0, v15\ns_cbranch_vccz L_W2q")
    backoff(4)
    a("s_branch L_W2p\nL_W2q:")
    for h in range(2):
        for ks in range(1, 4):
            for z in range(2):
                r = 16 + 4 * h + 2 * z
                a(f"v_pk_add_f32 v[{r}:{r+1}], v[{r}:{r+1}], v[{r+8*ks}:{r+8*ks+1}]")
        a(f"v_cvt_pk_bf16_f32 v{6+2*h}, v{16+4*h}, v{17+4*h}\nv_cvt_pk_bf16_f32 v{7+2*h}, v{18+4*h}, v{19+4*h}")
    a(f"v_lshlrev_b32 v1, 3, v0\nv_add_u32 v1, {L_Q}, v1")
    a("ds_write_b64 v1, v[6:7]\nds_write_b64 v1, v[8:9] offset:512")
    set_flag(F_Q, 1)
    stamp(8)
    a("s_branch L_S")

    a("L_W3:")
    if P["l1"]: a("s_mov_b32 s100, s28")
    a("s_mov_b32 s31, 0\ns_lshr_b32 s55, s2, 3")
    a(f"s_getpc_b64 s[48:49]\nL_pc:\ns_sub_u32 s48, s48, L_pc-{KNAME}\ns_subb_u32 s49, s49, 0\ns_mov_b32 s50, L_fin-{KNAME}-4")
    a("s_lshl_b32 s51, s55, 9\nv_lshl_add_u32 v2, v0, 7, s51\nv_min_u32 v2, s50, v2\ns_mov_b64 exec, 15\nglobal_load_dword v16, v2, s[48:49]\ns_mov_b64 exec, -1")
    a("v_lshl_add_u32 v1, v0, 2, v14\nv_mov_b32 v2, 0\nds_write_b32 v1, v2")
    a("s_waitcnt lgkmcnt(0)\ns_barrier")
    def touch(p): a(f"global_load_dword v18, v1, s[{p}:{p+1}] sc1 nt\nglobal_load_dword v18, v1, s[{p}:{p+1}] sc1")
    def pf_rows(k):
        per = 4 * k
        a(f"v_and_b32 v1, {per-1}, v0\ns_mul_i32 s49, s55, {per}\nv_add_u32 v1, s49, v1")
        if k < 4:
            a(f"v_lshrrev_b32 v2, {(32*k).bit_length()-1}, v1\nv_and_b32 v1, {32*k-1}, v1\nv_lshl_add_u32 v1, v2, 7, v1\nv_add_u32 v1, {128-32*k}, v1")
        return hex((1 << per) - 1)
    if P["kW"]:
        m = pf_rows(P["kW"])
        a(f"s_lshl_b32 s49, s100, 19\ns_add_u32 s49, s49, 384\nv_lshl_add_u32 v1, v1, 10, s49\ns_mov_b64 exec, {m}")
        touch(12); a("s_mov_b64 exec, -1")
    if P["kG"]:
        m = pf_rows(P["kG"])
        a(f"s_mul_i32 s49, s28, 448\ns_lshr_b32 s49, s49, 7\ns_or_b32 s49, s49, 3\ns_lshl_b32 s49, s49, 7\nv_mul_u32_u24 v1, 3584, v1\nv_add_u32 v1, s49, v1\ns_mov_b64 exec, {m}")
        touch(16); touch(18); a("s_mov_b64 exec, -1")

    a("L_S:")
    srd(40, 8, 0x8000000); srd(36, 26, WS_BYTES)
    a("v_lshlrev_b32 v1, 4, v0\ns_lshl_b32 s48, s31, 18\ns_add_u32 s48, s48, s60")
    for tau in range(8):
        a(f"s_add_u32 s49, s28, {tau}\ns_and_b32 s49, s49, 7\ns_lshl_b32 s49, s49, 12\ns_add_u32 s{52+tau}, s49, s48")
    a(f"v_lshrrev_b32 v2, 2, v13\nv_lshl_add_u32 v2, v12, 4, v2\nv_lshlrev_b32 v2, 4, v2\ns_lshl_b32 s49, s31, 10\ns_add_u32 s49, s49, {L_P}\nv_add_u32 v2, s49, v2")
    a(f"s_lshl_b32 s49, s31, 11\ns_add_u32 s49, s49, {L_DEP - 2048}\nv_lshl_add_u32 v3, v0, 2, s49")
    a("s_lshl_b32 s49, s31, 2\nv_add_u32 v5, s49, v14")
    a("s_lshl_b32 s48, s101, 13\ns_lshl_b32 s49, s30, 10\ns_add_u32 s48, s48, s49\ns_add_u32 s48, s48, s63")
    for t in range(8): a(f"v_mov_b32 v{32+4*t}, 0")
    a("s_add_u32 s50, s31, 1")
    wait_flag(F_TURN, "s50")
    stamp(1)
    for tau in range(8):
        if 4 * tau > P["thrV"]: vm(P["thrV"])
        for q in range(4):
            r = 96 + 16 * tau + 4 * q
            a(f"buffer_load_dwordx4 v[{r}:{r+3}], v1, s[40:43], s{52+tau} offen offset:{q*1024} nt")
    a("s_add_u32 s51, s31, 2")
    set_flag(F_TURN, "s51")
    a("s_setprio 3")
    stamp(2)
    vm(24); transpose(64, 96)
    wait_flag(F_P, 1, addr="v5")
    for q in range(4): a(f"ds_read_b128 v[{16+4*q}:{19+4*q}], v2 offset:{64*q}")
    a("s_cmp_eq_u32 s31, 0\ns_cbranch_scc1 L_Sc")
    wait_flag(F_DEP, "s31")
    for t in range(8): a(f"ds_read_b32 v{32+4*t}, v3 offset:{256*t}")
    a("L_Sc:")
    lgkm(0)
    stamp(3)
    for q in range(4):
        if q in (1, 2): vm(24 - 8 * q); transpose(64 + 32 * q, 96 + 32 * q)
        if q == 3:
            for p in range(4):
                if P["l1"] and p == 2: a(f"ds_read_b32 v15, v14 offset:{F_X}")
                if P["l1"] and p == 3: a("s_waitcnt lgkmcnt(0)\nv_readfirstlane_b32 s61, v15")
                vm(6 - 2 * p); transpose(160, 192, [p])
            stamp(4)
        for t in range(8): mfma(32 + 4 * t, 16 + 4 * q, 64 + 32 * q + 4 * t, 32 + 4 * t)
    a("s_cmp_eq_u32 s31, 3\ns_cbranch_scc1 L_S3")
    for k in range(4): a(f"ds_write2st64_b32 v3, v{32+8*k}, v{36+8*k} offset0:{8+2*k} offset1:{9+2*k}")
    set_flag(F_DEP, "s50")
    if P["l1"]:
        note("S1: one look at the 16 records of this (g, pair); if all are present and name this die, S3 may hand over inside its L2")
        a(f"s_cmp_lg_u32 s31, {P.get('wx', 1)}\ns_cbranch_scc1 L_exit\ns_setprio 0")
        if P.get("gx"): wait_flag(F_TURN, P["gx"], sl=2)
        a(f"s_add_u32 s48, s63, {ST}\nbuffer_load_dwordx4 v[16:19], v1, s[36:39], s48 offen sc1")
        a("s_getreg_b32 s49, hwreg(HW_REG_XCC_ID, 0, 4)")
        vm(0)
        a("v_and_b32 v16, 0xffff, v16\nv_xor_b32 v16, s49, v16\nv_xor_b32 v17, s96, v17\nv_or_b32 v16, v16, v17\nv_cmp_ne_u32 vcc, 0, v16\ns_cbranch_vccnz L_exit")
        set_flag(F_X, 1)
    a("s_branch L_exit")
    a("L_S3:")
    if P["l1"]: a("s_cmp_eq_u32 s61, 1")
    for k in range(4): a(f"v_cvt_pk_bf16_f32 v{8+k}, v{32+8*k}, v{36+8*k}\nv_min_u32 v{8+k}, -2, v{8+k}")
    if P["l1"]:
        a("s_cbranch_scc0 L_S3g\nbuffer_store_dwordx4 v[8:11], v1, s[36:39], s48 offen\ns_branch L_S3h\nL_S3g:")
    a("buffer_store_dwordx4 v[8:11], v1, s[36:39], s48 offen sc1")
    if P["l1"]: a("L_S3h:")
    set_flag(F_TURN, 6)
    stamp(5)
    a("s_branch L_exit")

    a("L_T:")
    if P["l1"]: a("s_mov_b32 s100, s28")
    def hp_addr(g, cs):
        a(f"s_lshr_b32 s51, {g}, 2\ns_add_u32 s51, s51, 14\ns_mul_i32 s51, s51, {RS}\ns_and_b32 s49, {g}, 3\ns_lshl_b32 s49, s49, 10\ns_add_u32 s51, s51, s49")
        a(f"s_add_u32 s51, s51, s52\ns_lshl_b32 s49, {cs}, 7\ns_add_u32 s51, s51, s49")
    def hl_addr(g, cs):
        a(f"s_lshl_b32 s11, {g}, 2\ns_add_u32 s11, s11, s62\ns_lshl_b32 s11, s11, 12\ns_add_u32 s11, s11, {HL}")
        if cs: a(f"s_lshl_b32 s49, {cs}, 7\ns_add_u32 s11, s11, s49")
    def dp_addr(sp):
        a(f"s_mul_i32 s61, s28, 7\ns_add_u32 s61, s61, {sp}")
        a(f"s_add_u32 s55, s52, s53\ns_lshr_b32 s54, s61, 2\ns_mul_i32 s54, s54, {RS}\ns_and_b32 s49, s61, 3\ns_lshl_b32 s49, s49, 10\ns_add_u32 s54, s54, s49")
        a(f"s_add_u32 s54, s54, s55\ns_add_u32 s55, s55, {14*RS}")
    a(f"s_lshl_b32 s53, s31, 8\ns_and_b32 s62, s29, 2\ns_lshl_b32 s52, s62, 12\ns_add_u32 s52, s52, {DP}")
    hp_addr("s28", "s30"); dp_addr("s30")
    a("s_lshl_b32 s50, s101, 13\ns_add_u32 s50, s50, s53\ns_add_u32 s50, s50, s63\ns_lshl_b32 s49, s30, 10\ns_add_u32 s50, s50, s49")
    a("v_lshlrev_b32 v246, 12, v12\nv_lshl_add_u32 v246, v13, 4, v246")
    a("v_mov_b32 v248, -1\nv_mov_b32 v249, -1\nv_mov_b32 v250, -1\nv_mov_b32 v251, -1")
    a("s_waitcnt lgkmcnt(0)")
    epoch()
    srd(36, 26, WS_BYTES)
    a("s_mov_b64 exec, 0xffff\nbuffer_store_dwordx4 v[248:251], v246, s[36:39], s50 offen" + ("" if P.get("oc") else " sc1"))
    a("s_cmp_eq_u32 s101, 1\ns_cbranch_scc1 L_Tc1\ns_cmp_lg_u32 s31, 3\ns_cbranch_scc1 L_Tc2")
    a("s_mov_b64 exec, 0x00ff00ff\nbuffer_store_dwordx4 v[248:251], v246, s[36:39], s51 offen sc1")
    if P["hl"]:
        hl_addr("s28", "s30")
        a("buffer_store_dwordx4 v[248:251], v246, s[36:39], s11 offen" + ("" if P["hc"] and P["l1"] else " sc1"))
    a("s_branch L_Tc2")
    a("L_Tc1:\ns_cmp_eq_u32 s30, 7\ns_cbranch_scc1 L_Tc2")
    a("s_mov_b32 exec_lo, -1\nbuffer_store_dwordx4 v[248:251], v246, s[36:39], s54 offen sc1")
    a("L_Tc2:\ns_mov_b64 exec, -1")
    epoch_wait()
    a("s_barrier")

    a(f"v_and_b32 v1, 3, v0\nv_lshlrev_b32 v1, 8, v1\nv_lshl_add_u32 v1, v12, 4, v1\nv_add_u32 v1, {L_Q}, v1")
    a("v_and_b32 v8, 3, v0\nv_lshlrev_b32 v8, 2, v8\nv_lshrrev_b32 v9, 2, v13\nv_add_u32 v8, v8, v9\nv_lshlrev_b32 v8, 8, v8")
    a("s_lshl_b32 s57, s31, 15\nv_add_u32 v8, s57, v8")
    for m in range(4):
        a(f"v_add_u32 v9, {4*m}, v12\nv_xor_b32 v9, v9, v13\nv_lshl_add_u32 v{4+m}, v9, 4, v8")
    wait_flag(F_Q, 1, sl=2)
    stamp(3)
    for m in range(4): a(f"ds_read_b128 v[{16+4*m}:{19+4*m}], v1 offset:{64*m}")
    a("s_add_u32 s48, s31, 1\ns_lshl_b32 s48, s48, 3")
    wait_flag(F_K, "s48", sl=2)
    stamp(4)
    def kread(tau):
        for m in range(4):
            r = 64 + 16 * tau + 4 * m
            a(f"ds_read_b128 v[{r}:{r+3}], v{4+m} offset:{4096*tau}")
    kread(0); kread(1)
    for tau in range(8):
        if tau + 2 < 8: kread(tau + 2)
        lgkm(8 if tau < 6 else 4 if tau == 6 else 0)
        for m in range(4): mfma(32 + 4 * tau, 64 + 16 * tau + 4 * m, 16 + 4 * m, None if m == 0 else 32 + 4 * tau)
    for q in range(1, 4):
        for k in range(8): dpp("v_mov_b32", 32 + k, 32 + 8 * q + k, None, "quad_perm:[0,1,2,3]", hex(1 << q))
    a("s_mov_b32 s50, 0x3db504f3\ns_mov_b32 s59, 0x3fb8aa3b")
    for k in range(0, 8, 2):
        x, y = 32 + k, 33 + k
        a(f"v_cvt_pk_bf16_f32 v{y}, v{x}, v{y}\nv_lshlrev_b32 v{x}, 16, v{y}\nv_and_b32 v{y}, 0xffff0000, v{y}")
        a(f"v_mul_f32 v{x}, s50, v{x}\nv_mul_f32 v{y}, s50, v{y}")
        a(f"v_cvt_pk_bf16_f32 v{y}, v{x}, v{y}\nv_lshlrev_b32 v{x}, 16, v{y}\nv_and_b32 v{y}, 0xffff0000, v{y}")
    a("v_max3_f32 v8, v32, v33, v34\nv_max3_f32 v8, v8, v35, v36\nv_max3_f32 v8, v8, v37, v38\nv_max_f32 v8, v8, v39")
    red_head("v_max_f32", 8)
    a(f"v_and_b32 v5, 3, v0\nv_lshlrev_b32 v5, 4, v5\nv_add_u32 v5, {L_M}, v5\ns_lshl_b32 s48, s31, 2\nv_add_u32 v6, s48, v5")
    vm(0)
    a(f"s_mov_b64 exec, 15\nds_write_b32 v6, v8\ns_mov_b64 exec, 1\nv_mov_b32 v15, 1\nds_add_u32 v14, v15 offset:{F_M}\ns_mov_b64 exec, -1")
    wait_flag(F_M, 4)
    a("ds_read_b128 v[16:19], v5")
    lgkm(0)
    a("v_max3_f32 v8, v16, v17, v18\nv_max_f32 v8, v8, v19")
    for k in range(8): a(f"v_sub_f32 v{40+k}, v{32+k}, v8")
    for k in range(8): a(f"v_mul_f32 v{40+k}, s59, v{40+k}")
    for k in range(8): a(f"v_exp_f32 v{40+k}, v{40+k}")
    a("v_lshlrev_b32 v4, 4, v0")
    for k in range(4): a(f"v_cvt_pk_bf16_f32 v{16+k}, v{40+2*k}, v{41+2*k}")
    a(f"s_lshl_b32 s49, s31, 10\ns_add_u32 s49, s49, {L_P}\nv_add_u32 v7, s49, v4\nds_write_b128 v7, v[16:19]")
    a("v_add_u32 v7, s48, v14")
    set_flag(F_P, 1, addr="v7")
    stamp(5)
    a("v_add_f32 v9, v40, v41")
    for k in range(2, 8): a(f"v_add_f32 v9, v9, v{40+k}")
    red_head("v_add_f32", 9)
    a(f"s_mov_b64 exec, 15\nds_write_b32 v6, v9 offset:{L_L-L_M}\ns_mov_b64 exec, 1\nv_mov_b32 v15, 1\nds_add_rtn_u32 v15, v14, v15 offset:{F_L}\ns_mov_b64 exec, -1")
    a("s_waitcnt lgkmcnt(0)\nv_readfirstlane_b32 s33, v15\ns_cmp_lg_u32 s33, 3\ns_cbranch_scc1 L_Tst")
    a(f"ds_read_b128 v[16:19], v5 offset:{L_L-L_M}")
    a(f"s_lshl_b32 s49, s101, 3\ns_add_u32 s49, s49, s30\ns_lshl_b32 s49, s49, 6\ns_add_u32 s49, s49, s63\ns_add_u32 s49, s49, {ST}")
    a("s_getreg_b32 s33, hwreg(HW_REG_XCC_ID, 0, 4)\nv_and_b32 v8, 0xffff0000, v8\nv_or_b32 v8, s33, v8")
    a("v_mov_b32 v20, v8\nv_mov_b32 v21, s96\nv_mov_b32 v23, s96\ns_waitcnt lgkmcnt(0)")
    a("v_add_f32 v16, v16, v17\nv_add_f32 v18, v18, v19\nv_add_f32 v22, v16, v18")
    a("s_mov_b64 exec, 15\nbuffer_store_dwordx4 v[20:23], v4, s[36:39], s49 offen sc1\ns_mov_b64 exec, -1")
    a("L_Tst:")

    a("v_bfe_u32 v8, v0, 3, 1\nv_and_b32 v9, 1, v12\nv_lshl_add_u32 v8, v9, 1, v8")
    a("v_lshlrev_b32 v9, 10, v12\nv_bfe_u32 v10, v0, 2, 2\nv_lshl_add_u32 v9, v10, 7, v9\nv_and_b32 v10, 3, v0\nv_lshl_add_u32 v9, v10, 3, v9\nv_add_u32 v9, s57, v9")
    for t in range(4): a(f"v_xor_b32 v10, {t}, v8\nv_lshl_add_u32 v{4+t}, v10, 5, v9")
    a("s_add_u32 s56, s57, 16384\nv_lshl_add_u32 v9, v13, 8, s56")
    for k in range(4):
        a(f"v_add_u32 v10, {4*k}, v12\nv_xor_b32 v10, v10, v13\nv_lshl_add_u32 v{60+k}, v10, 4, v9\nv_lshlrev_b32 v10, 4, v10\nv_lshl_add_u32 v{252+k}, v12, 10, v10")
    a("v_bfe_u32 v8, v0, 4, 1\nv_lshlrev_b32 v8, 1, v8\nv_and_b32 v9, 7, v0\nv_xor_b32 v8, v8, v9\nv_lshrrev_b32 v9, 3, v0")
    wait_flag(F_R, 1, sl=2)
    a("s_sub_u32 s97, s33, 1\ns_cmp_eq_u32 s97, 15\ns_cbranch_scc1 L_exit")
    if P["wf"]:
        a(f"s_mov_b32 s48, {hex(P['wf'] & 0xffffffff)}\ns_mov_b32 s49, {hex(P['wf'] >> 32)}\ns_lshl_b32 s97, s97, 2\ns_lshr_b64 s[48:49], s[48:49], s97\ns_and_b32 s97, s48, 15")
    a("s_cmp_lt_u32 s97, 7\ns_cbranch_scc1 L_F")

    def wreads(ks):
        for t in range(4):
            for hh in range(2):
                r = 64 + 16 * ks + 4 * t + 2 * hh
                a(f"ds_read_b64_tr_b16 v[{r}:{r+1}], v{4+t} offset:{4096*ks + 512*hh}")
    def gather_dma(soffs):
        for k in range(4):
            a(f"s_add_u32 m0, s56, {1024*k}\nbuffer_load_dwordx4 v{252+k}, s[36:39], {soffs[k]} offen sc1 lds")
    def gather_finish(soff, sleep, head, defer=None):
        p, c, d = L("gp"), L("gc"), L("gd")
        vm(0)
        for k in range(4): a(f"ds_read_b128 v[{16+4*k}:{19+4*k}], v{60+k}")
        a(f"s_waitcnt lgkmcnt(0)\ns_branch {c}\n{p}:")
        for ks in range(4):
            a(f"buffer_load_dwordx4 v[{16+4*ks}:{19+4*ks}], v1, s[36:39], {soff} offen offset:{64*ks} sc1")
        a("s_mov_b64 exec, -1")
        vm(0)
        a(f"{c}:")
        for k in range(4):
            r = 16 + 4 * k
            head(k)
            a(f"v_max_u32 v15, v{r}, v{r+1}" if k == 0 else f"v_max3_u32 v15, v15, v{r}, v{r+1}")
            a(f"v_max3_u32 v15, v15, v{r+2}, v{r+3}")
        a("v_cmp_eq_u32 vcc, -1, v15")
        head(4)
        a(f"s_cbranch_vccz {d}")
        backoff(sleep)
        if defer: a(f"s_andn2_b64 exec, vcc, {defer}\ns_cbranch_scc1 {p}")
        a(f"s_mov_b64 exec, vcc\ns_branch {p}\n{d}:")
    def gm(n):
        t, ks = n >> 2, n & 3
        mfma(32 + 4 * t, 16 + 4 * ks, 64 + 16 * ks + 4 * t, None if ks == 0 else 32 + 4 * t)

    a(f"s_add_u32 s30, s97, {P['rW']}\ns_and_b32 s30, s30, 7")
    hp_addr("s100", "s30")
    if P["hl"]: hl_addr("s100", "s30")
    srd(40, 12, 0x400000)
    a("v_lshlrev_b32 v2, 10, v9\nv_lshl_add_u32 v2, v8, 4, v2\nv_xor_b32 v3, 64, v2")
    a(f"s_lshl_b32 s63, s100, 1\ns_lshr_b32 s49, s29, 1\ns_add_u32 s63, s63, s49\ns_mul_i32 s63, s63, {RS}\ns_add_u32 s60, s63, s53\ns_add_u32 s58, s63, {ST}")
    a("s_add_u32 s61, s60, 4096\ns_add_u32 s54, s60, 8192\ns_add_u32 s55, s60, 12288")
    a("s_lshl_b32 s48, s100, 19\ns_lshl_b32 s49, s31, 17\ns_add_u32 s48, s48, s49\ns_lshl_b32 s49, s30, 7\ns_add_u32 s48, s48, s49")
    a("s_mov_b32 s44, s4\ns_mov_b32 s45, s5\ns_cmp_eq_u32 s100, 0\ns_cselect_b32 s46, 4096, 0\ns_mov_b32 s47, 0x20000")
    a("s_lshl_b32 s50, s62, 10\ns_add_u32 s50, s50, s49")
    a("v_lshrrev_b32 v8, 5, v0\nv_bfe_u32 v9, v0, 1, 4\nv_lshlrev_b32 v10, 3, v9\nv_lshl_add_u32 v11, v8, 10, v10\nv_lshl_add_u32 v59, v8, 12, v10")
    a("buffer_load_dwordx2 v[56:57], v11, s[44:47], s50 offen")
    a(f"v_and_b32 v10, 1, v0\nv_lshl_add_u32 v58, v8, 1, v10\nv_mul_u32_u24 v58, 320, v58\nv_lshl_add_u32 v58, v9, 4, v58\nv_add_u32 v58, {L_RED}, v58")
    a(f"v_mul_u32_u24 v247, 320, v12\nv_lshl_add_u32 v247, v13, 2, v247\ns_mul_i32 s49, s31, 1280\ns_add_u32 s49, s49, {L_RED}\nv_add_u32 v247, s49, v247")
    a("v_lshrrev_b32 v11, 2, v0\nv_lshlrev_b32 v11, 6, v11\ns_lshl_b32 s49, s31, 4\ns_add_u32 s58, s58, s49")
    a("v_lshlrev_b32 v1, 10, v13\nv_lshl_add_u32 v1, v12, 4, v1")
    stl = "buffer_load_dwordx4 v[32:35], v11, s[36:39], s58 offen"
    wait_flag(F_TURN, 5)
    a(stl + first)
    cap = P["capW"]
    for n in range(16):
        if n >= cap and n % 2 == 0: vm(cap - 2)
        a(f"s_add_u32 m0, s57, {1024*n}\ns_add_u32 s49, s48, {8192*n}\nbuffer_load_dwordx4 v{2+(n&1)}, s[40:43], s49 offen nt lds")
    stamp(1)
    vm(16)
    a("L_Tsp:")
    a("v_xor_b32 v33, s96, v33\nv_xor_b32 v35, s96, v35\nv_or_b32 v15, v33, v35\nv_cmp_ne_u32 vcc, 0, v15\ns_cbranch_vccz L_Tsq")
    backoff(4)
    a(stl + " sc1")
    vm(0)
    a("s_branch L_Tsp\nL_Tsq:")
    a("v_and_b32 v32, 0xffff0000, v32\nv_mov_b32 v8, v32")
    dpp("v_max_f32", 8, 8, 8, "row_ror:4"); dpp("v_max_f32", 8, 8, 8, "row_ror:8"); x16("v_max_f32", 8, 10)
    a("v_sub_f32 v32, v32, v8\nv_mul_f32 v32, s59, v32\nv_exp_f32 v32, v32\nv_mul_f32 v9, v32, v34")
    dpp("v_add_f32", 9, 9, 9, "row_ror:4"); dpp("v_add_f32", 9, 9, 9, "row_ror:8"); x16("v_add_f32", 9, 10)
    a("v_rcp_f32 v9, v9\nv_mul_f32 v32, v32, v9")
    for r in range(4): dpp("v_mov_b32", 48 + r, 32, None, f"row_newbcast:{4*r}")
    a("v_lshlrev_b32 v52, 16, v56\nv_and_b32 v53, 0xffff0000, v56\nv_lshlrev_b32 v54, 16, v57\nv_and_b32 v55, 0xffff0000, v57")
    stamp(7)
    for ks in range(4):
        vm(4 * (3 - ks) + (4 if ks > 3 - P["pg"] else 0))
        if ks == 3 - P["pg"]: gather_dma(["s60", "s61", "s54", "s55"])
        if ks: a("s_waitcnt lgkmcnt(0)")
        wreads(ks)
    stamp(6)
    gather_finish("s60", P["sl1"], gm)
    stamp(8)
    def scale(t, r): a(f"v_mul_f32 v{8+t}, v{32+4*t}, v48" if r == 0 else f"v_fmac_f32 v{8+t}, v{32+4*t+r}, v{48+r}")
    for n in range(5, 16):
        gm(n)
        if n >= 12: scale(0, n & 3); scale(1, n & 3)
    a("ds_write2_b32 v247, v8, v9 offset0:0 offset1:16")
    for t in (2, 3):
        for r in range(4): scale(t, r)
    a("ds_write2_b32 v247, v10, v11 offset0:32 offset1:48\ns_waitcnt lgkmcnt(0)\ns_barrier")
    a("s_cmp_lg_u32 s31, 3\ns_cbranch_scc1 " + ("L_Wd" if P["dl"] and P["dpf"] else "L_exit"))
    for k in range(4): a(f"ds_read_b128 v[{32+4*k}:{35+4*k}], v58 offset:{1280*k}")
    lgkm(2)
    a("v_pk_add_f32 v[32:33], v[32:33], v[36:37]\nv_pk_add_f32 v[34:35], v[34:35], v[38:39]")
    lgkm(0)
    a("v_pk_add_f32 v[40:41], v[40:41], v[44:45]\nv_pk_add_f32 v[42:43], v[42:43], v[46:47]")
    a("v_pk_add_f32 v[32:33], v[32:33], v[40:41]\nv_pk_add_f32 v[34:35], v[34:35], v[42:43]")
    for v in range(4): dpp("v_add_f32", 32 + v, 32 + v, 32 + v, "quad_perm:[1,0,3,2]")
    a("v_pk_add_f32 v[32:33], v[32:33], v[52:53]\nv_pk_add_f32 v[34:35], v[34:35], v[54:55]")
    a("v_cvt_pk_bf16_f32 v36, v32, v33\nv_cvt_pk_bf16_f32 v37, v34, v35\nv_min_u32 v36, -2, v36\nv_min_u32 v37, -2, v37")
    dpp("v_mov_b32", 38, 36, None, "quad_perm:[2,3,2,3]"); dpp("v_mov_b32", 39, 37, None, "quad_perm:[2,3,2,3]")
    a("s_mov_b32 exec_lo, 0x11111111\ns_mov_b32 exec_hi, 0x11111111")
    a("buffer_store_dwordx4 v[36:39], v59, s[36:39], s51 offen sc1")
    if P["hl"]:
        note("second copy stays in this die's L2; only readers that verified they share the die use it")
        a("buffer_store_dwordx4 v[36:39], v59, s[36:39], s11 offen")
    if P["aft"]: a("s_barrier")
    stamp(9)
    a("s_branch L_exit")
    if P["dl"] and P["dpf"]:
        def tch(x):
            if P["dpf"] == 3: a(x + " sc1 nt\n" + x + " sc1")
            else: a(x + (" nt" if P["dpf"] == 2 else ""))
        a("L_Wd:\ns_cmp_ge_u32 s31, 2\ns_cbranch_scc1 L_Wg")
        a("s_lshl_b32 s48, s30, 2\ns_add_u32 s48, s48, s62\ns_add_u32 s48, s48, s31\ns_lshl_b32 s49, s28, 5\ns_add_u32 s48, s48, s49\ns_mul_i32 s48, s48, 7168")
        a("v_min_u32 v1, 55, v0\nv_lshl_add_u32 v1, v1, 7, s48")
        if P["aft"]: a("s_barrier")
        if P.get("dlag"): a("s_barrier")
        tch("global_load_dword v16, v1, s[20:21]")
        a("s_branch L_exit\nL_Wg:")
        if P["gpf"]:
            a("s_lshl_b32 s48, s30, 1\ns_lshr_b32 s49, s29, 1\ns_add_u32 s48, s48, s49\ns_lshr_b32 s49, s48, 2\ns_lshl_b32 s49, s49, 7\ns_and_b32 s48, s48, 3\ns_lshl_b32 s48, s48, 3")
            a("s_add_u32 s48, s48, s49\ns_add_u32 s48, s48, 96\ns_mul_i32 s48, s48, 3584\ns_mul_i32 s49, s28, 448\ns_and_b32 s49, s49, 0xffffff80\ns_add_u32 s48, s48, s49")
            a("v_bfe_u32 v2, v0, 2, 3\nv_mul_u32_u24 v2, 3584, v2\nv_and_b32 v3, 3, v0\nv_lshl_add_u32 v2, v3, 7, v2\nv_add_u32 v2, s48, v2\nv_mov_b32 v3, 0")
            a("v_lshl_add_u64 v[4:5], v[2:3], 0, s[16:17]\ns_mov_b32 exec_lo, 0\nv_lshl_add_u64 v[4:5], v[2:3], 0, s[18:19]\ns_mov_b64 exec, -1")
        if P["aft"]: a("s_barrier")
        if P["gpf"] == 2:
            a(f"s_mov_b32 s48, {-32*3584}\ns_mov_b32 s49, -1\nv_lshl_add_u64 v[6:7], v[4:5], 0, s[48:49]")
            a("global_load_dword v16, v[6:7], off sc1 nt\nglobal_load_dword v16, v[4:5], off sc1 nt\nglobal_load_dword v16, v[6:7], off sc1\nglobal_load_dword v16, v[4:5], off sc1")
        elif P["gpf"]: tch("global_load_dword v16, v[4:5], off")
        a("s_branch L_exit")

    a("L_F:")
    a(f"s_add_u32 s30, s97, s28\ns_add_u32 s30, s30, {P['rF']}\ns_mul_i32 s49, s30, 37\ns_lshr_b32 s49, s49, 8\ns_mul_i32 s49, s49, 7\ns_sub_u32 s30, s30, s49")
    dp_addr("s30")
    srd(40, 20, 1792 * 1024); srd(44, 22, 4096)
    a("s_lshl_b32 s14, s61, 15\ns_add_u32 s14, s14, s53\ns_add_u32 s15, s14, 16384")
    def dnl(jj): a(f"buffer_load_dwordx4 v[{192+4*jj}:{195+4*jj}], v246, s[40:43], s{14 + (jj & 1)} offen offset:{(jj>>1)*1024} nt")
    if not P["dl"]:
        for jj in range(8): dnl(jj)
    if P["hl"]:
        hl_addr("s100", None)
        a(f"s_lshr_b32 s8, s100, 2\ns_mul_i32 s9, s8, {RS}\ns_and_b32 s13, s100, 3\ns_lshl_b32 s49, s13, 10\ns_add_u32 s9, s9, s49\ns_add_u32 s9, s9, s55")
        a(f"s_add_u32 s11, s11, s53\ns_sub_u32 s11, s11, s9\ns_lshl_b32 s13, s13, 4\ns_add_u32 s9, s63, {ST}")
        a("s_and_b32 s12, s28, 1\ns_lshl_b32 s12, s12, 3\ns_lshl_b32 s12, 0x00ff00ff, s12\ns_lshr_b32 s49, s28, 1\ns_cmp_eq_u32 s49, s31\ns_cselect_b32 s12, s12, 0")
        a("v_lshrrev_b32 v228, 2, v0\nv_lshlrev_b32 v228, 6, v228")
    a("s_lshl_b32 s6, 0x01010101, s100\ns_mov_b32 s7, s6")
    a("v_mul_u32_u24 v10, 3584, v9\nv_and_b32 v11, 3, v8\nv_lshl_add_u32 v10, v11, 4, v10")
    a(f"s_mul_i32 s49, s31, {128*3584}\ns_lshl_b32 s50, s61, 6\ns_add_u32 s49, s49, s50\nv_add_u32 v10, s49, v10\nv_mov_b32 v11, 0")
    a("v_lshl_add_u64 v[224:225], v[10:11], 0, s[16:17]\nv_lshl_add_u64 v[226:227], v[10:11], 0, s[18:19]")
    a("s_mov_b32 exec_lo, 0xf0f0f0f0\ns_mov_b32 exec_hi, 0xf0f0f0f0")
    a("v_lshl_add_u64 v[224:225], v[10:11], 0, s[18:19]\nv_lshl_add_u64 v[226:227], v[10:11], 0, s[16:17]\ns_mov_b64 exec, -1")
    a(f"s_mov_b32 s98, {8*3584}\ns_mov_b32 s99, 0\nv_lshl_add_u64 v[226:227], v[226:227], 0, s[98:99]\ns_mov_b32 s98, {16*3584}")
    a(f"s_mul_i32 s50, s31, 320\ns_add_u32 s50, s50, {L_CS}\nv_lshl_add_u32 v247, v13, 4, s50")
    for k in range(4): a(f"v_mov_b32 v{240+k}, 0x3f803f80")
    a(f"v_lshrrev_b32 v229, 5, v0\nv_mul_u32_u24 v229, {2*RS}, v229\nv_bfe_u32 v1, v0, 2, 3\nv_lshl_add_u32 v229, v1, 6, v229")
    a(f"s_lshl_b32 s58, s31, 2\ns_lshr_b32 s50, s29, 1\ns_add_u32 s58, s58, s50\ns_mul_i32 s58, s58, {RS}\ns_add_u32 s58, s58, {ST + 4}")
    a(f"v_bfe_u32 v1, v0, 2, 1\nv_mul_u32_u24 v1, {RS}, v1\nv_and_b32 v3, 3, v0\nv_lshl_add_u32 v1, v3, 10, v1\nv_bfe_u32 v3, v0, 3, 1\nv_lshl_add_u32 v1, v3, 12, v1\nv_lshl_add_u32 v1, v12, 4, v1")
    a(f"s_add_u32 s60, s55, {RS}\ns_add_u32 s63, s55, 4096\ns_add_u32 s51, s55, {RS + 4096}")
    a(f"s_mul_i32 s50, s31, 1280\ns_add_u32 s50, s50, {L_RED}")
    a("v_lshrrev_b32 v2, 1, v12\nv_mul_u32_u24 v2, 320, v2\nv_lshl_add_u32 v2, v13, 4, v2\nv_and_b32 v3, 1, v12\nv_lshl_add_u32 v2, v3, 3, v2\nv_add_u32 v2, s50, v2")
    a("v_and_b32 v8, 3, v0\nv_lshl_add_u32 v8, v12, 2, v8\nv_lshlrev_b32 v8, 4, v8\nv_bfe_u32 v9, v0, 3, 1\nv_bfe_u32 v10, v0, 2, 1")
    a(f"v_mul_u32_u24 v230, 640, v9\nv_add_u32 v230, v230, v8\nv_add_u32 v230, {L_CS}, v230")
    a(f"v_mul_u32_u24 v231, 2560, v9\nv_mul_u32_u24 v3, 320, v10\nv_add3_u32 v231, v231, v3, v8\nv_add_u32 v231, {L_RED}, v231")
    a(f"v_lshlrev_b32 v3, 5, v10\nv_add_u32 v3, {L_STAT}, v3")
    a(f"s_lshl_b32 s50, s31, 2\ns_add_u32 s50, s50, {L_STAT}\nv_lshl_add_u32 v59, v12, 4, s50")
    a("s_lshl_b32 s50, s97, 5\ns_lshl_b32 s100, s28, 7\ns_add_u32 s100, s100, s50")
    a("s_lshr_b32 s50, s31, 1\ns_add_u32 s101, s62, s50\ns_lshl_b32 s101, s101, 10\ns_add_u32 s101, s101, s100")
    a(f"s_lshl_b32 s50, s50, 12\ns_add_u32 s100, s100, s50\ns_add_u32 s100, s100, s52\ns_add_u32 s10, s100, {8*RS}")
    a(f"v_lshrrev_b32 v244, 3, v0\nv_mul_u32_u24 v244, {RS}, v244\nv_bfe_u32 v8, v0, 1, 2\nv_lshl_add_u32 v244, v8, 10, v244\nv_and_b32 v8, 1, v0\nv_lshl_add_u32 v244, v8, 4, v244")
    a("v_and_b32 v245, 7, v0\nv_lshlrev_b32 v245, 1, v245\nv_lshrrev_b32 v8, 5, v0\nv_lshl_add_u32 v245, v8, 4, v245")
    a("v_lshrrev_b32 v8, 1, v13\nv_and_b32 v9, 1, v0\nv_lshlrev_b32 v9, 4, v9\ns_mov_b32 s50, 0x3f80\nv_lshlrev_b32 v9, v9, s50")
    for k in range(4): a(f"v_cmp_eq_u32 vcc, {k}, v8\nv_cndmask_b32 v{248+k}, 0, v9, vcc")
    if not P["dl"]: vm(0); transpose(128, 192)
    stamp(7)
    certl = "buffer_load_dword v58, v229, s[36:39], s58 offen"
    wait_flag(F_TURN, 5)
    ownl = "buffer_load_dwordx2 v[56:57], v228, s[36:39], s9 offen"
    a(certl + first)
    if P["hl"]: a(ownl + first)
    for n in range(16):
        if n == P["nF6"]:
            wait_flag(F_TURN, 6)
            if not dbg: stamp(14)
        r = 224 + 2 * (n & 1)
        a(f"s_add_u32 m0, s57, {1024*n}\nglobal_load_lds_dwordx4 v[{r}:{r+1}], off nt")
        if n < 14: a(f"v_lshl_add_u64 v[{r}:{r+1}], v[{r}:{r+1}], 0, s[98:99]")
    stamp(1)
    vm(16)
    a("L_Fcp:")
    if P["hl"]: a("v_xor_b32 v57, s96, v57\nv_xor_b32 v58, s96, v58\nv_or_b32 v15, v57, v58\nv_cmp_ne_u32 vcc, 0, v15\ns_cbranch_vccz L_Fcq")
    else: a("v_cmp_ne_u32 vcc, s96, v58\ns_cbranch_vccz L_Fcq")
    backoff(4)
    a(certl + " sc1")
    if P["hl"]: a(ownl + " sc1")
    vm(0)
    a("s_branch L_Fcp\nL_Fcq:")
    if P["hl"]:
        note("all 16 workgroups of this (g, pair) on this die: read their h row from the die-local copy")
        a("s_getreg_b32 s33, hwreg(HW_REG_XCC_ID, 0, 4)\nv_and_b32 v56, 0xffff, v56\nv_cmp_ne_u32 vcc, s33, v56\ns_cbranch_vccz L_Fl")
        a("s_mov_b32 s12, 0\ns_branch L_Fn\nL_Fl:")
        a("s_mov_b64 exec, s[6:7]\nv_add_u32 v1, s11, v1\ns_lshl_b64 exec, 0xffff, s13")
        a("s_cmp_eq_u32 s8, 0\ns_cselect_b32 s9, s11, 0\ns_cselect_b32 s11, 0, s11")
        a("v_add_u32 v252, s9, v252\nv_add_u32 v254, s9, v254\nv_add_u32 v253, s11, v253\nv_add_u32 v255, s11, v255\ns_mov_b64 exec, -1\nL_Fn:")
    def csum(ks):
        for t in range(4): mfma(32 + 4 * t, 240, 64 + 16 * ks + 4 * t, 32 + 4 * t if ks else None)
    for ks in range(4):
        vm(4 * (3 - ks) + (4 if ks > 3 - P["bi"] else 0))
        if ks == 3 - P["bi"]:
            a("s_barrier"); gather_dma(["s55", "s60", "s63", "s51"])
        a("s_waitcnt lgkmcnt(0)")
        wreads(ks)
        if ks: csum(ks - 1)
    a("s_waitcnt lgkmcnt(0)")
    csum(3)
    stamp(2)
    for t in range(4): a(f"v_mov_b32 v{8+t}, v{32+4*t}")
    a("s_mov_b64 exec, 0xffff\nds_write_b128 v247, v[8:11]\ns_mov_b64 exec, -1")
    stamp(6)
    a("s_waitcnt lgkmcnt(0)\ns_barrier")
    a("ds_read_b128 v[224:227], v230\nds_read_b128 v[8:11], v230 offset:320\ns_waitcnt lgkmcnt(0)")
    a("v_pk_add_f32 v[224:225], v[224:225], v[8:9]\nv_pk_add_f32 v[226:227], v[226:227], v[10:11]")
    def sm(n):
        ks = n & 3
        if n < 4: mfma(232, 16 + 4 * ks, 16 + 4 * ks, None if ks == 0 else 232)
        else: mfma(236, 16 + 4 * ks, 240, None if ks == 0 else 236)
    gather_finish("s55", P["sl2"], sm, None if P["hl"] else "s[6:7]")
    if P["dl"] and P["dbar"]: a("s_barrier")
    stamp(10)
    for n in range(5, 8):
        if P["dl"]: dnl(n - 5)
        sm(n)
    def rsum(t): a(f"v_add_f32 v{8+t}, v{32+4*t}, v{33+4*t}\nv_add_f32 v{34+4*t}, v{34+4*t}, v{35+4*t}\nv_add_f32 v{8+t}, v{8+t}, v{34+4*t}")
    for n in range(16):
        if P["dl"] and n < 5: dnl(n + 3)
        gm(n)
        if n == 3: a("v_add_f32 v232, v232, v233\nv_add_f32 v234, v234, v235")
        if n == 4: a("v_add_f32 v232, v232, v234")
        if n == 6: dpp("v_add_f32", 232, 232, 232, "quad_perm:[1,0,3,2]"); a("v_add_f32 v236, v236, v237")
        if n == 7: dpp("v_add_f32", 232, 232, 232, "quad_perm:[2,3,0,1]"); a("v_add_f32 v238, v238, v239")
        if n == 8: dpp("v_add_f32", 232, 232, 232, "row_half_mirror"); a("v_add_f32 v236, v236, v238")
        if n == 10: a("v_permlane16_swap_b32 v232, v236\nv_add_f32 v232, v232, v236")
        if n == 12: rsum(0)
        if n == 14: rsum(1)
    a("s_mov_b32 exec_lo, 0x00010001\ns_mov_b32 exec_hi, 0x01000100\nds_write_b32 v59, v232\ns_mov_b64 exec, -1")
    rsum(2)
    a("v_permlane16_swap_b32 v8, v10\nv_add_f32 v8, v8, v10")
    rsum(3)
    a("v_permlane16_swap_b32 v9, v11\nv_add_f32 v9, v9, v11")
    a("ds_write_b64 v2, v[8:9]\ns_waitcnt lgkmcnt(0)\ns_barrier")
    stamp(11)
    a("ds_read_b128 v[48:51], v3\nds_read_b128 v[52:55], v3 offset:16")
    for k in range(2): a(f"ds_read_b128 v[{32+4*k}:{35+4*k}], v231 offset:{1280*k}")
    if P["dl"] == 1: vm(0); transpose(128, 192)
    lgkm(2)
    a("v_pk_add_f32 v[48:49], v[48:49], v[50:51]\nv_pk_add_f32 v[52:53], v[52:53], v[54:55]")
    a("v_add_f32 v48, v48, v49\nv_add_f32 v52, v52, v53\nv_mul_f32 v52, 0x3b000000, v52\nv_mul_f32 v48, 0x3b000000, v48")
    a("v_fma_f32 v48, -v52, v52, v48\nv_max_f32 v48, 0, v48\nv_add_f32 v48, 0x3727c5ac, v48\nv_rsq_f32 v48, v48")
    lgkm(0)
    a("v_pk_add_f32 v[32:33], v[32:33], v[36:37]\nv_pk_add_f32 v[34:35], v[34:35], v[38:39]")
    for v in range(4): a(f"v_fma_f32 v{32+v}, -v52, v{224+v}, v{32+v}")
    a("v_mul_f32 v49, 0xbfb8aa3b, v48\nv_mul_f32 v48, v48, v48")
    for v in range(4): dpp("v_add_f32", 32 + v, 32 + v, 32 + v, "row_ror:8")
    a("v_mul_f32 v36, v49, v32\nv_mul_f32 v37, v49, v33\nv_exp_f32 v36, v36\nv_exp_f32 v37, v37")
    a("v_mul_f32 v32, v32, v48\nv_mul_f32 v33, v33, v48\nv_add_f32 v36, 1.0, v36\nv_add_f32 v37, 1.0, v37")
    a("v_rcp_f32 v36, v36\nv_rcp_f32 v37, v37\nv_mul_f32 v32, v32, v34\nv_mul_f32 v33, v33, v35")
    a("v_mul_f32 v32, v32, v36\nv_mul_f32 v33, v33, v37\nv_cvt_pk_bf16_f32 v20, v32, v33")
    for p in range(4): dpp("v_mov_b32", 16 + p, 20, None, f"quad_perm:[{p},{p},{p},{p}]")
    if P["dl"] == 2:
        vm(0)
        for t in range(8):
            d, e = t >> 1, t & 1
            for p in range(4): a(f"v_perm_b32 v{128+4*t+p}, v{192+4*(2*p+1)+d}, v{192+8*p+d}, s{34+e}")
            if t: mfma(64 + 4 * (t - 1), 16, 128 + 4 * (t - 1), None)
        mfma(92, 16, 156, None)
    else:
        for t in range(8): mfma(64 + 4 * t, 16, 128 + 4 * t, None)
    for k in range(4): a(f"v_cvt_pk_bf16_f32 v{8+k}, v{64+8*k}, v{68+8*k}\nv_min_u32 v{8+k}, -2, v{8+k}")
    if P["hl"] and P["loc3"]:
        a("s_mov_b32 exec_hi, 0\ns_andn2_b32 exec_lo, -1, s12\nbuffer_store_dwordx4 v[8:11], v246, s[36:39], s54 offen sc1")
        a("s_and_b32 exec_lo, s12, s12\ns_cbranch_scc0 L_Fm\nbuffer_store_dwordx4 v[8:11], v246, s[36:39], s54 offen\nL_Fm:\ns_mov_b64 exec, -1")
    else: a("s_mov_b32 exec_hi, 0\nbuffer_store_dwordx4 v[8:11], v246, s[36:39], s54 offen sc1\ns_mov_b64 exec, -1")
    stamp(12)

    a("s_cmp_ge_u32 s97, 4\ns_cbranch_scc1 L_exit\ns_bitcmp1_b32 s31, 0\ns_cbranch_scc1 L_Eu")
    vm(0)
    a("L_Gp:\nbuffer_load_dwordx4 v[16:19], v244, s[36:39], s100 offen sc1\nbuffer_load_dwordx4 v[20:23], v244, s[36:39], s10 offen sc1\ns_mov_b64 exec, -1")
    vm(0)
    mfma(24, 16, 248, None); mfma(24, 20, 248, 24)
    a("v_max_u32 v15, v16, v17\nv_max3_u32 v15, v15, v18, v19\nv_max3_u32 v15, v15, v20, v21\nv_max3_u32 v15, v15, v22, v23")
    a("v_cmp_eq_u32 vcc, -1, v15\ns_cbranch_vccz L_Gd")
    backoff(0)
    a("s_mov_b64 exec, vcc\ns_branch L_Gp\nL_Gd:")
    stamp(13)
    a("v_pk_add_f32 v[24:25], v[24:25], v[26:27]\nv_permlane32_swap_b32 v24, v25\nv_add_f32 v24, v24, v25")
    x16("v_add_f32", 24, 25)
    a("v_cvt_pk_bf16_f32 v24, v24, v24")
    a("s_mov_b32 exec_lo, 0xff\ns_mov_b32 exec_hi, 0xff\nbuffer_store_short v24, v245, s[44:47], s101 offen\ns_branch L_exit")
    a("L_Eu:\ns_xor_b32 s48, s31, 1\ns_or_b32 s48, s48, s28\ns_or_b32 s48, s48, s62\ns_or_b32 s48, s48, s97\ns_cbranch_scc1 L_exit")
    a(f"s_mov_b64 exec, 1\nv_mov_b32 v25, s96\ns_mov_b32 s48, {hex(EP)}\nbuffer_store_dword v25, v245, s[36:39], s48 offen sc1")

    a("L_exit:")
    if "e2" in P:
        a("s_cmp_lt_u32 s3, 4\ns_cbranch_scc1 L_padd\ns_add_u32 s68, s68, 3000")
        a("L_pad:\ns_memrealtime s[66:67]\ns_waitcnt lgkmcnt(0)\ns_sub_u32 s66, s66, s64\ns_cmp_lt_u32 s66, s68\ns_cbranch_scc1 L_pad\nL_padd:")
    if dbg:
        stamp(15)
        a("s_mov_b64 exec, -1\ns_waitcnt vmcnt(0) lgkmcnt(0)\ns_add_u32 s92, s97, 1")
        for k in range(16): a(f"v_mov_b32 v{16+k}, s{64+2*k}")
        a(f"s_and_b32 s48, s3, 3\ns_lshl_b32 s48, s48, 6\ns_add_u32 s49, s48, {L_FLAG + 256}\nv_mov_b32 v2, s49\nv_mov_b32 v1, 0\ns_mov_b64 exec, 1")
        a("s_cmp_ge_u32 s3, 4\ns_cbranch_scc1 L_dT")
        for k in range(4): a(f"ds_write_b128 v2, v[{16+4*k}:{19+4*k}] offset:{16*k}")
        a("s_waitcnt lgkmcnt(0)\ns_endpgm\nL_dT:\ns_barrier")
        for k in range(4): a(f"ds_read_b128 v[{32+4*k}:{35+4*k}], v2 offset:{16*k}")
        a(f"s_lshl_b32 s49, s2, 9\ns_add_u32 s48, s48, s49\ns_add_u32 s48, s48, {STAMP}\ns_add_u32 s26, s26, s48\ns_addc_u32 s27, s27, 0")
        a("s_sleep 100\ns_sleep 100\ns_waitcnt lgkmcnt(0)")
        for k in range(4): a(f"global_store_dwordx4 v1, v[{32+4*k}:{35+4*k}], s[26:27] offset:{16*k}")
        for k in range(4): a(f"global_store_dwordx4 v1, v[{16+4*k}:{19+4*k}], s[26:27] offset:{256+16*k}")
    a("L_end:\ns_endpgm\nL_fin:")

    head = open("sequential_preLN__sliding_block_cached__swiglu_ffn__decode.s.ref").read().split("; Override launch")[0]
    return head + f"; @launch grid=(256,1,1) block=(512,1,1) lds={LDS_BYTES}\n" + HEADER.replace("RS bytes", f"{hex(RS)} bytes") + f""".amdgcn_target "amdgcn-amd-amdhsa--gfx950"
.text
.globl {KNAME}
.p2align 8
.type {KNAME},@function
""" + a.padded() + f""".section .rodata,"a"
.p2align 6
.amdhsa_kernel {KNAME}
  .amdhsa_next_free_vgpr 256
  .amdhsa_next_free_sgpr 102
  .amdhsa_accum_offset 256
  .amdhsa_group_segment_fixed_size 0
  .amdhsa_kernarg_size 96
  .amdhsa_user_sgpr_count 2
  .amdhsa_user_sgpr_kernarg_segment_ptr 1
  .amdhsa_system_sgpr_workgroup_id_x 1
  .amdhsa_float_denorm_mode_32 3
.end_amdhsa_kernel
"""

if __name__ == "__main__":
    kw = {}
    for x in sys.argv[2:]:
        k, v = x.split("=", 1)
        kw[k] = int(v, 0)
    open(sys.argv[1], "w").write(gen(**kw))
```
